```python
import torch

def _softmax(x, axis=-1):
    return torch.softmax(x, dim=axis)

def _gelu(x):
    return torch.nn.functional.gelu(x, approximate='tanh')

def _silu(x):
    return torch.nn.functional.silu(x)

def _sigmoid(x):
    return torch.sigmoid(x)

def _layernorm(x, axis=-1, eps=1e-05):
    m = x.mean(dim=axis, keepdim=True)
    v = x.var(dim=axis, keepdim=True, unbiased=False)
    return (x - m) / torch.sqrt(v + eps)

def _scatter_add(tgt, idx, src, axis=0):
    return tgt.clone().index_add_(axis, idx, src)

def _segment_sum(src, seg, n):
    out = torch.zeros((n,) + src.shape[1:], dtype=src.dtype)
    return out.index_add_(0, seg, src)

def _pad(x, pw):
    flat = tuple((v for pair in reversed(pw) for v in pair))
    return torch.nn.functional.pad(x, flat)
kernel_name = 'recurrent_scan__memory_aug_recurrent_mem_tr__glu_gated_reglu__prompt'

def setup_inputs():

    _w = lambda a: (lambda t: t.to(torch.bfloat16) if t.is_floating_point() else t)(torch.as_tensor(a))

    def _A_setup():
        B, S, Dm = (1, 2048, 1024)
        H, Dh = (32, 128)
        M, seg = (8, 32)
        seg = min(seg, S)
        S = S // seg * seg
        return {'x': _w((lambda *s: torch.randn(*s, dtype=torch.bfloat16) * 0.1)(B, S, Dm)), 'mem0': _w((lambda *s: torch.randn(*s, dtype=torch.bfloat16) * 1.6)(B, M, Dm)), 'Wq': _w((lambda *s: torch.randn(*s, dtype=torch.bfloat16) * 0.8)(Dm, H, Dh) * Dm ** (-0.5)), 'Wk': _w((lambda *s: torch.randn(*s, dtype=torch.bfloat16) * 0.8)(Dm, H, Dh) * Dm ** (-0.5)), 'Wv': _w((lambda *s: torch.randn(*s, dtype=torch.bfloat16) * 1.6)(Dm, H, Dh) * Dm ** (-0.5)), 'Wo': _w((lambda *s: torch.randn(*s, dtype=torch.bfloat16) * 1.6)(H, Dh, Dm) * (H * Dh) ** (-0.5)), 'seg_len': seg}
    _A_in = _A_setup()

    def _B_setup():
        B, S, D, F = (1, 2048, 1024, 3584)
        return {'x': _w((lambda *s: torch.randn(*s, dtype=torch.bfloat16) * 0.1)(B, S, D)), 'W_gate': _w((lambda *s: torch.randn(*s, dtype=torch.bfloat16) * 0.4)(D, F) * (2.0 / D) ** 0.5), 'W_up': _w((lambda *s: torch.randn(*s, dtype=torch.bfloat16) * 0.4)(D, F) * (2.0 / D) ** 0.5), 'W_down': _w((lambda *s: torch.randn(*s, dtype=torch.bfloat16) * 0.4)(F, D) * (1.0 / F) ** 0.5)}
    _B_in = _B_setup()
    return {'A_x': _A_in['x'], 'A_mem0': _A_in['mem0'], 'A_Wq': _A_in['Wq'], 'A_Wk': _A_in['Wk'], 'A_Wv': _A_in['Wv'], 'A_Wo': _A_in['Wo'], 'A_seg_len': _A_in['seg_len'], 'B_x': _B_in['x'], 'B_W_gate': _B_in['W_gate'], 'B_W_up': _B_in['W_up'], 'B_W_down': _B_in['W_down']}

def reference(A_x, A_mem0, A_Wq, A_Wk, A_Wv, A_Wo, A_seg_len, B_x, B_W_gate, B_W_up, B_W_down):

    def _A_ref(x, mem0, Wq, Wk, Wv, Wo, seg_len):
        B, S, Dm = x.shape
        H, Dh = (Wq.shape[1], Wq.shape[2])
        M = mem0.shape[1]
        scale = Dh ** (-0.5)
        n_seg = S // seg_len
        L = M + seg_len
        idx = torch.arange(L)
        mask = (idx[:, None] < M) | (idx[:, None] >= idx[None, :])
        mem = mem0
        outs = []
        for s in range(n_seg):
            xs = x[:, s * seg_len:(s + 1) * seg_len, :].clone()
            h = torch.concatenate([mem, xs], axis=1)
            q = torch.einsum('btd,dhe->bhte', h, Wq)
            k = torch.einsum('btd,dhe->bhte', h, Wk)
            v = torch.einsum('btd,dhe->bhte', h, Wv)
            scores = torch.einsum('bhqe,bhke->bhqk', q, k) * scale
            scores = torch.where(mask[None, None], scores, -1000000000.0)
            p = _softmax(scores, axis=-1)
            o = torch.einsum('bhqk,bhke->bhqe', p, v)
            o = torch.einsum('bhte,hed->btd', o, Wo)
            mem = o[:, :M, :].clone()
            outs.append(o[:, M:, :])
        return torch.concatenate(outs, axis=1)

    def _B_ref(x, W_gate, W_up, W_down):
        gate = torch.einsum('bsd,df->bsf', x, W_gate)
        up = torch.einsum('bsd,df->bsf', x, W_up)
        gate = gate * (lambda x, dt: x.to(dt))(gate > 0, gate.dtype)
        h = gate * up
        return torch.einsum('bsf,fd->bsd', h, W_down)
    x = A_x
    xn = _layernorm(x, axis=-1)
    s = _A_ref(xn, A_mem0, A_Wq, A_Wk, A_Wv, A_Wo, A_seg_len)
    g = _silu(_B_ref(xn, B_W_gate, B_W_up, B_W_down))
    return x + s * g
```

```python
class Asm:
    def __init__(self):
        self.lines = []
        self._lab = 0
    def __call__(self, s):
        for ln in s.split("\n"):
            ln = ln.strip()
            if not ln: continue
            if ln.endswith(":"):
                self.lines.append(ln)
            else:
                self.lines.append("    " + ln)
    def label(self, base="L"):
        self._lab += 1
        return f"{base}_{self._lab}"
    def text(self):
        return "\n".join(self.lines) + "\n"

def vr(a, n=1):
    return f"v{a}" if n == 1 else f"v[{a}:{a+n-1}]"
def ar(a, n=1):
    return f"a{a}" if n == 1 else f"a[{a}:{a+n-1}]"
def sr(a, n=1):
    return f"s{a}" if n == 1 else f"s[{a}:{a+n-1}]"

def interleave(main, fillers, start=0, per=1):
    out = []
    fi = 0
    for i, m in enumerate(main):
        out.append(m)
        if i >= start:
            for _ in range(per):
                if fi < len(fillers):
                    f = fillers[fi]; fi += 1
                    if isinstance(f, str): out.append(f)
                    else: out.extend(f)
    while fi < len(fillers):
        f = fillers[fi]; fi += 1
        if isinstance(f, str): out.append(f)
        else: out.extend(f)
    return out
```

```python
from asmlib import *
from layout import *
import struct

def fbits(x):
    return struct.unpack("<I", struct.pack("<f", x))[0]

CFG = dict()

S_W = 3
S_WS = 8
S_B = 12
S_AOFF, S_BOFF, S_BSTEP, S_M0A, S_M0B, S_CNT = 16, 17, 18, 19, 20, 21
S_GBUD, S_J, S_TK, S_MB, S_MT, S_NT = 22, 23, 24, 25, 26, 27
S_COFF, S_DONE, S_M2 = 29, 40, 41
S_T0 = 30
S_OUT = 44
S_MASK = 52
S_DBG = 64
V_XA, V_WA, V_AOFF = 8, 10, 18
V_BQ, V_BG = 19, 26
V_TK, V_SNAP, V_L4 = 23, 24, 25
V_EP = 30
V_SNAPN = 31
V_FRAG = 32
V2_XD, V2_BD, V2_WA, V2_RW, V2_RR = 208, 212, 216, 220, 223
V2_XO, V2_L16 = 226, 227
V_AD, V_KMD, V_VD, V_NB = 228, 229, 230, 231
STAGE = 32768
LMB = 131072
LSC = LMB + 64

def XF16(p, i): return V_FRAG + 64*p + 4*i
def WF16(p, t): return V_FRAG + 64*p + 32 + 4*t
def ACC16(t, i): return (t*8 + i)*4
def frag_reads16(p, ring):
    hi = ring >> 1; base = (ring & 1)*STAGE
    xs = [f"ds_read_b128 {vr(XF16(p,i),4)}, {vr(V_XA + hi)} offset:{base + i*256}" for i in range(8)]
    ws = []
    for t in range(8):
        for sec in range(2):
            off = base + 16384 + (t >> 2)*8192 + (16*sec)*256
            ws.append(f"ds_read_b64_tr_b16 {vr(WF16(p,t) + 2*sec, 2)}, {vr(V_WA + 4*hi + (t & 3))} offset:{off}")
    return [ws[0], ws[1]] + xs + ws[2:]
def mfmas16(p, first, swap):
    out = []
    for t in range(8):
        for i in range(8):
            x, y = (XF16(p,i), WF16(p,t)) if swap else (WF16(p,t), XF16(p,i))
            out.append(f"v_mfma_f32_16x16x32_bf16 {ar(ACC16(t,i),4)}, {vr(x,4)}, {vr(y,4)}, {'0' if first else ar(ACC16(t,i),4)}")
    return out

def dma_ops(ring, vb):
    g = []
    base = ring*STAGE
    g.append([f"s_add_u32 m0, {sr(S_M0A)}, {base}", "s_nop 0",
              f"buffer_load_dwordx4 {vr(V_AOFF)}, {sr(S_WS,4)}, {sr(S_AOFF)} offen sc1 lds"])
    for j in range(1, 4):
        g.append([f"buffer_load_dwordx4 {vr(V_AOFF)}, {sr(S_WS,4)}, {sr(S_AOFF)} offen offset:{j*1024} sc1 lds"])
    g[-1].append(f"s_add_u32 {sr(S_AOFF)}, {sr(S_AOFF)}, 16384")
    g.append([f"s_add_u32 m0, {sr(S_M0B)}, {base}", "s_nop 0",
              f"buffer_load_dwordx4 {vr(vb)}, {sr(S_B,4)}, {sr(S_BOFF)} offen lds"])
    for j in range(1, 4):
        g.append([f"buffer_load_dwordx4 {vr(vb+j)}, {sr(S_B,4)}, {sr(S_BOFF)} offen offset:{j*1024} lds"])
    g[-1].append(f"s_add_u32 {sr(S_BOFF)}, {sr(S_BOFF)}, {sr(S_BSTEP)}")
    return g

def weave(main, slots):
    out = []
    for i, m in enumerate(main):
        out.append(m)
        if i in slots: out.extend(slots[i])
    return out

def place(slots, items, positions):
    for it, p in zip(items, positions):
        slots.setdefault(p, [])
        if isinstance(it, str): slots[p].append(it)
        else: slots[p].extend(it)

VB = 32 + 128 + 48
V_BW = 204

def stage16(a, ring, p, swap, first=False, dma=True, vm=16, next_reads=True):
    a("s_waitcnt lgkmcnt(0)" if vm is None else f"s_waitcnt vmcnt({vm}) lgkmcnt(0)")
    a("s_barrier")
    sl = {}
    if next_reads: place(sl, frag_reads16(p ^ 1, (ring+1) & 3), range(0, 48, 2))
    if dma: place(sl, dma_ops(ring, V_BW), range(3, 64, 8))
    for ln in weave(mfmas16(p, first, swap), sl): a(ln)

def e1_main(a, swap):
    for ring in range(4):
        for g in dma_ops(ring, V_BW):
            for ln in g: a(ln)
    a(f"s_mov_b32 {sr(S_CNT)}, 6")
    a("s_waitcnt vmcnt(24)")
    a("s_barrier")
    lab = a.label("Lmid")
    for ln in frag_reads16(0, 0): a(ln)
    for r in range(4): stage16(a, r, r & 1, swap, first=(r == 0))
    a(f"{lab}:")
    for r in range(4): stage16(a, r, r & 1, swap)
    a(f"s_sub_u32 {sr(S_CNT)}, {sr(S_CNT)}, 1")
    a(f"s_cmp_lg_u32 {sr(S_CNT)}, 0")
    a(f"s_cbranch_scc1 {lab}")
    stage16(a, 0, 0, swap, dma=False, vm=16)
    stage16(a, 1, 1, swap, dma=False, vm=8)
    stage16(a, 2, 0, swap, dma=False, vm=0)
    stage16(a, 3, 1, swap, dma=False, vm=None, next_reads=False)

def e1_setup_regs(a):
    a(f"""
    v_and_b32 v1, 15, v0
    v_lshrrev_b32 v2, 4, v0         ; g
    v_lshlrev_b32 v4, 4, v1
    v_lshlrev_b32 v5, 12, v2
    v_add_u32 {vr(V_AD)}, v4, v5    ; g*4096 + i*16
    s_lshr_b32 s4, {sr(S_W)}, 1
    s_lshl_b32 s5, s4, 11
    v_add_u32 {vr(V_XA)}, s5, {vr(V_AD)}
    v_add_u32 {vr(V_XA+1)}, 0x10000, {vr(V_XA)}
    v_mov_b32 {vr(V_EP)}, {vr(V_XA)}
    v_bfe_u32 v3, v0, 2, 2          ; r
    v_lshlrev_b32 v4, 2, v2         ; 4g
    v_add_u32 v4, v4, v3            ; k
    v_and_b32 v6, 7, v4             ; k&7
    v_lshlrev_b32 v4, 8, v4         ; k*256
    v_and_b32 v5, 3, v0
    v_lshlrev_b32 v5, 3, v5         ; c*8
    v_add_u32 v4, v4, v5
    s_and_b32 s5, {sr(S_W)}, 1
    s_lshl_b32 s5, s5, 2            ; 4wn
    """)
    for tl in range(4):
        a(f"""
        s_add_u32 s6, s5, {tl}
        v_xor_b32 v5, s6, v6
        v_lshlrev_b32 v5, 5, v5
        v_add_u32 {vr(V_WA+tl)}, v4, v5
        v_add_u32 {vr(V_WA+4+tl)}, 0x10000, {vr(V_WA+tl)}
        """)
    a(f"""
    v_lshlrev_b32 v4, 4, v0
    s_lshl_b32 s5, {sr(S_W)}, 12
    v_add_u32 {vr(V_AOFF)}, s5, v4
    v_lshrrev_b32 v1, 4, v0
    v_and_b32 v2, 15, v0
    """)
    for base, ldb in ((V_BQ, 8192), (V_BG, 7168)):
        for j in range(4):
            a(f"""
            v_add_u32 v3, {(4*j) & 7}, v1
            v_lshlrev_b32 v3, 1, v3
            v_xor_b32 v3, v2, v3
            v_lshlrev_b32 v3, 4, v3
            s_lshr_b32 s5, {sr(S_W)}, 1
            s_lshl_b32 s5, s5, 4
            s_add_u32 s5, s5, {4*j}
            v_add_u32 v4, s5, v1
            v_mul_u32_u24 v4, {ldb}, v4
            v_add_u32 v4, v4, v3
            v_subrev_u32 {vr(base+j)}, {1024*j}, v4
            """)

def e1_task_common(a, ldb, vb):
    a(f"""
    s_lshl_b32 {sr(S_M0A)}, {sr(S_W)}, 12
    s_and_b32 s6, {sr(S_W)}, 1
    s_lshl_b32 s6, s6, 13
    s_lshr_b32 s7, {sr(S_W)}, 1
    s_lshl_b32 s7, s7, 12
    s_add_u32 s6, s6, s7
    s_add_u32 {sr(S_M0B)}, s6, 16384
    s_mov_b32 {sr(S_BSTEP)}, {ldb*32}
    s_lshl_b32 {sr(S_AOFF)}, {sr(S_MT)}, 19
    s_add_u32 {sr(S_AOFF)}, {sr(S_AOFF)}, {OFF_XN}
    """)
    for j in range(4): a(f"v_mov_b32 {vr(V_BW+j)}, {vr(vb+j)}")

def ep_chunks(a):
    a(f"""
    s_and_b32 s5, {sr(S_W)}, 1
    s_lshl_b32 s5, s5, 15
    s_add_u32 s7, {sr(S_COFF)}, s5
    s_nop 4
    """)
    tmp = 160; n = 0
    for p in range(4):
        a(f"s_add_u32 s6, s7, {(16*(p>>1) + 4*(p&1))*4096}")
        for i in range(8):
            b = tmp + (n % 3)*12; n += 1
            for tt in range(2):
                for r in range(4):
                    a(f"v_accvgpr_read_b32 {vr(b+4*tt+r)}, {ar(ACC16(2*p+tt,i)+r)}")
            for r in range(4):
                a(f"v_cvt_pk_bf16_f32 {vr(b+8+r)}, {vr(b+2*r)}, {vr(b+2*r+1)}")
            a(f"buffer_store_dwordx4 {vr(b+8,4)}, {vr(V_EP)}, {sr(S_WS,4)}, s6 offen offset:{i*256} sc1")

def ep_vt(a):
    a(f"""
    s_lshr_b32 s5, {sr(S_W)}, 1
    s_lshl_b32 s5, s5, 20             ; wm*16*65536
    s_add_u32 s7, {sr(S_COFF)}, s5
    s_and_b32 s5, {sr(S_W)}, 1
    s_lshl_b32 s5, s5, 10             ; 64 wn * 16
    s_add_u32 s7, s7, s5
    s_nop 4
    """)
    tmp = 160; n = 0
    for P in range(4):
        a(f"s_add_u32 s6, s7, {4*P*65536}")
        for t in range(8):
            b = tmp + (n % 3)*12; n += 1
            for ii in range(2):
                for r in range(4):
                    a(f"v_accvgpr_read_b32 {vr(b+4*ii+r)}, {ar(ACC16(t,2*P+ii)+r)}")
            for r in range(4):
                a(f"v_cvt_pk_bf16_f32 {vr(b+8+r)}, {vr(b+2*r)}, {vr(b+2*r+1)}")
            a(f"buffer_store_dwordx4 {vr(b+8,4)}, {vr(V_VD)}, {sr(S_WS,4)}, s6 offen offset:{(t>>2)*2048 + (t&3)*256} sc1")

def ep_gu(a):
    a(f"""
    s_and_b32 s5, {sr(S_W)}, 1
    s_lshl_b32 s5, s5, 15
    s_add_u32 s7, {sr(S_COFF)}, s5
    s_nop 4
    """)
    tmp = 160; n = 0
    for p in range(2):
        a(f"s_add_u32 s6, s7, {4*p*4096}")
        for i in range(8):
            b = tmp + (n % 2)*20; n += 1
            for tt in range(2):
                for r in range(4):
                    a(f"v_accvgpr_read_b32 {vr(b+4*tt+r)}, {ar(ACC16(2*p+tt,i)+r)}")
                    a(f"v_accvgpr_read_b32 {vr(b+8+4*tt+r)}, {ar(ACC16(4+2*p+tt,i)+r)}")
            for r in range(8):
                a(f"v_max_f32 {vr(b+r)}, 0, {vr(b+r)}")
            for r in range(0, 8, 2):
                a(f"v_pk_mul_f32 {vr(b+r,2)}, {vr(b+r,2)}, {vr(b+8+r,2)}")
            for r in range(4):
                a(f"v_cvt_pk_bf16_f32 {vr(b+16+r)}, {vr(b+2*r)}, {vr(b+2*r+1)}")
            a(f"buffer_store_dwordx4 {vr(b+16,4)}, {vr(V_EP)}, {sr(S_WS,4)}, s6 offen offset:{i*256} sc1")

def load_srd(a, srd, ka, nbytes):
    a(f"""
    s_load_dwordx2 {sr(srd,2)}, s[0:1], {ka}
    s_mov_b32 {sr(srd+2)}, {nbytes}
    s_mov_b32 {sr(srd+3)}, 0x20000
    """)

def X2(r, i): return 32 + 32*r + 4*i
def W2(p, t): return 160 + 16*p + 4*t
def ACC2(t, i): return (i*4 + t)*4
def e2_tr(p, slot):
    return [f"ds_read_b64_tr_b16 {vr(W2(p,t) + 2*sec, 2)}, {vr(V2_WA + t)} offset:{slot*4096 + sec*2048}" for t in range(4) for sec in range(2)]
def e2_wdma(slot):
    g = [[f"s_add_u32 m0, {sr(S_M2)}, {slot*4096}", "s_nop 0",
          f"buffer_load_dwordx4 {vr(V2_BD)}, {sr(S_B,4)}, {sr(S_BOFF)} offen lds"]]
    for j in range(1, 4):
        g.append([f"buffer_load_dwordx4 {vr(V2_BD+j)}, {sr(S_B,4)}, {sr(S_BOFF)} offen offset:{j*1024} lds"])
    g[-1].append(f"s_add_u32 {sr(S_BOFF)}, {sr(S_BOFF)}, 65536")
    return g
def e2_xload(r, i):
    return f"buffer_load_dwordx4 {vr(X2(r,i),4)}, {vr(V2_XD + (i >> 1))}, {sr(S_WS,4)}, {sr(S_AOFF)} offen offset:{(i & 1)*256} sc1"
def e2_stage(a, r, first=False, issue=True, vm=32, nxt=True, extra=None):
    p = r & 1
    a(f"s_waitcnt vmcnt({vm}) lgkmcnt(0)")
    if extra: extra()
    main = [f"v_mfma_f32_16x16x32_bf16 {ar(ACC2(t,i),4)}, {vr(W2(p,t),4)}, {vr(X2(r,i),4)}, {'0' if first else ar(ACC2(t,i),4)}"
            for i in range(8) for t in range(4)]
    sl = {}
    if issue: place(sl, e2_wdma(r), [0, 1, 2, 3])
    if nxt: place(sl, e2_tr(p ^ 1, (r+1) & 3), [4, 5, 6, 8, 9, 10, 12, 13])
    if issue:
        for i in range(8): place(sl, [e2_xload(r, i)], [4*i + 3])
        place(sl, [f"s_add_u32 {sr(S_AOFF)}, {sr(S_AOFF)}, 16384"], [31])
    for ln in weave(main, sl): a(ln)

def e2_main(a, nstages, extra):
    for s in range(4):
        for g in e2_wdma(s):
            for ln in g: a(ln)
        for i in range(8): a(e2_xload(s, i))
        a(f"s_add_u32 {sr(S_AOFF)}, {sr(S_AOFF)}, 16384")
    a(f"s_mov_b32 {sr(S_CNT)}, {nstages//4 - 2}")
    a("s_waitcnt vmcnt(44)")
    for ln in e2_tr(0, 0): a(ln)
    for r in range(4): e2_stage(a, r, first=(r == 0))
    lab = a.label("Le2")
    a(f"{lab}:")
    for r in range(4): e2_stage(a, r)
    a(f"s_sub_u32 {sr(S_CNT)}, {sr(S_CNT)}, 1")
    a(f"s_cmp_lg_u32 {sr(S_CNT)}, 0")
    a(f"s_cbranch_scc1 {lab}")
    e2_stage(a, 0, issue=False, vm=32)
    e2_stage(a, 1, issue=False, vm=20)
    e2_stage(a, 2, issue=False, vm=8)
    e2_stage(a, 3, issue=False, vm=0, nxt=False, extra=extra)

R2 = 32
def e2_reduce(a):
    a("s_nop 7")
    for dd in range(1, 4):
        for ii in range(2):
            for t in range(4):
                a(f"ds_write_b128 {vr(V2_RW + dd-1)}, {ar(ACC2(t, 2*dd+ii), 4)} offset:{(ii*4+t)*1024}")
    for k in range(8):
        for r in range(4): a(f"v_accvgpr_read_b32 {vr(R2 + 4*k + r)}, {ar(ACC2(k & 3, k >> 2) + r)}")
    a("s_waitcnt lgkmcnt(0)")
    a("s_barrier")
    P = 64
    for dd in range(3):
        for k in range(8):
            a(f"ds_read_b128 {vr(P + 32*dd + 4*k, 4)}, {vr(V2_RR + dd)} offset:{k*1024}")
        a(f"s_waitcnt lgkmcnt({8 if dd > 0 else 15})") if dd > 0 else None
        if dd > 0:
            for k in range(16):
                a(f"v_pk_add_f32 {vr(R2 + 2*k, 2)}, {vr(R2 + 2*k, 2)}, {vr(P + 32*(dd-1) + 2*k, 2)}")
    a("s_waitcnt lgkmcnt(0)")
    for k in range(16):
        a(f"v_pk_add_f32 {vr(R2 + 2*k, 2)}, {vr(R2 + 2*k, 2)}, {vr(P + 64 + 2*k, 2)}")

def e2_setup_regs(a):
    a(f"""
    v_lshlrev_b32 {vr(V2_L16)}, 4, v0
    """)
    for dd in range(4):
        a(f"""
        s_add_u32 s4, {sr(S_W)}, {dd}
        s_and_b32 s4, s4, 3
        s_lshl_b32 s4, s4, 9
        v_add_u32 {vr(V2_XD+dd)}, s4, {vr(V_AD)}
        """)
    a(f"""
    v_lshrrev_b32 v1, 3, v0
    v_lshlrev_b32 v1, 11, v1
    v_bfe_u32 v2, v0, 1, 2
    v_lshrrev_b32 v3, 4, v0
    v_xor_b32 v2, v2, v3
    v_lshlrev_b32 v2, 5, v2
    v_add_u32 v1, v1, v2
    v_and_b32 v2, 1, v0
    v_lshlrev_b32 v2, 4, v2
    v_add_u32 {vr(V2_BD)}, v1, v2
    """)
    for j in range(1, 4): a(f"v_add_u32 {vr(V2_BD+j)}, {j*(16384-1024)}, {vr(V2_BD)}")
    a(f"""
    v_lshrrev_b32 v1, 4, v0
    v_lshlrev_b32 v1, 2, v1
    v_bfe_u32 v2, v0, 2, 2
    v_add_u32 v1, v1, v2              ; k
    v_bfe_u32 v2, v1, 1, 2            ; (k>>1)&3
    v_lshlrev_b32 v1, 7, v1
    v_and_b32 v3, 3, v0
    v_lshlrev_b32 v3, 3, v3
    v_add_u32 v1, v1, v3
    s_lshl_b32 s4, {sr(S_W)}, 14
    v_add_u32 v1, s4, v1
    """)
    for tl in range(4):
        a(f"""
        v_xor_b32 v3, {tl}, v2
        v_lshlrev_b32 v3, 5, v3
        v_add_u32 {vr(V2_WA+tl)}, v1, v3
        """)
    a(f"""
    s_lshl_b32 s4, {sr(S_W)}, 14
    v_add_u32 {vr(V2_RW)}, s4, {vr(V2_L16)}
    v_add_u32 {vr(V2_RW+1)}, 8192, {vr(V2_RW)}
    s_lshl_b32 s4, {sr(S_W)}, 13
    s_add_u32 s4, s4, 65536
    v_add_u32 {vr(V2_RW+2)}, s4, {vr(V2_L16)}
    """)
    for dd in range(1, 4):
        a(f"""
        s_sub_u32 s4, {sr(S_W)}, {dd}
        s_and_b32 s4, s4, 3
        """)
        if dd < 3:
            a(f"""
            s_lshl_b32 s4, s4, 14
            s_add_u32 s4, s4, {(dd-1)*8192}
            """)
        else:
            a(f"""
            s_lshl_b32 s4, s4, 13
            s_add_u32 s4, s4, 65536
            """)
        a(f"v_add_u32 {vr(V2_RR+dd-1)}, s4, {vr(V2_L16)}")
    a(f"""
    v_and_b32 v1, 15, v0
    v_lshlrev_b32 v1, 11, v1
    v_bfe_u32 v2, v0, 4, 1
    v_lshlrev_b32 v2, 5, v2
    v_add_u32 v1, v1, v2
    v_bfe_u32 v2, v0, 5, 1
    v_lshlrev_b32 v2, 4, v2
    v_add_u32 {vr(V2_XO)}, v1, v2
    """)

def e2_task_common(a, aoff, kc):
    a(f"""
    s_mul_i32 {sr(S_AOFF)}, {sr(S_MT)}, {kc*4096}
    s_add_u32 {sr(S_AOFF)}, {sr(S_AOFF)}, {aoff}
    s_mul_i32 s4, {sr(S_W)}, {kc*1024}
    s_add_u32 {sr(S_AOFF)}, {sr(S_AOFF)}, s4
    s_lshr_b32 s4, {sr(S_NT)}, 4
    s_lshl_b32 s4, s4, 11
    s_add_u32 {sr(S_AOFF)}, {sr(S_AOFF)}, s4
    s_mul_i32 {sr(S_BOFF)}, {sr(S_W)}, {kc*2*2048}
    s_and_b32 s4, {sr(S_NT)}, 15
    s_lshl_b32 s4, s4, 7
    s_add_u32 {sr(S_BOFF)}, {sr(S_BOFF)}, s4
    s_lshl_b32 {sr(S_M2)}, {sr(S_W)}, 14
    s_lshl_b32 s4, {sr(S_MT)}, 5
    s_add_u32 s4, s4, {sr(S_NT)}
    s_lshl_b32 s4, s4, 14
    s_lshl_b32 s5, {sr(S_W)}, 12
    s_add_u32 s4, s4, s5
    s_add_u32 {sr(S_COFF)}, s4, {OFF_GS}
    """)

def ep_down(a):
    c = fbits(-1.4426950408889634)
    T = 64
    for k in range(32): a(f"v_mul_f32 {vr(T+k)}, {c:#x}, {vr(R2+k)}")
    for k in range(32): a(f"v_exp_f32 {vr(T+k)}, {vr(T+k)}")
    for k in range(32): a(f"v_add_f32 {vr(T+k)}, 1.0, {vr(T+k)}")
    for k in range(32): a(f"v_rcp_f32 {vr(T+k)}, {vr(T+k)}")
    for k in range(0, 32, 2): a(f"v_pk_mul_f32 {vr(R2+k,2)}, {vr(R2+k,2)}, {vr(T+k,2)}")
    Q = 96
    for ii in range(2):
        for pr in range(2):
            q = Q + 4*(ii*2+pr)
            for tt in range(2):
                b = R2 + (ii*4 + 2*pr + tt)*4
                a(f"v_cvt_pk_bf16_f32 {vr(q+2*tt)}, {vr(b)}, {vr(b+1)}")
                a(f"v_cvt_pk_bf16_f32 {vr(q+2*tt+1)}, {vr(b+2)}, {vr(b+3)}")
    a("s_nop 1")
    for u in range(4):
        q = Q + 4*u
        a(f"v_permlane16_swap_b32 {vr(q)}, {vr(q+2)}")
        a(f"v_permlane16_swap_b32 {vr(q+1)}, {vr(q+3)}")
    for u in range(4):
        a(f"buffer_store_dwordx4 {vr(Q+4*u,4)}, {vr(V2_L16)}, {sr(S_WS,4)}, {sr(S_COFF)} offen offset:{u*1024} sc1")

XG = 192
def wo_loads(a):
    for ii in range(2):
        for pr in range(2):
            u = ii*2 + pr
            a(f"buffer_load_dwordx4 {vr(160+4*u,4)}, {vr(V2_XO)}, {sr(S_OUT,4)}, {sr(S_T0+ii)} offen offset:{pr*64}")
    for u in range(4):
        a(f"buffer_load_dwordx4 {vr(192+4*u,4)}, {vr(V2_L16)}, {sr(S_WS,4)}, {sr(S_COFF)} offen offset:{u*1024} sc1")

def ep_wo(a):
    for ii in range(2):
        for pr in range(2):
            for r in range(4):
                a(f"v_permlane16_swap_b32 {vr(R2 + (ii*4+2*pr)*4 + r)}, {vr(R2 + (ii*4+2*pr+1)*4 + r)}")
    a("s_waitcnt vmcnt(0)")
    load_srd(a, S_OUT, KA_OUT, 4*MB)
    T = 64
    for ii in range(2):
        for pr in range(2):
            u = ii*2 + pr
            s = R2 + (ii*4 + 2*pr)*4
            x = 160 + 4*u; g = 192 + 4*u; t = T + 20*u
            for d in range(4):
                a(f"v_lshlrev_b32 {vr(t+2*d)}, 16, {vr(x+d)}")
                a(f"v_and_b32 {vr(t+2*d+1)}, 0xffff0000, {vr(x+d)}")
                a(f"v_lshlrev_b32 {vr(t+8+2*d)}, 16, {vr(g+d)}")
                a(f"v_and_b32 {vr(t+8+2*d+1)}, 0xffff0000, {vr(g+d)}")
            for d in range(4):
                a(f"v_pk_fma_f32 {vr(t+2*d,2)}, {vr(s+2*d,2)}, {vr(t+8+2*d,2)}, {vr(t+2*d,2)}")
            for d in range(4):
                a(f"v_cvt_pk_bf16_f32 {vr(t+16+d)}, {vr(t+2*d)}, {vr(t+2*d+1)}")
    a("s_waitcnt lgkmcnt(0)")
    for ii in range(2):
        for pr in range(2):
            t = T + 20*(ii*2+pr)
            a(f"buffer_store_dwordx4 {vr(t+16,4)}, {vr(V2_XO)}, {sr(S_OUT,4)}, {sr(S_T0+ii)} offen offset:{pr*64}")

AQ, AK, AKM, AV, AVM = 32, 64, 96, 112, 144
A_ONE = 156
ASC = 160
APX, APA, APB = 180, 188, 196
def att_setup_regs(a):
    a(f"""
    v_and_b32 v1, 15, v0
    v_lshrrev_b32 v2, 4, v0
    v_lshlrev_b32 v4, 16, v2
    v_lshlrev_b32 v5, 4, v1
    v_add_u32 {vr(V_VD)}, v4, v5                  ; g*65536 + n*16
    v_bfe_u32 v4, v1, 2, 1
    v_lshlrev_b32 v4, 2, v4
    v_lshrrev_b32 v5, 3, v1
    v_lshlrev_b32 v5, 1, v5
    v_add_u32 v4, v4, v5
    v_and_b32 v5, 1, v1
    v_add_u32 v4, v4, v5
    v_lshlrev_b32 v4, 4, v4
    v_lshlrev_b32 v5, 7, v2
    v_add_u32 {vr(V_KMD)}, v4, v5
    v_mov_b32 {vr(V_NB)}, {fbits(-3.0e38):#x}
    v_lshlrev_b32 v4, 2, v2
    """)
    for r in range(4):
        a(f"""
        v_add_u32 v5, {r}, v4
        v_cmp_le_u32 {sr(S_MASK+2*r,2)}, v5, v1
        """)

def att_km_loads(so):
    l = [f"buffer_load_dwordx4 {vr(AKM+4*c,4)}, {vr(V_KMD)}, {sr(S_WS,4)}, {so} offen offset:{c*1024} sc1" for c in range(4)]
    l += [f"buffer_load_dword {vr(AVM+2*c+t)}, {vr(V_L4)}, {sr(S_WS,4)}, {so} offen offset:{c*1024+512+t*256} sc1" for c in range(4) for t in range(2)]
    return l

def xreduce(a, M, T, op):
    a(f"""
    v_mov_b32 {vr(T)}, {vr(M)}
    s_nop 1
    v_permlane32_swap_b32 {vr(T)}, {vr(M)}
    {op} {vr(M)}, {vr(M)}, {vr(T)}
    v_mov_b32 {vr(T)}, {vr(M)}
    s_nop 1
    v_permlane16_swap_b32 {vr(T)}, {vr(M)}
    {op} {vr(M)}, {vr(M)}, {vr(T)}
    """)

def att_task(a):
    sSM, sH, sQ, sK, sV, sKM, sO = [S_T0 + k for k in range(7)]
    a(f"""
    s_and_b32 {sr(sSM)}, {sr(S_NT)}, 7
    s_lshr_b32 {sr(sH)}, {sr(S_NT)}, 3
    s_lshl_b32 {sr(sH)}, {sr(sH)}, 2
    s_add_u32 {sr(sH)}, {sr(sH)}, {sr(S_W)}
    s_lshl_b32 s4, {sr(S_MT)}, 21
    s_lshl_b32 s5, {sr(sH)}, 16
    s_add_u32 s4, s4, s5
    s_lshl_b32 s5, {sr(sSM)}, 9
    s_add_u32 s4, s4, s5
    s_add_u32 {sr(sQ)}, s4, {OFF_QX}
    s_add_u32 {sr(sK)}, s4, {OFF_KX}
    s_add_u32 {sr(sO)}, s4, {OFF_OX}
    s_lshl_b32 s4, {sr(S_MT)}, 3
    s_add_u32 s4, s4, {sr(sSM)}                ; segment
    s_lshl_b32 s5, s4, 18
    s_lshl_b32 s6, {sr(sH)}, 11
    s_add_u32 s5, s5, s6
    s_add_u32 {sr(sV)}, s5, {OFF_VT}
    s_lshl_b32 s5, s4, 17
    s_lshl_b32 s6, {sr(sH)}, 12
    s_add_u32 s5, s5, s6
    s_add_u32 {sr(sKM)}, s5, {OFF_KM}
    """)
    for c in range(4):
        for t in range(2):
            a(f"buffer_load_dwordx4 {vr(AK+16*t+4*c,4)}, {vr(V_AD)}, {sr(S_WS,4)}, {sr(sK)} offen offset:{t*256} sc1")
            a(f"buffer_load_dwordx4 {vr(AQ+16*t+4*c,4)}, {vr(V_AD)}, {sr(S_WS,4)}, {sr(sQ)} offen offset:{t*256} sc1")
        if c < 3:
            a(f"s_add_u32 {sr(sK)}, {sr(sK)}, 16384")
            a(f"s_add_u32 {sr(sQ)}, {sr(sQ)}, 16384")
    for dt in range(8):
        a(f"buffer_load_dwordx4 {vr(AV+4*dt,4)}, {vr(V_VD)}, {sr(S_WS,4)}, {sr(sV)} offen offset:{dt*256} sc1")
    km = att_km_loads(sr(sKM))
    for ln in km: a(ln)
    a(f"v_mov_b32 {vr(AVM+8)}, 0")
    a(f"v_mov_b32 {vr(AVM+9)}, 0")
    for r in range(4): a(f"v_mov_b32 {vr(A_ONE+r)}, 0x3f803f80")
    for k in range(APA, APB + 8): a(f"v_mov_b32 {vr(k)}, 0")
    top = a.label("Latp"); ok = a.label("Lato")
    a(f"{top}:")
    a("s_waitcnt vmcnt(0)")
    t = 1
    regs = [AKM + k for k in range(16)] + [AVM + k for k in range(8)]
    a(f"v_max3_u32 {vr(t)}, {vr(regs[0])}, {vr(regs[1])}, {vr(regs[2])}")
    rr = regs[3:]
    while len(rr) >= 2:
        a(f"v_max3_u32 {vr(t)}, {vr(t)}, {vr(rr[0])}, {vr(rr[1])}"); rr = rr[2:]
    if rr: a(f"v_max_u32 {vr(t)}, {vr(t)}, {vr(rr[0])}")
    a(f"""
    v_cmp_eq_u32 vcc, -1, {vr(t)}
    s_cbranch_vccz {ok}
    s_sleep 16
    s_sub_u32 {sr(S_GBUD)}, {sr(S_GBUD)}, 1
    s_cbranch_scc1 L_abort
    """)
    for ln in km: a(ln)
    a(f"s_branch {top}")
    a(f"{ok}:")
    Dm = [ASC, ASC + 8]; D0 = [ASC + 4, ASC + 12]; D1 = ASC + 16
    def sc(d, kreg, qt, c):
        a(f"v_mfma_f32_16x16x32_bf16 {vr(d,4)}, {vr(kreg,4)}, {vr(AQ+16*qt+4*c,4)}, {'0' if c == 0 else vr(d,4)}")
    for c in range(4):
        sc(Dm[0], AKM+4*c, 0, c); sc(D0[0], AK+4*c, 0, c)
        sc(Dm[1], AKM+4*c, 1, c); sc(D0[1], AK+4*c, 1, c); sc(D1, AK+16+4*c, 1, c)
    a("s_nop 7")
    csc = fbits(128**-0.5 * 1.4426950408889634)
    a(f"s_mov_b32 s4, {csc:#x}")
    M, T = 2, 3
    for qt in range(2):
        dm = Dm[qt]; d0 = D0[qt]
        masked = d0 if qt == 0 else D1
        for r in range(4):
            a(f"v_cndmask_b32 {vr(masked+r)}, {vr(V_NB)}, {vr(masked+r)}, {sr(S_MASK+2*r,2)}")
        a(f"v_max3_f32 {vr(M)}, {vr(dm)}, {vr(dm+1)}, {vr(d0)}")
        a(f"v_max3_f32 {vr(M)}, {vr(M)}, {vr(d0+1)}, {vr(d0+2)}")
        a(f"v_max_f32 {vr(M)}, {vr(M)}, {vr(d0+3)}")
        if qt == 1:
            a(f"v_max3_f32 {vr(M)}, {vr(M)}, {vr(D1)}, {vr(D1+1)}")
            a(f"v_max3_f32 {vr(M)}, {vr(M)}, {vr(D1+2)}, {vr(D1+3)}")
        xreduce(a, M, T, "v_max_f32")
        a(f"v_mul_f32 {vr(M)}, s4, {vr(M)}")
        vals = [dm, dm+1] + [d0+r for r in range(4)] + ([D1+r for r in range(4)] if qt == 1 else [])
        for v in vals: a(f"v_fma_f32 {vr(v)}, {vr(v)}, s4, -{vr(M)}")
        for v in vals: a(f"v_exp_f32 {vr(v)}, {vr(v)}")
        px = APX + 4*qt
        a(f"v_cvt_pk_bf16_f32 {vr(APA+4*qt)}, {vr(dm)}, {vr(dm+1)}")
        a(f"v_cvt_pk_bf16_f32 {vr(px)}, {vr(d0)}, {vr(d0+1)}")
        a(f"v_cvt_pk_bf16_f32 {vr(px+1)}, {vr(d0+2)}, {vr(d0+3)}")
        if qt == 1:
            a(f"v_cvt_pk_bf16_f32 {vr(px+2)}, {vr(D1)}, {vr(D1+1)}")
            a(f"v_cvt_pk_bf16_f32 {vr(px+3)}, {vr(D1+2)}, {vr(D1+3)}")
        else:
            a(f"v_mov_b32 {vr(px+2)}, 0")
            a(f"v_mov_b32 {vr(px+3)}, 0")
        a(f"v_mov_b32 {vr(APB+4*qt+1)}, {vr(APA+4*qt)}")
    a("s_nop 1")
    for qt in range(2):
        a(f"v_mfma_f32_16x16x32_bf16 {ar(64+4*qt,4)}, {vr(A_ONE,4)}, {vr(APX+4*qt,4)}, 0")
        for dt in range(8):
            a(f"v_mfma_f32_16x16x32_bf16 {ar(32*qt+4*dt,4)}, {vr(AV+4*dt,4)}, {vr(APX+4*qt,4)}, 0")
    for qt in range(2):
        a(f"v_mfma_f32_16x16x32_bf16 {ar(64+4*qt,4)}, {vr(A_ONE,4)}, {vr(APA+4*qt,4)}, {ar(64+4*qt,4)}")
        for dt in range(8):
            pm = (APA if dt % 2 == 0 else APB) + 4*qt
            a(f"v_mfma_f32_16x16x32_bf16 {ar(32*qt+4*dt,4)}, {vr(AVM+(dt & ~1),4)}, {vr(pm,4)}, {ar(32*qt+4*dt,4)}")
    a("s_nop 7")
    for qt in range(2):
        L = 2 + qt
        a(f"v_accvgpr_read_b32 {vr(L)}, {ar(64+4*qt)}")
        a("s_nop 0")
        a(f"v_rcp_f32 {vr(L)}, {vr(L)}")
    n = 0
    for qt in range(2):
        L = 2 + qt
        for c in range(4):
            b = 32 + 12*(n % 4); n += 1
            for k in range(8): a(f"v_accvgpr_read_b32 {vr(b+k)}, {ar(32*qt+8*c+k)}")
            for k in range(8): a(f"v_mul_f32 {vr(b+k)}, {vr(b+k)}, {vr(L)}")
            for k in range(4): a(f"v_cvt_pk_bf16_f32 {vr(b+8+k)}, {vr(b+2*k)}, {vr(b+2*k+1)}")
            a(f"s_add_u32 s5, {sr(sO)}, {c*16384}")
            a(f"buffer_store_dwordx4 {vr(b+8,4)}, {vr(V_AD)}, {sr(S_WS,4)}, s5 offen offset:{qt*256} sc1")

def ln_task(a, s_rank):
    load_srd(a, S_B, KA_X, 4*MB)
    F = 64
    a(f"""
    v_and_b32 v1, 15, v0
    v_lshrrev_b32 v2, 4, v0
    v_lshlrev_b32 v4, 11, v1
    v_lshlrev_b32 v5, 3, v2
    v_add_u32 v4, v4, v5
    s_lshl_b32 s4, {sr(s_rank)}, 15
    s_lshl_b32 s5, {sr(S_W)}, 9
    s_add_u32 s4, s4, s5
    s_waitcnt lgkmcnt(0)
    """)
    for p in range(8):
        a(f"buffer_load_dwordx2 {vr(32+4*p,2)}, v4, {sr(S_B,4)}, s4 offen offset:{p*64}")
        a(f"buffer_load_dwordx2 {vr(32+4*p+2,2)}, v4, {sr(S_B,4)}, s4 offen offset:{p*64+32}")
    a(f"""
    s_lshl_b32 s5, {sr(S_W)}, 6
    v_lshlrev_b32 v5, 2, v1
    v_add_u32 v6, s5, v5
    v_add_u32 v6, {LSC}, v6
    v_add_u32 v7, {LSC}, v5
    s_waitcnt vmcnt(0)
    """)
    for d in range(32):
        a(f"v_lshlrev_b32 {vr(F+2*d)}, 16, {vr(32+d)}")
        a(f"v_and_b32 {vr(F+2*d+1)}, 0xffff0000, {vr(32+d)}")
    def total(src, region):
        for k in range(16): a(f"v_pk_add_f32 {vr(128+2*k,2)}, {vr(src+4*k,2)}, {vr(src+4*k+2,2)}")
        n = 16
        while n > 1:
            n //= 2
            for k in range(n): a(f"v_pk_add_f32 {vr(128+2*k,2)}, {vr(128+2*k,2)}, {vr(128+2*(k+n),2)}")
        a("v_add_f32 v2, v128, v129")
        xreduce(a, 2, 3, "v_add_f32")
        a(f"""
        ds_write_b32 v6, v2 offset:{region}
        s_waitcnt lgkmcnt(0)
        s_barrier
        ds_read_b32 v128, v7 offset:{region}
        ds_read_b32 v129, v7 offset:{region+64}
        ds_read_b32 v130, v7 offset:{region+128}
        ds_read_b32 v131, v7 offset:{region+192}
        s_waitcnt lgkmcnt(0)
        v_add_f32 v128, v128, v129
        v_add_f32 v130, v130, v131
        v_add_f32 v2, v128, v130
        v_mul_f32 v2, {fbits(1/1024):#x}, v2
        """)
    total(F, 0)
    a("v_mov_b32 v5, v2")
    D = 160
    for k in range(64): a(f"v_sub_f32 {vr(D+k)}, {vr(F+k)}, v5")
    for k in range(0, 64, 2): a(f"v_pk_mul_f32 {vr(D+k,2)}, {vr(D+k,2)}, {vr(D+k,2)}")
    total(D, 256)
    a(f"""
    v_cvt_pk_bf16_f32 v5, v5, v5
    v_cvt_pk_bf16_f32 v2, v2, v2
    v_lshlrev_b32 v5, 16, v5
    v_lshlrev_b32 v2, 16, v2
    v_add_f32 v2, {fbits(1e-5):#x}, v2
    v_cvt_pk_bf16_f32 v2, v2, v2
    v_lshlrev_b32 v2, 16, v2
    v_sqrt_f32 v2, v2
    s_nop 0
    v_cvt_pk_bf16_f32 v2, v2, v2
    v_lshlrev_b32 v2, 16, v2
    v_rcp_f32 v2, v2
    """)
    for k in range(64): a(f"v_sub_f32 {vr(F+k)}, {vr(F+k)}, v5")
    for d in range(32): a(f"v_cvt_pk_bf16_f32 {vr(32+d)}, {vr(F+2*d)}, {vr(F+2*d+1)}")
    for d in range(32):
        a(f"v_lshlrev_b32 {vr(F+2*d)}, 16, {vr(32+d)}")
        a(f"v_and_b32 {vr(F+2*d+1)}, 0xffff0000, {vr(32+d)}")
    for k in range(64): a(f"v_mul_f32 {vr(F+k)}, {vr(F+k)}, v2")
    for d in range(32): a(f"v_cvt_pk_bf16_f32 {vr(32+d)}, {vr(F+2*d)}, {vr(F+2*d+1)}")
    a(f"""
    s_lshr_b32 s4, {sr(s_rank)}, 4
    s_lshl_b32 s4, s4, 19
    s_and_b32 s5, {sr(s_rank)}, 15
    s_lshl_b32 s5, s5, 8
    s_add_u32 s4, s4, s5
    s_lshl_b32 s5, {sr(S_W)}, 17
    s_add_u32 s4, s4, s5
    s_add_u32 s4, s4, {OFF_XN}
    """)
    for p in range(8):
        a(f"buffer_store_dwordx4 {vr(32+4*p,4)}, {vr(V_AD)}, {sr(S_WS,4)}, s4 offen sc1")
        if p < 7: a("s_add_u32 s4, s4, 16384")

def wait_counter(a, s_idx, target):
    top = a.label("Lwc"); ok = a.label("Lwco")
    a(f"""
    s_nop 0
    v_readlane_b32 s4, {vr(V_SNAP)}, {sr(s_idx)}
    s_cmp_ge_u32 s4, {target}
    s_cbranch_scc1 {ok}
    {top}:
    buffer_load_dword {vr(V_SNAP)}, {vr(V_L4)}, {sr(S_DBG,4)}, 0 offen sc1
    s_waitcnt vmcnt(0)
    v_readlane_b32 s4, {vr(V_SNAP)}, {sr(s_idx)}
    s_cmp_ge_u32 s4, {target}
    s_cbranch_scc1 {ok}
    s_sleep 8
    s_sub_u32 {sr(S_GBUD)}, {sr(S_GBUD)}, 1
    s_cbranch_scc0 {top}
    s_branch L_abort
    {ok}:
    """)

def wait_c(a, base, target, add_mt=True):
    if add_mt: a(f"s_add_u32 s5, {sr(S_MT)}, {base}")
    else: a(f"s_mov_b32 s5, {base}")
    wait_counter(a, 5, target)

def issue_ticket(a):
    lab = a.label("Ltk")
    a(f"""
    buffer_load_dword {vr(V_SNAPN)}, {vr(V_L4)}, {sr(S_DBG,4)}, 0 offen sc1
    s_cmp_lg_u32 {sr(S_W)}, 0
    s_cbranch_scc1 {lab}
    s_lshl_b32 s4, {sr(S_J)}, 2
    s_add_u32 s4, s4, {C_Q0*4}
    v_mov_b32 v1, s4
    v_mov_b32 {vr(V_TK)}, 1
    v_cmp_eq_u32 vcc, 0, v0
    s_and_saveexec_b64 s[6:7], vcc
    buffer_atomic_add {vr(V_TK)}, v1, {sr(S_DBG,4)}, 0 offen sc0 sc1
    s_mov_b64 exec, s[6:7]
    {lab}:
    """)

def finish_task(a):
    lab = a.label("Lft"); lab2 = a.label("Lft")
    a(f"""
    s_waitcnt vmcnt(0)
    v_max_u32 {vr(V_SNAP)}, {vr(V_SNAP)}, {vr(V_SNAPN)}
    s_cmp_lg_u32 {sr(S_W)}, 0
    s_cbranch_scc1 {lab}
    v_readfirstlane_b32 s4, {vr(V_TK)}
    v_mov_b32 v1, {sr(S_MB)}
    s_nop 1
    v_mov_b32 v2, s4
    ds_write_b32 v1, v2
    {lab}:
    s_waitcnt lgkmcnt(0)
    s_barrier
    v_mov_b32 v1, {sr(S_MB)}
    ds_read_b32 v2, v1
    s_cmp_lg_u32 {sr(S_W)}, 0
    s_cbranch_scc1 {lab2}
    v_mov_b32 v3, {sr(S_DONE)}
    v_mov_b32 v4, 1
    v_cmp_eq_u32 vcc, 0, v0
    s_and_saveexec_b64 s[6:7], vcc
    buffer_atomic_add v4, v3, {sr(S_DBG,4)}, 0 offen sc1
    s_mov_b64 exec, s[6:7]
    {lab2}:
    s_xor_b32 {sr(S_MB)}, {sr(S_MB)}, 4
    s_waitcnt lgkmcnt(0)
    v_readfirstlane_b32 {sr(S_TK)}, v2
    """)

N_KV, N_Q, N_GU, N_DN = 64, 32, 56, 64
T_Q = N_KV; T_GU = T_Q + N_Q; T_DN = T_GU + N_GU; T_P2 = T_DN + N_DN
T_END = T_P2 + 8*16 + 8*8

def g_setup(a):
    a(f"v_lshlrev_b32 {vr(V_L4)}, 2, v0")
    e1_setup_regs(a)
    att_setup_regs(a)
    a(f"""
    s_mov_b32 {sr(S_GBUD)}, {CFG.get('budget', 400000)}
    s_mov_b32 {sr(S_MB)}, {LMB}
    v_mov_b32 {vr(V_SNAP)}, 0
    """)

def g_loop(a):
    only = CFG.get('only')
    a("L_task:")
    a(f"""
    s_cmp_ge_u32 {sr(S_TK)}, {T_END}
    s_cbranch_scc1 L_exit
    """)
    issue_ticket(a)
    a(f"""
    s_cmp_lt_u32 {sr(S_TK)}, {T_Q}
    s_cbranch_scc1 L_tKV
    s_cmp_lt_u32 {sr(S_TK)}, {T_GU}
    s_cbranch_scc1 L_tQ
    s_cmp_lt_u32 {sr(S_TK)}, {T_DN}
    s_cbranch_scc1 L_tGU
    s_cmp_lt_u32 {sr(S_TK)}, {T_P2}
    s_cbranch_scc1 L_tDN
    """)
    a(f"""
    s_sub_u32 s4, {sr(S_TK)}, {T_P2}
    s_cmp_ge_u32 s4, 16
    s_cselect_b32 s5, 8, 0
    s_add_u32 s4, s4, s5
    s_cmp_ge_u32 s4, {8*24}
    s_cselect_b32 s5, 16, 0
    s_add_u32 s4, s4, s5
    s_mul_i32 s5, s4, 2731
    s_lshr_b32 s5, s5, 16              ; k = u / 24
    s_mul_i32 s6, s5, 24
    s_sub_u32 s4, s4, s6               ; r = u % 24
    s_cmp_ge_u32 s4, 16
    s_cbranch_scc1 L_tWO
    s_branch L_tAT
    """)
    done = lambda base: a(f"s_add_u32 s4, {sr(S_MT)}, {base}\ns_lshl_b32 {sr(S_DONE)}, s4, 2")
    a("L_tKV:")
    a(f"""
    s_lshr_b32 {sr(S_MT)}, {sr(S_TK)}, 3
    s_and_b32 s4, {sr(S_TK)}, 3
    s_lshl_b32 {sr(S_NT)}, {sr(S_J)}, 2
    s_add_u32 {sr(S_NT)}, {sr(S_NT)}, s4
    """)
    done(C_KV)
    a(f"""
    s_bitcmp1_b32 {sr(S_TK)}, 2
    s_cbranch_scc1 L_tV
    """)
    load_srd(a, S_B, KA_WK, 8*MB)
    a(f"s_mov_b32 {sr(S_COFF)}, {OFF_KX}")
    a("s_branch L_tKQ")
    a("L_tQ:")
    a(f"""
    s_sub_u32 s4, {sr(S_TK)}, {T_Q}
    s_lshr_b32 {sr(S_MT)}, s4, 2
    s_and_b32 s4, s4, 3
    s_lshl_b32 {sr(S_NT)}, {sr(S_J)}, 2
    s_add_u32 {sr(S_NT)}, {sr(S_NT)}, s4
    """)
    done(C_QX)
    load_srd(a, S_B, KA_WQ, 8*MB)
    a(f"s_mov_b32 {sr(S_COFF)}, {OFF_QX}")
    a("L_tKQ:")
    def bq():
        a(f"""
        s_lshl_b32 {sr(S_BOFF)}, {sr(S_NT)}, 9
        s_and_b32 s4, {sr(S_W)}, 1
        s_lshl_b32 s4, s4, 8
        s_add_u32 {sr(S_BOFF)}, {sr(S_BOFF)}, s4
        """)
    bq()
    a(f"""
    s_lshl_b32 s4, {sr(S_MT)}, 21
    s_lshl_b32 s5, {sr(S_NT)}, 17
    s_add_u32 s4, s4, s5
    s_add_u32 {sr(S_COFF)}, {sr(S_COFF)}, s4
    """)
    e1_task_common(a, 8192, V_BQ)
    wait_c(a, C_LN, 16)
    a("s_waitcnt lgkmcnt(0)")
    a("L_e1n:")
    e1_main(a, False)
    a(f"""
    s_cmp_ge_u32 {sr(S_TK)}, {T_GU}
    s_cbranch_scc1 L_epGU
    """)
    ep_chunks(a)
    a("s_branch L_next")
    a("L_epGU:")
    ep_gu(a)
    a("s_branch L_next")
    a("L_tGU:")
    a(f"""
    s_sub_u32 s4, {sr(S_TK)}, {T_GU}
    s_mul_i32 s5, s4, 9363
    s_lshr_b32 {sr(S_MT)}, s5, 16         ; /7
    s_mul_i32 s5, {sr(S_MT)}, 7
    s_sub_u32 s4, s4, s5
    s_mul_i32 {sr(S_NT)}, {sr(S_J)}, 7
    s_add_u32 {sr(S_NT)}, {sr(S_NT)}, s4
    """)
    done(C_GU)
    a(f"""
    s_load_dwordx2 {sr(S_B,2)}, s[0:1], {KA_WG}
    s_load_dwordx2 s[6:7], s[0:1], {KA_WU}
    s_mov_b32 {sr(S_B+2)}, {1024*7168}
    s_mov_b32 {sr(S_B+3)}, 0x20000
    s_lshl_b32 {sr(S_BOFF)}, {sr(S_NT)}, 8
    s_mul_i32 s4, {sr(S_MT)}, {448*4096}
    s_lshl_b32 s5, {sr(S_NT)}, 16
    s_add_u32 s4, s4, s5
    s_add_u32 {sr(S_COFF)}, s4, {OFF_H}
    s_waitcnt lgkmcnt(0)
    s_bitcmp1_b32 {sr(S_W)}, 0
    s_cselect_b32 {sr(S_B)}, s6, {sr(S_B)}
    s_cselect_b32 {sr(S_B+1)}, s7, {sr(S_B+1)}
    """)
    e1_task_common(a, 7168, V_BG)
    wait_c(a, C_LN, 16)
    a("s_branch L_e1n")
    a("L_tV:")
    load_srd(a, S_B, KA_WV, 8*MB)
    bq()
    a(f"""
    s_lshl_b32 s4, {sr(S_MT)}, 21
    s_lshl_b32 s5, {sr(S_NT)}, 12
    s_add_u32 s4, s4, s5
    s_add_u32 {sr(S_COFF)}, s4, {OFF_VT}
    """)
    e1_task_common(a, 8192, V_BQ)
    wait_c(a, C_LN, 16)
    a("s_waitcnt lgkmcnt(0)")
    e1_main(a, True)
    ep_vt(a)
    a("s_branch L_next")
    def e2_ids(src):
        a(f"""
        s_and_b32 s5, {src}, 3
        s_lshl_b32 s6, {sr(S_J)}, 2
        s_add_u32 s5, s5, s6
        s_bfe_u32 s6, {src}, 0x10002
        s_lshl_b32 s6, s6, 4
        s_add_u32 {sr(S_NT)}, s5, s6
        """)
    a("L_tDN:")
    a(f"""
    s_sub_u32 s4, {sr(S_TK)}, {T_DN}
    s_lshr_b32 {sr(S_MT)}, s4, 3
    """)
    e2_ids("s4")
    done(C_DN)
    load_srd(a, S_B, KA_WD, 3584*2048)
    e2_task_common(a, OFF_H, 448)
    wait_c(a, C_GU, 28)
    a("s_waitcnt lgkmcnt(0)")
    e2_main(a, 28, None)
    e2_reduce(a)
    ep_down(a)
    a("s_branch L_next")
    a("L_tAT:")
    a(f"""
    s_mov_b32 {sr(S_MT)}, s5
    s_and_b32 s6, s4, 7
    s_lshr_b32 s4, s4, 3
    s_lshl_b32 s5, {sr(S_J)}, 1
    s_add_u32 s4, s4, s5
    s_lshl_b32 s4, s4, 3
    s_add_u32 {sr(S_NT)}, s4, s6
    """)
    done(C_AT)
    wait_c(a, C_RBAR, 128, add_mt=False)
    wait_c(a, C_KV, 32)
    wait_c(a, C_QX, 16)
    att_task(a)
    a("s_branch L_next")
    a("L_tWO:")
    a(f"""
    s_sub_u32 {sr(S_MT)}, s5, 1
    s_sub_u32 s4, s4, 16
    """)
    e2_ids("s4")
    a(f"s_mov_b32 {sr(S_DONE)}, {(C_Q0+4)*4}")
    load_srd(a, S_B, KA_WO, 8*MB)
    load_srd(a, S_OUT, KA_X, 4*MB)
    e2_task_common(a, OFF_OX, 512)
    a(f"""
    s_lshl_b32 s4, {sr(S_MT)}, 8
    s_lshr_b32 s5, {sr(S_NT)}, 4
    s_lshl_b32 s5, s5, 7
    s_add_u32 s4, s4, s5
    s_lshl_b32 s5, {sr(S_W)}, 5
    s_add_u32 s4, s4, s5
    s_lshl_b32 s4, s4, 11
    s_and_b32 s5, {sr(S_NT)}, 15
    s_lshl_b32 s5, s5, 7
    s_add_u32 {sr(S_T0)}, s4, s5
    s_add_u32 {sr(S_T0+1)}, {sr(S_T0)}, {16*2048}
    """)
    wait_c(a, C_DN, 32)
    wait_c(a, C_AT, 64)
    a("s_waitcnt lgkmcnt(0)")
    e2_main(a, 32, lambda: wo_loads(a))
    e2_reduce(a)
    ep_wo(a)
    a("L_next:")
    finish_task(a)
    a("s_branch L_task")
```

```python
MB = 1 << 20
OFF_XN = 0
OFF_KX = 4 * MB
OFF_VT = 20 * MB
OFF_QX = 36 * MB
OFF_H  = 52 * MB
OFF_OX = 68 * MB
OFF_KM = 84 * MB
OFF_RA = 92 * MB
OFF_RB = 92 * MB + 512 * 1024
OFF_RO = 93 * MB
OFF_RC = 94 * MB
OFF_DBG = 95 * MB
OFF_MEMDBG = 96 * MB
OFF_GS = 100 * MB

KA_X, KA_MEM0, KA_WQ, KA_WK, KA_WV, KA_WO = 0, 8, 16, 24, 32, 40
KA_WG, KA_WU, KA_WD, KA_OUT, KA_DBG, KA_WS = 64, 72, 80, 88, 96, 104
WS_BYTES = 268435456

C_XCC = 0
C_RBAR = 8
C_Q0 = 9
C_LN, C_KV, C_QX, C_GU, C_DN, C_AT = 16, 24, 32, 40, 48, 56
```

```python
from asmlib import *
from layout import *
import struct

def fbits(x):
    return struct.unpack("<I", struct.pack("<f", x))[0]

V_ALD, V_L16, V_AST, V_BST, V_OST, V_OLD, V_CST, V_CLD, V_PW, V_KXD, V_VTD, V_IDX, V_SEL = range(8, 21)
V_SEL2, V_VMX, V_EXP = 21, 22, 23
V_NEG = 24
V_T = 28
V_R1, V_R2, V_R3, V_EXPK, V_EXPV, V_EXPM = 30, 31, 32, 33, 34, 35
V_ID = 36
DT = 40
D2 = 64
CF = 68
V_EXR = 72
V_W = 76
AF = 96
PR = 112
OF = 128
KXF = 160
XF = 192
PA0 = 208
PA1 = 212
ONES = 216
PB = 220
A_WO = 192
S_W = 3
S_WS = 8
S_T = 12
S_G, S_M, S_H, S_STEP, S_BUD = 16, 17, 18, 19, 20
S_A, S_B, S_O, S_C = 21, 22, 23, 24
S_PAR = 26
S_CRE, S_ORE, S_EXP, S_KXD, S_VTD, S_LRD, S_LWR, S_CSC = 28, 29, 30, 31, 32, 33, 34, 35
S_C4 = 36
S_TMP = 37
S_PROF = 40
S_AB, S_BB, S_OB, S_Q, S_KXB, S_VTB = 72, 73, 74, 75, 76, 77
S_ARE, S_BRE = 78, 79
S_ACC = 80
LA, LO, LV, LEXP, LKX = 0, 16384, 24576, 25600, 26624
KXSLOT = 10240
LVP = LKX + 2*KXSLOT
CSLOT = 131072

CFG = dict(local_sc1=False, prof=False, dbg_mem=False, nsteps=64)

def st_local():
    return " sc1" if CFG['local_sc1'] else ""

def stamp(a, i):
    if CFG['prof']:
        a(f"s_memtime {sr(S_PROF + 2*i, 2)}")

def check(a, regs, retry):
    t = V_T
    rr = list(regs)
    if len(rr) >= 3:
        a(f"v_max3_u32 {vr(t)}, {vr(rr[0])}, {vr(rr[1])}, {vr(rr[2])}")
        rr = rr[3:]
    else:
        a(f"v_max_u32 {vr(t)}, {vr(rr[0])}, {vr(rr[1])}")
        rr = rr[2:]
    while len(rr) >= 2:
        a(f"v_max3_u32 {vr(t)}, {vr(t)}, {vr(rr[0])}, {vr(rr[1])}"); rr = rr[2:]
    if rr:
        a(f"v_max_u32 {vr(t)}, {vr(t)}, {vr(rr[0])}")
    a(f"v_cmp_eq_u32 vcc, -1, {vr(t)}")
    a(f"s_cbranch_vccnz {retry}")

def retry_code(a, name, retry, loads, back):
    cnt = ""
    if CFG.get('proto'):
        ci = 68 + "ABOC".index(name)
        cnt = f"s_add_u32 s{ci}, s{ci}, 1"
    rd = CFG.get('rdelay' + name, 0)
    sl = f"s_sleep {rd}\n" if rd else ""
    lds = "\n".join(loads)
    a.cold.append(f"""{retry}:
    {cnt}
    s_sub_u32 {sr(S_BUD)}, {sr(S_BUD)}, 1
    s_cbranch_scc1 L_R_abort
    {sl}{lds}
    s_branch {back}""")

def poll_issue(a, name, loads):
    d = CFG.get('delay' + name, 0)
    if d: a(f"s_sleep {d}")
    for ln in loads: a(ln)

def poll_wait(a, name, loads, regs):
    top = a.label("Lp" + name); retry = a.label("Lr" + name)
    a(f"{top}:")
    a("s_waitcnt vmcnt(0)")
    check(a, regs, retry)
    retry_code(a, name, retry, loads, top)

def calib(a, dst):
    lab = a.label("Lcal")
    a(f"""
    s_memrealtime s[88:89]
    s_waitcnt lgkmcnt(0)
    s_mov_b32 s92, 200
    {lab}:
    s_memrealtime s[90:91]
    s_waitcnt lgkmcnt(0)
    s_sub_u32 s92, s92, 1
    s_cbranch_scc1 {lab}_x
    s_cmp_eq_u32 s90, s88
    s_cbranch_scc1 {lab}
    {lab}_x:
    s_memtime s[88:89]
    s_waitcnt lgkmcnt(0)
    s_mov_b32 s{dst}, s90
    s_mov_b32 s{dst+1}, s88
    """)

def halves_sum(a, d, o0, o1):
    a(f"""
    v_permlane32_swap_b32 {vr(d)}, {vr(d+2)}
    v_permlane32_swap_b32 {vr(d+1)}, {vr(d+3)}
    v_add_f32 {vr(o0)}, {vr(d)}, {vr(d+2)}
    v_add_f32 {vr(o1)}, {vr(d+1)}, {vr(d+3)}
    """)

def pack_pairs(a, o0, o1, out, tmp):
    a(f"""
    v_cvt_pk_bf16_f32 {vr(out)}, {vr(o0)}, {vr(o1)}
    s_nop 1
    v_mov_b32_dpp {vr(tmp)}, {vr(out)} quad_perm:[1,0,3,2] row_mask:0xf bank_mask:0xf
    v_perm_b32 {vr(out)}, {vr(out)}, {vr(tmp)}, {vr(V_SEL)}
    """)

def oob_hi(dst, src):
    return f"""v_mov_b32 v5, 0x80000000
    v_cmp_gt_u32 vcc, 32, v0
    s_nop 1
    v_cndmask_b32 {vr(dst)}, v5, {vr(src)}, vcc"""

def setup(a):
    a(f"""
    s_lshr_b32 s4, {sr(S_M)}, 2
    s_lshl_b32 {sr(S_H)}, {sr(S_G)}, 2
    s_add_u32 {sr(S_H)}, {sr(S_H)}, s4          ; head
    s_and_b32 {sr(S_C4)}, {sr(S_M)}, 3
    s_and_b32 {sr(S_Q)}, {sr(S_G)}, 1
    v_and_b32 v1, 15, v0                        ; n / j
    v_lshrrev_b32 v2, 4, v0                     ; g
    v_lshlrev_b32 {vr(V_L16)}, 4, v0
    s_lshl_b32 s4, {sr(S_W)}, 12
    v_add_u32 {vr(V_ALD)}, s4, {vr(V_L16)}
    s_lshl_b32 s4, {sr(S_W)}, 11
    v_add_u32 {vr(V_OLD)}, s4, {vr(V_L16)}
    s_lshl_b32 s4, {sr(S_W)}, 10
    v_add_u32 {vr(V_PW)}, s4, {vr(V_L16)}
    v_lshlrev_b32 v3, 2, v2
    v_and_b32 v4, 1, v1
    v_lshlrev_b32 v4, 1, v4
    v_add_u32 v3, v3, v4
    v_lshrrev_b32 v4, 3, v1
    v_add_u32 v6, v3, v4
    v_lshlrev_b32 v4, 4, v6
    v_bfe_u32 v5, v1, 1, 2
    v_lshlrev_b32 v5, 2, v5
    v_add_u32 v4, v4, v5
    s_lshl_b32 s4, {sr(S_M)}, 10
    s_lshl_b32 s5, {sr(S_Q)}, 9
    s_add_u32 s4, s4, s5
    s_lshl_b32 s5, {sr(S_W)}, 7
    s_add_u32 s4, s4, s5
    v_add_u32 v4, s4, v4
    {oob_hi(V_AST, 4)}
    v_and_b32 v3, 1, v2
    v_lshlrev_b32 v3, 2, v3
    v_lshrrev_b32 v4, 1, v2
    v_lshlrev_b32 v4, 1, v4
    v_add_u32 v3, v3, v4
    v_and_b32 v4, 1, v1
    v_add_u32 v3, v3, v4                        ; row
    v_lshrrev_b32 v4, 2, v1
    v_lshlrev_b32 v4, 8, v4
    v_lshlrev_b32 v5, 4, v3
    v_add_u32 v4, v4, v5
    v_bfe_u32 v5, v1, 1, 1
    v_lshlrev_b32 v5, 2, v5
    v_add_u32 v4, v4, v5                        ; (n>>2)*256 + row*16 + ((n>>1)&1)*4
    s_lshl_b32 s4, {sr(S_C4)}, 10
    s_lshr_b32 s5, {sr(S_W)}, 1
    s_xor_b32 s5, s5, 1
    s_lshl_b32 s5, s5, 7
    s_add_u32 s4, s4, s5
    s_and_b32 s5, {sr(S_W)}, 1
    s_lshl_b32 s5, s5, 3
    s_add_u32 s4, s4, s5
    v_add_u32 {vr(V_BST)}, s4, v4
    v_lshrrev_b32 v4, 2, v1
    v_lshlrev_b32 v4, 7, v4
    v_lshlrev_b32 v5, 4, v3
    v_add_u32 v4, v4, v5
    v_bfe_u32 v5, v1, 1, 1
    v_lshlrev_b32 v5, 2, v5
    v_add_u32 v4, v4, v5
    s_and_b32 s5, {sr(S_W)}, 1
    s_lshl_b32 s4, s5, 3
    v_add_u32 v4, s4, v4
    v_lshlrev_b32 v5, 2, v0
    s_lshl_b32 s4, s5, 8
    v_add_u32 v5, s4, v5
    v_add_u32 {vr(V_EXPK)}, {LEXP}, v4
    v_add_u32 {vr(V_EXPV)}, {LEXP + 512}, v5
    s_lshl_b32 s4, {sr(S_H)}, 12
    s_lshl_b32 s5, {sr(S_C4)}, 10
    s_add_u32 s4, s4, s5
    s_add_u32 s4, s4, {OFF_KM}
    v_add_u32 {vr(V_EXPM)}, s4, {vr(V_L16)}
    v_mov_b32 {vr(V_NEG)}, -1
    v_mov_b32 {vr(V_NEG+1)}, -1
    v_mov_b32 {vr(V_NEG+2)}, -1
    v_mov_b32 {vr(V_NEG+3)}, -1
    s_lshl_b32 s4, {sr(S_M)}, 10
    s_lshl_b32 s5, {sr(S_Q)}, 9
    s_add_u32 s4, s4, s5
    v_add_u32 v4, s4, {vr(V_L16)}
    {oob_hi(7, 4)}
    v_lshrrev_b32 v4, 3, v0
    v_lshlrev_b32 v4, 10, v4
    v_and_b32 v5, 7, v0
    v_lshlrev_b32 v5, 4, v5
    v_add_u32 v4, v4, v5
    s_lshl_b32 s4, {sr(S_M)}, 13
    s_lshl_b32 s5, {sr(S_G)}, 7
    s_add_u32 s4, s4, s5
    v_add_u32 v4, s4, v4
    s_cmp_eq_u32 {sr(S_W)}, 0
    s_cselect_b64 vcc, -1, 0
    v_cndmask_b32 {vr(V_R1)}, v4, v7, vcc
    s_lshl_b32 s4, {sr(S_C4)}, 10
    v_add_u32 {vr(V_R2)}, s4, {vr(V_L16)}
    s_lshr_b32 s4, {sr(S_M)}, 2
    s_lshl_b32 s4, s4, 1
    s_lshr_b32 s5, {sr(S_C4)}, 1
    s_add_u32 s4, s4, s5
    s_lshl_b32 s4, s4, 10
    s_and_b32 s5, {sr(S_C4)}, 1
    s_lshl_b32 s5, s5, 7
    s_add_u32 s4, s4, s5
    v_lshrrev_b32 v4, 3, v0
    v_lshlrev_b32 v4, 8, v4
    v_and_b32 v5, 7, v0
    v_lshlrev_b32 v5, 4, v5
    v_add_u32 v4, v4, v5
    v_add_u32 v4, s4, v4
    {oob_hi(V_R3, 4)}
    s_lshr_b32 s4, {sr(S_M)}, 2
    s_lshl_b32 s4, s4, 1
    s_lshr_b32 s5, {sr(S_C4)}, 1
    s_add_u32 s4, s4, s5
    s_lshl_b32 s4, s4, 10
    s_and_b32 s5, {sr(S_C4)}, 1
    s_lshl_b32 s5, s5, 7
    s_add_u32 s4, s4, s5
    s_and_b32 s5, {sr(S_W)}, 1
    s_lshl_b32 s5, s5, 3
    s_add_u32 s4, s4, s5
    v_lshlrev_b32 v4, 8, v2
    v_lshlrev_b32 v5, 4, v1
    v_add_u32 v4, v4, v5
    v_add_u32 v4, s4, v4
    v_mov_b32 v5, 0x80000000
    v_cmp_gt_u32 vcc, 8, v1
    s_nop 1
    v_cndmask_b32 {vr(V_OST)}, v5, v4, vcc
    v_lshrrev_b32 v4, 3, v1
    v_lshlrev_b32 v4, 10, v4
    v_and_b32 v5, 7, v1
    v_lshlrev_b32 v5, 4, v5
    v_add_u32 v4, v4, v5
    v_lshlrev_b32 v5, 3, v2
    v_add_u32 v4, v4, v5
    s_lshl_b32 s4, {sr(S_M)}, 13
    s_lshl_b32 s5, {sr(S_W)}, 11
    s_add_u32 s4, s4, s5
    s_lshl_b32 s5, {sr(S_G)}, 7
    s_add_u32 s4, s4, s5
    v_add_u32 v4, s4, v4
    {oob_hi(V_CST, 4)}
    s_lshl_b32 s4, {sr(S_M)}, 13
    s_lshl_b32 s5, {sr(S_Q)}, 12
    s_add_u32 s4, s4, s5
    s_lshl_b32 s5, {sr(S_W)}, 10
    s_add_u32 s4, s4, s5
    v_add_u32 {vr(V_CLD)}, s4, {vr(V_L16)}
    v_lshlrev_b32 v4, 12, v2
    v_lshlrev_b32 v5, 4, v1
    v_add_u32 {vr(V_KXD)}, v4, v5
    v_lshlrev_b32 v4, 16, v2
    v_add_u32 {vr(V_VTD)}, v4, v5
    v_mov_b32 v4, 0x44444444
    v_mov_b32 v5, 0xeeeeeeee
    v_cmp_gt_u32 vcc, 8, v1
    s_nop 1
    v_cndmask_b32 {vr(V_IDX)}, v5, v4, vcc
    v_and_b32 v4, 1, v1
    v_cmp_eq_u32 vcc, 0, v4
    v_mov_b32 v4, 0x01000504
    v_mov_b32 v5, 0x07060302
    v_cndmask_b32 {vr(V_SEL)}, v5, v4, vcc
    v_mov_b32 v4, 0x01000504
    v_mov_b32 v5, 0x05040100
    v_cndmask_b32 v4, v5, v4, vcc
    v_lshrrev_b32 v5, 3, v1
    v_mul_u32_u24 v5, 0x020202, v5
    v_lshrrev_b32 v7, 3, v1
    v_lshlrev_b32 v7, 25, v7
    v_add_u32 v5, v5, v7
    v_add_u32 {vr(V_SEL2)}, v4, v5
    s_mov_b32 {sr(S_PAR)}, 0xaaaaaaaa
    s_mov_b32 {sr(S_PAR+1)}, 0xaaaaaaaa
    """)
    for r in range(4):
        a(f"""
        v_mov_b32 v4, 0
        v_mov_b32 v5, 0x3f80
        v_cmp_eq_u32 vcc, {2*r}, v1
        s_nop 1
        v_cndmask_b32 v4, v4, v5, vcc
        v_mov_b32 v5, 0x3f800000
        v_cmp_eq_u32 vcc, {2*r+1}, v1
        s_nop 1
        v_cndmask_b32 {vr(V_ID+r)}, v4, v5, vcc
        """)
    a(f"""
    v_lshlrev_b32 v4, 3, v0
    s_and_b32 s5, {sr(S_W)}, 1
    s_lshl_b32 s5, s5, 9
    s_add_u32 s5, s5, {LV}
    v_add_u32 {vr(V_VMX)}, s5, v4
    s_mov_b32 {sr(S_CSC)}, {fbits(128**-0.5 * 1.4426950408889634)}
    s_lshr_b32 s4, {sr(S_G)}, 1
    s_lshl_b32 s4, s4, 16
    s_add_u32 {sr(S_AB)}, s4, {OFF_RA}
    s_lshl_b32 s4, {sr(S_H)}, 14
    s_add_u32 {sr(S_BB)}, s4, {OFF_RB}
    s_lshl_b32 s4, {sr(S_G)}, 15
    s_add_u32 {sr(S_OB)}, s4, {OFF_RO}
    s_lshl_b32 s4, {sr(S_H)}, 16
    s_lshl_b32 s5, {sr(S_W)}, 14
    s_add_u32 s4, s4, s5
    s_add_u32 {sr(S_KXB)}, s4, {OFF_KX}
    s_lshl_b32 s4, {sr(S_H)}, 11
    s_lshl_b32 s5, {sr(S_C4)}, 9
    s_add_u32 s4, s4, s5
    s_lshl_b32 s5, {sr(S_W)}, 8
    s_add_u32 s4, s4, s5
    s_add_u32 {sr(S_VTB)}, s4, {OFF_VT}
    """)

def arm_and_mem0(a):
    a(f"""
    s_load_dwordx2 {sr(S_T,2)}, s[0:1], {KA_MEM0}
    s_mov_b32 {sr(S_T+2)}, 16384
    s_mov_b32 {sr(S_T+3)}, 0x20000
    v_lshlrev_b32 v4, 11, v6
    v_and_b32 v5, 6, v1
    v_lshlrev_b32 v5, 1, v5
    v_add_u32 v4, v4, v5
    {oob_hi(4, 4)}
    s_lshl_b32 s4, {sr(S_M)}, 7
    s_lshl_b32 s5, {sr(S_Q)}, 6
    s_add_u32 s4, s4, s5
    s_lshl_b32 s5, {sr(S_W)}, 4
    s_add_u32 s4, s4, s5
    s_waitcnt lgkmcnt(0)
    buffer_load_dword v6, v4, {sr(S_T,4)}, s4 offen
    s_mov_b32 s4, {sr(S_AB)}
    s_waitcnt vmcnt(0)
    buffer_store_dword v6, {vr(V_AST)}, {sr(S_WS,4)}, s4 offen{st_local()}
    """)
    for sl in range(1, 4):
        a(f"""
        s_add_u32 s4, s4, 16384
        buffer_store_dword {vr(V_NEG)}, {vr(V_AST)}, {sr(S_WS,4)}, s4 offen{st_local()}
        """)
    a(f"""
    s_mov_b32 s4, {sr(S_BB)}
    s_mov_b32 s5, {sr(S_OB)}
    s_mov_b32 s6, {OFF_RC}
    """)
    for sl in range(4):
        a(f"""
        buffer_store_dword {vr(V_NEG)}, {vr(V_BST)}, {sr(S_WS,4)}, s4 offen{st_local()}
        buffer_store_dwordx2 {vr(V_NEG,2)}, {vr(V_CST)}, {sr(S_WS,4)}, s6 offen sc1
        s_add_u32 s4, s4, 4096
        s_add_u32 s6, s6, {CSLOT}
        """)
    if CFG.get('arm_export', True):
        a(f"s_lshl_b32 s4, {sr(S_W)}, 21")
        for k in range(16):
            a(f"buffer_store_dwordx4 {vr(V_NEG,4)}, {vr(V_EXPM)}, {sr(S_WS,4)}, s4 offen sc1")
            a(f"s_add_u32 s4, s4, 131072")
    lab = a.label("Lnoo")
    a(f"""
    s_cmp_lt_u32 {sr(S_W)}, 2
    s_cbranch_scc1 {lab}
    """)
    for sl in range(4):
        a(f"""
        buffer_store_dwordx2 {vr(V_NEG,2)}, {vr(V_OST)}, {sr(S_WS,4)}, s5 offen{st_local()}
        s_add_u32 s5, s5, 8192
        """)
    a(f"{lab}:")

def load_srd(a, ka, nbytes):
    a(f"""
    s_load_dwordx2 {sr(S_T,2)}, s[0:1], {ka}
    s_mov_b32 {sr(S_T+2)}, {nbytes}
    s_mov_b32 {sr(S_T+3)}, 0x20000
    s_waitcnt lgkmcnt(0)
    """)

def load_weights(a):
    VQ, VO, VT0, VT1, VWO = 76, 77, 78, 79, 80
    a(f"""
    v_lshrrev_b32 v4, 2, v0
    v_lshlrev_b32 v4, 13, v4
    v_and_b32 v5, 3, v0
    v_lshlrev_b32 v5, 4, v5
    v_add_u32 v{VQ}, v4, v5
    v_lshrrev_b32 v4, 3, v0
    v_lshlrev_b32 v4, 11, v4
    v_and_b32 v5, 7, v0
    v_lshlrev_b32 v5, 4, v5
    v_add_u32 v{VO}, v4, v5
    s_lshl_b32 s4, {sr(S_H)}, 8
    s_lshl_b32 s5, {sr(S_C4)}, 6
    s_add_u32 {sr(S_TMP)}, s4, s5
    s_lshl_b32 s4, {sr(S_W)}, 21
    s_add_u32 {sr(S_TMP)}, {sr(S_TMP)}, s4  ; + 256w rows * 8192
    v_lshrrev_b32 v4, 5, v0                 ; gb>>1
    v_lshlrev_b32 v4, 4, v4
    v_bfe_u32 v5, v0, 4, 1                  ; gb&1
    v_lshlrev_b32 v6, 2, v5
    v_add_u32 v4, v4, v6
    v_bfe_u32 v6, v0, 3, 1                  ; r>>1
    v_lshlrev_b32 v7, 3, v6
    v_add_u32 v4, v4, v7
    v_bfe_u32 v7, v0, 2, 1                  ; r&1
    v_add_u32 v4, v4, v7
    v_lshlrev_b32 v4, 6, v4
    v_and_b32 v7, 3, v0
    v_lshlrev_b32 v7, 3, v7                 ; c4*8
    v_add_u32 v4, v4, v7
    s_lshl_b32 s4, {sr(S_W)}, 14
    v_add_u32 v{VT0}, s4, v4
    s_add_u32 s4, s4, 65536
    v_add_u32 v{VT1}, s4, v4
    v_lshlrev_b32 v4, 5, v6
    v_lshlrev_b32 v5, 4, v5
    v_add_u32 v4, v4, v5
    v_lshrrev_b32 v5, 5, v0
    v_lshlrev_b32 v5, 2, v5
    v_add_u32 v4, v4, v5
    v_bfe_u32 v5, v0, 2, 1
    v_add_u32 v4, v4, v5
    v_lshlrev_b32 v4, 7, v4
    v_add_u32 v4, v4, v7
    s_lshl_b32 s4, {sr(S_W)}, 5
    s_add_u32 s4, s4, 65536
    v_add_u32 v{VWO}, s4, v4
    """)
    def dma_qkv(ka, ldsbase):
        load_srd(a, ka, 8*MB)
        a(f"""
        s_mov_b32 s4, {sr(S_TMP)}
        s_lshl_b32 s5, {sr(S_W)}, 14
        s_add_u32 s5, s5, {ldsbase}
        """)
        for i in range(16):
            a(f"""
            s_mov_b32 m0, s5
            s_add_u32 s5, s5, 1024
            buffer_load_dwordx4 v{VQ}, {sr(S_T,4)}, s4 offen lds
            s_add_u32 s4, s4, 131072
            """)
    def tr_tiles(vaddr, tile0):
        n = 0
        for t in range(2):
            for i in range(4):
                for hb in range(2):
                    for pr in range(2):
                        a(f"ds_read_b64_tr_b16 {ar(((tile0+t)*4 + i)*8 + 4*hb + 2*pr, 2)}, v{vaddr} offset:{i*4096 + hb*2048 + pr*128 + t*32}")
                        n += 1
                        if n % 8 == 0: a("s_waitcnt lgkmcnt(4)")
        a("s_waitcnt lgkmcnt(0)")
    dma_qkv(KA_WQ, 0)
    dma_qkv(KA_WK, 65536)
    a("s_waitcnt vmcnt(16)")
    tr_tiles(VT0, 2)
    dma_qkv(KA_WV, 0)
    a("s_waitcnt vmcnt(16)")
    tr_tiles(VT1, 0)
    load_srd(a, KA_WO, 8*MB)
    a(f"""
    s_lshl_b32 s4, {sr(S_G)}, 9
    s_lshl_b32 s5, {sr(S_W)}, 7
    s_add_u32 s4, s4, s5
    s_lshl_b32 s4, s4, 11                   ; row*2048
    s_lshl_b32 s5, {sr(S_M)}, 7
    s_add_u32 s4, s4, s5
    s_lshl_b32 s5, {sr(S_W)}, 14
    s_add_u32 s5, s5, 65536
    """)
    for i in range(16):
        a(f"""
        s_mov_b32 m0, s5
        s_add_u32 s5, s5, 1024
        buffer_load_dwordx4 v{VO}, {sr(S_T,4)}, s4 offen lds
        s_add_u32 s4, s4, 16384
        """)
    a("s_waitcnt vmcnt(16)")
    tr_tiles(VT0, 4)
    a("""
    s_waitcnt vmcnt(0)
    s_barrier
    """)
    for ks in range(8):
        for hb in range(2):
            for pr in range(2):
                a(f"ds_read_b64_tr_b16 {ar(A_WO + 8*ks + 4*hb + 2*pr, 2)}, v{VWO} offset:{ks*8192 + hb*1024 + pr*256}")
        if ks % 2 == 1: a("s_waitcnt lgkmcnt(4)")
    a("""
    s_waitcnt lgkmcnt(0)
    s_barrier
    """)

def seg_offsets_l(seg):
    return [x.strip() for x in f"""s_lshr_b32 s4, {sr(seg)}, 3
    s_lshl_b32 s4, s4, 21
    s_and_b32 s5, {sr(seg)}, 7
    s_lshl_b32 s5, s5, 9
    s_add_u32 s4, s4, s5
    s_add_u32 {sr(S_KXD)}, s4, {sr(S_KXB)}
    s_lshl_b32 s4, {sr(seg)}, 18
    s_add_u32 {sr(S_VTD)}, s4, {sr(S_VTB)}
    s_and_b32 s4, {sr(seg)}, 1
    s_mul_i32 s4, s4, {KXSLOT}
    s_add_u32 {sr(S_LWR)}, s4, {LKX}""".split("\n")]

def prefetch_l(vwave):
    if CFG.get('nopf'): return []
    out = [[f"s_lshl_b32 s6, {sr(S_W)}, 10", f"s_add_u32 s6, s6, {sr(S_LWR)}"],
           ["s_mov_b32 m0, s6", f"s_add_u32 s6, s6, {4096 - 256}",
            f"buffer_load_dwordx4 {vr(V_KXD)}, {sr(S_WS,4)}, {sr(S_KXD)} offen sc1 lds"],
           ["s_mov_b32 m0, s6", f"s_add_u32 s6, s6, {4096 + 256}",
            f"buffer_load_dwordx4 {vr(V_KXD)}, {sr(S_WS,4)}, {sr(S_KXD)} offen offset:256 sc1 lds"]]
    if vwave:
        out.append(["s_mov_b32 m0, s6", "s_nop 0",
                    f"buffer_load_dwordx4 {vr(V_VTD)}, {sr(S_WS,4)}, {sr(S_VTD)} offen sc1 lds"])
    return out

def flat(groups):
    out = []
    for g in groups:
        if isinstance(g, str): out.append(g)
        else: out.extend(g)
    return out

def front_offsets_l():
    return [x.strip() for x in f"""s_and_b32 s4, {sr(S_STEP)}, 3
    s_lshl_b32 s5, s4, 17
    s_add_u32 {sr(S_C)}, s5, {OFF_RC}
    s_add_u32 s5, s4, 2
    s_and_b32 s5, s5, 3
    s_lshl_b32 s5, s5, 17
    s_add_u32 {sr(S_CRE)}, s5, {OFF_RC}
    s_add_u32 s4, s4, 3
    s_and_b32 s4, s4, 3
    s_lshl_b32 s5, s4, 14
    s_add_u32 {sr(S_ARE)}, s5, {sr(S_AB)}
    s_lshl_b32 s5, s4, 12
    s_add_u32 {sr(S_BRE)}, s5, {sr(S_BB)}
    s_lshl_b32 s5, s4, 13
    s_add_u32 {sr(S_ORE)}, s5, {sr(S_OB)}
    s_lshl_b32 {sr(S_EXP)}, {sr(S_STEP)}, 17""".split("\n")]

def next_offsets_l():
    return [x.strip() for x in f"""s_add_u32 {sr(S_STEP)}, {sr(S_STEP)}, 1
    s_and_b32 s4, {sr(S_STEP)}, 3
    s_lshl_b32 s5, s4, 14
    s_add_u32 {sr(S_A)}, s5, {sr(S_AB)}
    s_lshl_b32 s5, s4, 12
    s_add_u32 {sr(S_B)}, s5, {sr(S_BB)}
    s_lshl_b32 s5, s4, 13
    s_add_u32 {sr(S_O)}, s5, {sr(S_OB)}
    s_and_b32 s4, {sr(S_STEP)}, 1
    s_mul_i32 s4, s4, {KXSLOT}
    s_add_u32 {sr(S_LRD)}, s4, {LKX}
    s_add_u32 {sr(S_TMP)}, {sr(S_STEP)}, 1
    s_min_u32 {sr(S_TMP)}, {sr(S_TMP)}, 63""".split("\n")] + seg_offsets_l(S_TMP)

def smf(d, af, b_reg):
    return f"v_smfmac_f32_16x16x64_bf16 {vr(d,4)}, {vr(af,4)}, {b_reg}, {vr(V_IDX)}"

def tile_smf(tile, i):
    return smf(DT + 4*tile, AF + 4*i, ar((tile*4 + i)*8, 8))

def sum4(a, base):
    a(f"""
    v_pk_add_f32 {vr(base,2)}, {vr(base,2)}, {vr(base+4,2)}
    v_pk_add_f32 {vr(base+2,2)}, {vr(base+2,2)}, {vr(base+6,2)}
    v_pk_add_f32 {vr(base+8,2)}, {vr(base+8,2)}, {vr(base+12,2)}
    v_pk_add_f32 {vr(base+10,2)}, {vr(base+10,2)}, {vr(base+14,2)}
    v_pk_add_f32 {vr(base,2)}, {vr(base,2)}, {vr(base+8,2)}
    v_pk_add_f32 {vr(base+2,2)}, {vr(base+2,2)}, {vr(base+10,2)}
    s_nop 1
    """)

def gemm1(a, w, last=False):
    loads = [f"buffer_load_dwordx4 {vr(AF + 4*i, 4)}, {vr(V_ALD)}, {sr(S_WS,4)}, {sr(S_A)} offen offset:{i*1024} sc1" for i in range(4)]
    poll_issue(a, "A", loads)
    for r in range(24): a(f"v_mov_b32 {vr(DT+r)}, 0")
    for ln in front_offsets_l(): a(ln)
    if CFG['prof']:
        a("s_waitcnt lgkmcnt(0)")
        for i in range(1, 8):
            a(f"s_sub_u32 s4, {sr(S_PROF + 2*i)}, {sr(S_PROF)}")
            a(f"s_add_u32 {sr(S_ACC + i)}, {sr(S_ACC + i)}, s4")
    for i in range(4):
        top = a.label("LpA"); retry = a.label("LrA")
        a(f"s_waitcnt vmcnt({3-i})")
        a(f"{top}:")
        check(a, [AF + 4*i + r for r in range(4)], retry)
        back = a.label("LbA")
        retry_code(a, "A", retry, loads[i:] + [f"s_waitcnt vmcnt({3-i})"], top)
        if i == 3: stamp(a, 0)
        for tile in range(4): a(tile_smf(tile, i))
    vs = [tile_smf(4 + t, i) for i in range(4) for t in range(2)]
    a(vs[0]); a(vs[1])
    for tile in range(4):
        a(f"ds_write_b128 {vr(V_PW)}, {vr(DT + 4*tile, 4)} offset:{LA + tile*4096}")
        a(vs[2 + tile])
    a(vs[6]); a(vs[7])
    a("s_waitcnt lgkmcnt(0)")
    a("s_barrier")
    for src in range(4):
        a(f"ds_read_b128 {vr(PR + 4*src, 4)}, {vr(V_ALD)} offset:{LA + src*1024}")
    for t in range(2):
        a(f"ds_write_b128 {vr(V_PW)}, {vr(DT + 16 + 4*t, 4)} offset:{LVP + t*4096}")
    if not last:
        for ln in flat(prefetch_l(w < 2)): a(ln)
    a("s_waitcnt lgkmcnt(2)")
    sum4(a, PR)
    halves_sum(a, PR, V_W, V_W+1)
    pack_pairs(a, V_W, V_W+1, V_W+2, V_W+3)
    if not last:
        a(f"buffer_store_dword {vr(V_W+2)}, {vr(V_BST)}, {sr(S_WS,4)}, {sr(S_B)} offen{st_local()}")
    stamp(a, 1)

def v_reduce(a):
    for src in range(4):
        a(f"ds_read_b128 {vr(PR + 4*src, 4)}, {vr(V_ALD)} offset:{LVP + src*1024}")
    a(f"ds_write_b32 {vr(V_EXPK)}, {vr(V_W+2)}")
    a("s_waitcnt lgkmcnt(1)")
    sum4(a, PR)
    halves_sum(a, PR, V_W+4, V_W+5)
    a(f"""
    v_cvt_pk_bf16_f32 {vr(V_W+6)}, {vr(V_W+4)}, 0
    v_cvt_pk_bf16_f32 {vr(V_W+7)}, {vr(V_W+5)}, 0
    v_cvt_pk_bf16_f32 {vr(V_EXP)}, {vr(V_W+4)}, {vr(V_W+5)}
    ds_write_b64 {vr(V_VMX)}, {vr(V_W+6,2)}
    ds_write_b32 {vr(V_EXPV)}, {vr(V_EXP)}
    """)

def export_read(a):
    a(f"ds_read_b128 {vr(V_EXR,4)}, {vr(V_L16)} offset:{LEXP}")

def export_store(a):
    a(f"buffer_store_dwordx4 {vr(V_EXR,4)}, {vr(V_EXPM)}, {sr(S_WS,4)}, {sr(S_EXP)} offen sc1")

def shadow(a, w):
    if w == 0:
        a(f"buffer_store_dwordx4 {vr(V_NEG,4)}, {vr(V_R1)}, {sr(S_WS,4)}, {sr(S_ARE)} offen{st_local()}")
        a(f"buffer_store_dwordx4 {vr(V_NEG,4)}, {vr(V_R2)}, {sr(S_WS,4)}, {sr(S_BRE)} offen{st_local()}")
        a(f"buffer_store_dwordx4 {vr(V_NEG,4)}, {vr(V_R3)}, {sr(S_WS,4)}, {sr(S_ORE)} offen{st_local()}")

def kv_check(a, dbg_srd):
    if not CFG.get('kv_flags'): return
    lab = a.label("Lkv")
    a(f"""
    s_add_u32 s4, {sr(S_STEP)}, 2
    s_and_b32 s5, s4, 7
    s_cmp_lg_u32 s5, 0
    s_cbranch_scc1 {lab}_ok
    s_lshr_b32 s4, s4, 3
    s_cmp_ge_u32 s4, 8
    s_cbranch_scc1 {lab}_ok
    s_add_u32 s4, s4, {C_KV}
    s_lshl_b32 s4, s4, 2
    s_branch {lab}_cold
    {lab}_ok:
    """)
    a.cold.append(f"""{lab}_cold:
    v_mov_b32 v4, s4
    {lab}_l:
    buffer_load_dword v5, v4, {sr(dbg_srd,4)}, 0 offen sc1
    s_waitcnt vmcnt(0)
    v_cmp_le_u32 vcc, 32, v5
    s_cbranch_vccnz {lab}_ok
    s_sleep 4
    s_sub_u32 {sr(S_BUD)}, {sr(S_BUD)}, 1
    s_cbranch_scc0 {lab}_l
    s_branch L_R_abort""")

def after_c_store(a, w):
    if w == 0:
        export_store(a)
    if w == 1:
        a(f"buffer_store_dwordx4 {vr(V_NEG,4)}, {vr(V_R1)}, {sr(S_WS,4)}, {sr(S_CRE)} offen sc1")

def attention(a, w):
    t = w & 1
    loads = [f"buffer_load_dwordx4 {vr(XF + 4*c, 4)}, {vr(V_L16)}, {sr(S_WS,4)}, {sr(S_B)} offen offset:{c*1024} sc1" for c in range(4)]
    poll_issue(a, "B", loads)
    a("s_waitcnt lgkmcnt(0)")
    a("s_barrier")
    a(f"v_add_u32 {vr(V_T+1)}, {sr(S_LRD)}, {vr(V_L16)}")
    for tau in range(2):
        for c in range(4):
            a(f"ds_read_b128 {vr(KXF + 16*tau + 4*c, 4)}, {vr(V_T+1)} offset:{(tau*4 + c)*1024}")
    a(f"ds_read_b64 {vr(PA0,2)}, {vr(V_T+1)} offset:{8192 + t*1024}")
    a(f"ds_read_b64 {vr(PA1,2)}, {vr(V_T+1)} offset:{8192 + t*1024 + 8}")
    a("s_barrier")
    a(f"ds_read_b32 {vr(PA0+2)}, {vr(V_VMX)}")
    a(f"ds_read_b32 {vr(PA1+2)}, {vr(V_VMX)} offset:4")
    poll_wait(a, "B", loads, [XF + r for r in range(16)])
    stamp(a, 2)
    a("s_waitcnt lgkmcnt(0)")
    Dm, D0, D1 = V_W, V_W+4, V_W+8
    for c in range(4):
        cm = "0" if c == 0 else vr(Dm,4); c0 = "0" if c == 0 else vr(D0,4); c1 = "0" if c == 0 else vr(D1,4)
        a(f"v_mfma_f32_16x16x32_bf16 {vr(Dm,4)}, {vr(XF+4*c,4)}, {vr(XF+4*c,4)}, {cm}")
        a(f"v_mfma_f32_16x16x32_bf16 {vr(D0,4)}, {vr(KXF+4*c,4)}, {vr(XF+4*c,4)}, {c0}")
        a(f"v_mfma_f32_16x16x32_bf16 {vr(D1,4)}, {vr(KXF+16+4*c,4)}, {vr(XF+4*c,4)}, {c1}")
    a("s_nop 0")
    a(f"v_mov_b32_dpp {vr(Dm)}, {vr(Dm+1)} row_shr:8 row_mask:0xf bank_mask:0xc")
    a(f"v_mov_b32_dpp {vr(Dm+2)}, {vr(Dm+3)} row_shr:8 row_mask:0xf bank_mask:0xc")
    a("s_nop 4")
    for r in range(4):
        a(f"v_mov_b32_dpp {vr(D0+r)}, {vr(D1+r)} row_shr:8 row_mask:0xf bank_mask:0xc")
    a(f"v_permlane32_swap_b32 {vr(Dm)}, {vr(Dm+2)}")
    pm = Dm+2; M = V_W+12; T2 = V_W+13
    a(f"""
    v_max3_f32 {vr(M)}, {vr(D0)}, {vr(D0+1)}, {vr(D0+2)}
    v_max3_f32 {vr(M)}, {vr(M)}, {vr(D0+3)}, {vr(pm)}
    s_nop 1
    v_max_f32_dpp {vr(T2)}, {vr(M)}, {vr(M)} row_ror:8 row_mask:0xf bank_mask:0xf
    v_max_f32_dpp {vr(M)}, {vr(M)}, {vr(M)} row_ror:8 row_mask:0xf bank_mask:0xf
    s_nop 1
    v_permlane16_swap_b32 {vr(M)}, {vr(T2)}
    v_max_f32 {vr(M)}, {vr(M)}, {vr(T2)}
    v_max_f32 {vr(T2)}, {vr(M)}, {vr(M)}
    s_nop 1
    v_permlane32_swap_b32 {vr(M)}, {vr(T2)}
    v_max_f32 {vr(M)}, {vr(M)}, {vr(T2)}
    v_mul_f32 {vr(M)}, {sr(S_CSC)}, {vr(M)}
    """)
    for r in range(4):
        a(f"v_fma_f32 {vr(D0+r)}, {vr(D0+r)}, {sr(S_CSC)}, -{vr(M)}")
    a(f"v_fma_f32 {vr(pm)}, {vr(pm)}, {sr(S_CSC)}, -{vr(M)}")
    for r in range(4):
        a(f"v_exp_f32 {vr(D0+r)}, {vr(D0+r)}")
    a(f"v_exp_f32 {vr(pm)}, {vr(pm)}")
    a(f"""
    v_cvt_pk_bf16_f32 {vr(PB)}, {vr(D0)}, {vr(D0+1)}
    v_cvt_pk_bf16_f32 {vr(PB+1)}, {vr(D0+2)}, {vr(D0+3)}
    v_cvt_pk_bf16_f32 {vr(PB+2)}, {vr(pm)}, 0
    s_nop 1
    """)
    DA, DB, DS = V_W, V_W+4, V_W+8
    a(f"v_mfma_f32_16x16x32_bf16 {vr(DS,4)}, {vr(ONES,4)}, {vr(PB,4)}, 0")
    a(f"v_mfma_f32_16x16x32_bf16 {vr(DA,4)}, {vr(PA0,4)}, {vr(PB,4)}, 0")
    a(f"v_mfma_f32_16x16x32_bf16 {vr(DB,4)}, {vr(PA1,4)}, {vr(PB,4)}, 0")
    L = V_W+12
    a("s_nop 3")
    a(f"v_add_f32_dpp {vr(L)}, {vr(DS)}, {vr(DS)} row_ror:8 row_mask:0xf bank_mask:0xf")
    a(f"v_rcp_f32 {vr(L)}, {vr(L)}")
    a("s_nop 2")
    for r in range(4):
        a(f"v_add_f32_dpp {vr(DA+r)}, {vr(DB+r)}, {vr(DA+r)} row_ror:8 row_mask:0xf bank_mask:0xf")
    for r in range(4):
        a(f"v_mul_f32 {vr(DA+r)}, {vr(DA+r)}, {vr(L)}")
    a(f"""
    v_cvt_pk_bf16_f32 {vr(DB)}, {vr(DA)}, {vr(DA+1)}
    v_cvt_pk_bf16_f32 {vr(DB+1)}, {vr(DA+2)}, {vr(DA+3)}
    buffer_store_dwordx2 {vr(DB,2)}, {vr(V_OST)}, {sr(S_WS,4)}, {sr(S_O)} offen{st_local()}
    """)
    stamp(a, 3)

def gemm2(a, w):
    own = [2*w, 2*w+1]
    loads = [f"buffer_load_dwordx4 {vr(OF + 4*(2*w+i), 4)}, {vr(V_OLD)}, {sr(S_WS,4)}, {sr(S_O)} offen offset:{i*1024} sc1" for i in range(2)]
    poll_issue(a, "O", loads)
    for r in range(4): a(f"v_mov_b32 {vr(D2+r)}, 0")
    poll_wait(a, "O", loads, [OF + 8*w + r for r in range(8)])
    stamp(a, 4)
    for i in range(2):
        a(f"ds_write_b128 {vr(V_OLD)}, {vr(OF + 4*(2*w+i), 4)} offset:{LO + i*1024}")
    a(smf(D2, OF + 4*own[0], ar(A_WO + 8*own[0], 8)))
    a("s_waitcnt lgkmcnt(0)")
    a("s_barrier")
    others = [k for k in range(8) if k not in own]
    for k in others:
        a(f"ds_read_b128 {vr(OF + 4*k, 4)}, {vr(V_L16)} offset:{LO + k*1024}")
    a(smf(D2, OF + 4*own[1], ar(A_WO + 8*own[1], 8)))
    for n, k in enumerate(others):
        a(f"s_waitcnt lgkmcnt({5-n})")
        a(smf(D2, OF + 4*k, ar(A_WO + 8*k, 8)))
    a("s_nop 7")
    for r in range(4): a(f"v_permlane32_swap_b32 {vr(D2+r)}, {vr(V_W+r)}")
    a(f"""
    v_pk_add_f32 {vr(D2,2)}, {vr(D2,2)}, {vr(V_W,2)}
    v_pk_add_f32 {vr(D2+2,2)}, {vr(D2+2,2)}, {vr(V_W+2,2)}
    v_cvt_pk_bf16_f32 {vr(V_W+4)}, {vr(D2)}, {vr(D2+1)}
    v_cvt_pk_bf16_f32 {vr(V_W+5)}, {vr(D2+2)}, {vr(D2+3)}
    buffer_store_dwordx2 {vr(V_W+4,2)}, {vr(V_CST)}, {sr(S_WS,4)}, {sr(S_C)} offen sc1
    """)
    stamp(a, 5)

def reduce_c(a, w):
    loads = [f"buffer_load_dwordx4 {vr(CF,4)}, {vr(V_CLD)}, {sr(S_WS,4)}, {sr(S_C)} offen sc1"]
    poll_issue(a, "C", loads)
    for ln in next_offsets_l(): a(ln)
    poll_wait(a, "C", loads, [CF + r for r in range(4)])
    stamp(a, 6)
    D = V_W
    a(f"v_mfma_f32_16x16x32_bf16 {vr(D,4)}, {vr(V_ID,4)}, {vr(CF,4)}, 0")
    a("s_nop 7")
    for r in range(4):
        a(f"v_add_f32_dpp {vr(D+r)}, {vr(D+r)}, {vr(D+r)} row_ror:8 row_mask:0xf bank_mask:0xf")
    a(f"""
    v_cvt_pk_bf16_f32 {vr(D+4)}, {vr(D)}, {vr(D+1)}
    v_cvt_pk_bf16_f32 {vr(D+5)}, {vr(D+2)}, {vr(D+3)}
    v_cndmask_b32 {vr(D+6)}, {vr(D+5)}, {vr(D+4)}, {sr(S_PAR,2)}
    v_cndmask_b32 {vr(D+7)}, {vr(D+4)}, {vr(D+5)}, {sr(S_PAR,2)}
    s_nop 0
    v_mov_b32_dpp {vr(D+8)}, {vr(D+6)} quad_perm:[1,0,3,2] row_mask:0xf bank_mask:0xf
    v_perm_b32 {vr(D+9)}, {vr(D+7)}, {vr(D+8)}, {vr(V_SEL2)}
    buffer_store_dword {vr(D+9)}, {vr(V_AST)}, {sr(S_WS,4)}, {sr(S_A)} offen{st_local()}
    """)
    if CFG['dbg_mem']:
        lab = a.label("Lnd")
        a(f"""
        s_cmp_gt_u32 {sr(S_G)}, 1
        s_cbranch_scc1 {lab}
        s_lshl_b32 s4, {sr(S_STEP)}, 14
        s_add_u32 s4, s4, {OFF_MEMDBG}
        buffer_store_dword {vr(D+9)}, {vr(V_AST)}, {sr(S_WS,4)}, s4 offen sc1
        {lab}:
        """)
    stamp(a, 7)

def wave_loop(a, w):
    ns = CFG['nsteps']
    top = a.label("Lstep")
    if w >= 2:
        for r in range(4): a(f"v_mov_b32 {vr(ONES+r)}, 0x3f803f80")
        a(f"v_mov_b32 {vr(PA0+3)}, 0")
        a(f"v_mov_b32 {vr(PA1+3)}, 0")
        a(f"v_mov_b32 {vr(PB+3)}, 0")
    last = a.label("Llast")
    a(f"{top}:")
    a(f"s_cmp_eq_u32 {sr(S_STEP)}, {ns-1}")
    a(f"s_cbranch_scc1 {last}")
    gemm1(a, w)
    if w < 2:
        a("s_waitcnt lgkmcnt(0)")
        a("s_barrier")
        v_reduce(a)
        shadow(a, w)
        a("s_waitcnt lgkmcnt(0)")
        a("s_barrier")
        if w == 0:
            export_read(a)
            kv_check(a, a.dbg_srd)
    else:
        attention(a, w)
    gemm2(a, w)
    after_c_store(a, w)
    reduce_c(a, w)
    a(f"s_branch {top}")
    a(f"{last}:")
    sv = CFG['prof']; CFG['prof'] = False
    gemm1(a, w, last=True)
    CFG['prof'] = sv
    a("s_waitcnt lgkmcnt(0)")
    a("s_barrier")
    if w < 2:
        v_reduce(a)
    a("s_waitcnt lgkmcnt(0)")
    a("s_barrier")
    if w == 0:
        export_read(a)
        a("s_waitcnt lgkmcnt(0)")
        export_store(a)
    a("s_waitcnt vmcnt(0)")
    a("s_branch L_R_done")

def start_barrier(a, dbg_srd, off):
    ok = a.label("Lsbo")
    a(f"""
    s_waitcnt vmcnt(0)
    s_barrier
    s_cmp_lg_u32 {sr(S_W)}, 0
    s_cbranch_scc1 {ok}
    v_mov_b32 v4, {off}
    v_mov_b32 v5, 1
    v_cmp_eq_u32 vcc, 0, v0
    s_and_saveexec_b64 s[6:7], vcc
    buffer_atomic_add v5, v4, {sr(dbg_srd,4)}, 0 offen sc1
    s_mov_b64 exec, s[6:7]
    {ok}:
    """)

def wait_barrier(a, dbg_srd, off, count):
    lab = a.label("Lwb")
    a(f"""
    v_mov_b32 v4, {off}
    {lab}:
    buffer_load_dword v5, v4, {sr(dbg_srd,4)}, 0 offen sc1
    s_waitcnt vmcnt(0)
    v_cmp_le_u32 vcc, {count}, v5
    s_cbranch_vccnz {lab}_ok
    s_sleep 8
    s_sub_u32 {sr(S_BUD)}, {sr(S_BUD)}, 1
    s_cbranch_scc0 {lab}
    s_branch L_R_abort
    {lab}_ok:
    """)

def emit_R(a, dbg_srd, bar_off):
    a.cold = []
    a.dbg_srd = dbg_srd
    setup(a)
    arm_and_mem0(a)
    start_barrier(a, dbg_srd, bar_off)
    if CFG.get('proto'): a(f"s_memtime {sr(S_PROF + 16, 2)}")
    load_weights(a)
    if CFG.get('proto'): a(f"s_memtime {sr(S_PROF + 18, 2)}")
    wait_barrier(a, dbg_srd, bar_off, CFG.get('bar_count', 128))
    if CFG.get('kv_flags'): wait_barrier(a, dbg_srd, C_KV*4, 32)
    a(f"s_mov_b32 {sr(S_STEP)}, 0")
    for ln in seg_offsets_l(S_STEP): a(ln)
    l0 = a.label("Lpf"); l1 = a.label("Lpf")
    a(f"s_cmp_lt_u32 {sr(S_W)}, 2")
    a(f"s_cbranch_scc1 {l0}")
    for ln in flat(prefetch_l(False)): a(ln)
    a(f"s_branch {l1}")
    a(f"{l0}:")
    for ln in flat(prefetch_l(True)): a(ln)
    a(f"{l1}:")
    a(f"s_mov_b32 {sr(S_STEP)}, -1")
    for ln in next_offsets_l(): a(ln)
    a("s_waitcnt vmcnt(0)")
    a("s_barrier")
    if CFG['prof']:
        for i in range(8):
            a(f"s_mov_b32 {sr(S_PROF + 2*i)}, 0")
            a(f"s_mov_b32 {sr(S_ACC + i)}, 0")
    if CFG.get('proto'):
        for ci in range(68, 72): a(f"s_mov_b32 s{ci}, 0")
        calib(a, 96)
        a(f"s_memtime {sr(S_PROF + 20, 2)}")
    labs = [a.label("Lwave") for _ in range(4)]
    for w in range(1, 4):
        a(f"s_cmp_eq_u32 {sr(S_W)}, {w}")
        a(f"s_cbranch_scc1 {labs[w]}")
    for w in range(4):
        a(f"{labs[w]}:")
        wave_loop(a, w)
    for c in a.cold: a(c)
```

```python
import sys
from asmlib import *
from layout import *
import gk, rk4 as rk

NAME = "recurrent_scan__memory_aug_recurrent_mem_tr__glu_gated_reglu__prompt_kernel"
STUB = open("recurrent_scan__memory_aug_recurrent_mem_tr__glu_gated_reglu__prompt.s.ref").read()

def header(name):
    lines = STUB.split("\n")
    hdr = [l for l in lines if l.startswith(";") and not l.startswith("; @launch")]
    out = []
    for l in lines:
        if l.startswith("; @launch"):
            out.append("; @launch grid=(256,1,1) block=(256,1,1) lds=163840")
            break
        out.append(l)
    out.append(f""".amdgcn_target "amdgcn-amd-amdhsa--gfx950"
.text
.globl {name}
.p2align 8
.type {name},@function
{name}:""")
    return "\n".join(out)

def footer(name):
    return f"""
.section .rodata,"a"
.p2align 6
.amdhsa_kernel {name}
  .amdhsa_next_free_vgpr 512
  .amdhsa_next_free_sgpr 102
  .amdhsa_accum_offset 256
  .amdhsa_group_segment_fixed_size 0
  .amdhsa_kernarg_size 112
  .amdhsa_user_sgpr_count 2
  .amdhsa_user_sgpr_kernarg_segment_ptr 1
  .amdhsa_system_sgpr_workgroup_id_x 1
.end_amdhsa_kernel
"""

S_IDX, S_RANK = 90, 91

def gen(name=NAME, rmask=0xaa, rcfg=None, gcfg=None, noR=False):
    rk.CFG.clear(); rk.CFG.update(dict(local_sc1=False, prof=False, dbg_mem=False, nsteps=64, bar_count=128, kv_flags=True,
                                       delayA=4, delayB=6, delayO=4, delayC=8))
    if rcfg: rk.CFG.update(rcfg)
    gk.CFG.clear()
    if gcfg: gk.CFG.update(gcfg)
    a = Asm()
    S_WS, S_DBG, S_W = gk.S_WS, gk.S_DBG, gk.S_W
    a.lines.append(header(name))
    a(f"""
    s_cmp_ge_u32 s2, 256
    s_cbranch_scc1 L_exit
    s_load_dwordx2 {sr(S_WS,2)}, s[0:1], {KA_WS}
    s_load_dwordx2 {sr(S_DBG,2)}, s[0:1], {KA_DBG}
    s_mov_b32 {sr(S_WS+2)}, {WS_BYTES}
    s_mov_b32 {sr(S_WS+3)}, 0x20000
    s_mov_b32 {sr(S_DBG+2)}, 256
    s_mov_b32 {sr(S_DBG+3)}, 0x20000
    v_lshrrev_b32 v1, 6, v0
    v_and_b32 v0, 63, v0
    s_getreg_b32 s4, hwreg(HW_REG_XCC_ID, 0, 4)
    v_readfirstlane_b32 {sr(S_W)}, v1
    s_and_b32 s4, s4, 7
    s_lshl_b32 s5, s4, 2
    v_mov_b32 v1, s5
    v_mov_b32 v2, 1
    v_mov_b32 v3, {gk.LMB + 8}
    s_cmp_lg_u32 {sr(S_W)}, 0
    s_waitcnt lgkmcnt(0)
    s_cbranch_scc1 L_notk
    v_cmp_eq_u32 vcc, 0, v0
    s_and_saveexec_b64 s[6:7], vcc
    buffer_atomic_add v2, v1, {sr(S_DBG,4)}, 0 offen sc0 sc1
    s_waitcnt vmcnt(0)
    ds_write_b32 v3, v2
    s_mov_b64 exec, s[6:7]
    L_notk:
    s_waitcnt lgkmcnt(0)
    s_barrier
    ds_read_b32 v2, v3
    s_lshl_b32 s6, 1, s4
    s_sub_u32 s6, s6, 1
    s_lshr_b32 s7, {rmask}, s4
    s_and_b32 s7, s7, 1
    s_mov_b32 s5, {rmask}
    s_cmp_eq_u32 s7, 1
    s_cselect_b32 s5, s5, {(~rmask) & 0xff}
    s_and_b32 s6, s6, s5
    s_bcnt1_i32_b32 {sr(S_IDX)}, s6
    s_and_b32 {sr(S_IDX)}, {sr(S_IDX)}, 3
    s_waitcnt lgkmcnt(0)
    v_readfirstlane_b32 s5, v2
    s_cmp_ge_u32 s5, 32
    s_cbranch_scc1 L_exit
    s_lshl_b32 {sr(S_RANK)}, {sr(S_IDX)}, 5
    s_add_u32 {sr(S_RANK)}, {sr(S_RANK)}, s5
    s_cmp_eq_u32 s7, 0
    s_cbranch_scc1 L_G
    """)
    if noR:
        a("s_branch L_exit")
    else:
        a(f"""
        s_mov_b32 {sr(rk.S_BUD)}, 400000
        s_lshr_b32 {sr(rk.S_G)}, {sr(S_RANK)}, 4
        s_and_b32 {sr(rk.S_M)}, {sr(S_RANK)}, 15
        """)
        rk.emit_R(a, S_DBG, C_RBAR*4)
        a("L_R_abort:")
        a("s_endpgm")
        a("L_R_done:")
        a(f"s_mov_b32 {sr(gk.S_J)}, {sr(S_IDX)}")
        gk.g_setup(a)
        gk.e2_setup_regs(a)
        gk.issue_ticket(a)
        a(f"s_mov_b32 {sr(gk.S_DONE)}, {(C_Q0+4)*4}")
        a("s_branch L_next")
    a("L_G:")
    a(f"s_mov_b32 {sr(gk.S_J)}, {sr(S_IDX)}")
    gk.g_setup(a)
    gk.issue_ticket(a)
    gk.ln_task(a, S_RANK)
    gk.e2_setup_regs(a)
    a(f"""
    s_lshr_b32 s4, {sr(S_RANK)}, 4
    s_add_u32 s4, s4, {C_LN}
    s_lshl_b32 {sr(gk.S_DONE)}, s4, 2
    s_branch L_next
    """)
    gk.g_loop(a)
    a("""
    L_abort:
    L_exit:
    s_endpgm
    """)
    a.lines.append(footer(name))
    return a.text()

if __name__ == "__main__":
    s = gen()
    open("recurrent_scan__memory_aug_recurrent_mem_tr__glu_gated_reglu__prompt.s", "w").write(s)
    print(len(s), s.count("\n"))
```

```python
from asmlib import *
from layout import *
import struct

def fbits(x):
    return struct.unpack("<I", struct.pack("<f", x))[0]

CFG = dict()
def LSC1(): return "" if CFG.get('nolsc1') else " sc1"
def SSC1(): return CFG.get('sflag', "" if CFG.get('nossc1') else " sc1")
def EPST(x): return "s_nop 0" if CFG.get('noepst') else x

S_W = 3
S_WS = 8
S_B = 12
S_AOFF, S_BOFF, S_BSTEP, S_M0A, S_M0B, S_CNT = 16, 17, 18, 19, 20, 21
S_GBUD, S_J, S_TK, S_T, S_MT, S_NT = 22, 23, 24, 25, 26, 27
S_COFF, S_DONE, S_M2 = 29, 40, 41
S_NCOFF, S_NDONE = 42, 43
S_A = 48
S_KIND, S_NKIND, S_PDONE, S_NCNT = 60, 61, 62, 63
S_SCH = 80
S_T0 = 30
S_OUT = 44
S_MASK = 52
S_DBG = 64
V_XA, V_WA, V_AOFF = 8, 10, 18
V_ROW0, V_SWZ = 19, 20
V_SIG, V_ONE, V_L4, V_OOB = 23, 24, 25, 26
V_EP = 30
V_FRAG = 32
V2_XD, V2_BD, V2_WA, V2_RW, V2_RR = 208, 212, 216, 220, 223
V2_XO, V2_L16 = 226, 227
V_AD, V_KMD, V_VD, V_NB = 228, 229, 230, 231
STAGE = 32768
LMB = 131072
LSC = LMB + 64

def XF16(p, i): return V_FRAG + 64*p + 4*i
def WF16(p, t): return V_FRAG + 64*p + 32 + 4*t
def ACC16(t, i): return (t*8 + i)*4
def frag_reads16(p, ring):
    hi = ring >> 1; base = (ring & 1)*STAGE
    xs = [f"ds_read_b128 {vr(XF16(p,i),4)}, {vr(V_XA + hi)} offset:{base + i*256}" for i in range(8)]
    ws = []
    for t in range(8):
        for sec in range(2):
            off = base + 16384 + (t >> 2)*8192 + (16*sec)*256
            ws.append(f"ds_read_b64_tr_b16 {vr(WF16(p,t) + 2*sec, 2)}, {vr(V_WA + 4*hi + (t & 3))} offset:{off}")
    return [ws[0], ws[1]] + xs + ws[2:]
def mfmas16(p, first, swap):
    out = []
    for t in range(8):
        for i in range(8):
            x, y = (XF16(p,i), WF16(p,t)) if swap else (WF16(p,t), XF16(p,i))
            out.append(f"v_mfma_f32_16x16x32_bf16 {ar(ACC16(t,i),4)}, {vr(x,4)}, {vr(y,4)}, {'0' if first else ar(ACC16(t,i),4)}")
    return out

def dma_ops(ring, vb):
    g = []
    base = ring*STAGE
    g.append([f"s_add_u32 m0, {sr(S_M0A)}, {base}", "s_nop 0",
              f"buffer_load_dwordx4 {vr(V_AOFF)}, {sr(S_A,4)}, {sr(S_AOFF)} offen{LSC1()} lds"])
    for j in range(1, 4):
        g.append([f"buffer_load_dwordx4 {vr(V_AOFF)}, {sr(S_A,4)}, {sr(S_AOFF)} offen offset:{j*1024}{LSC1()} lds"])
    g[-1].append(f"s_add_u32 {sr(S_AOFF)}, {sr(S_AOFF)}, 16384")
    g.append([f"s_add_u32 m0, {sr(S_M0B)}, {base}", "s_nop 0",
              f"buffer_load_dwordx4 {vr(vb)}, {sr(S_B,4)}, {sr(S_BOFF)} offen lds"])
    for j in range(1, 4):
        g.append([f"buffer_load_dwordx4 {vr(vb+j)}, {sr(S_B,4)}, {sr(S_BOFF)} offen offset:{j*1024} lds"])
    g[-1].append(f"s_add_u32 {sr(S_BOFF)}, {sr(S_BOFF)}, {sr(S_BSTEP)}")
    return g

def weave(main, slots):
    out = []
    for i, m in enumerate(main):
        out.append(m)
        if i in slots: out.extend(slots[i])
    return out

def place(slots, items, positions):
    for it, p in zip(items, positions):
        slots.setdefault(p, [])
        if isinstance(it, str): slots[p].append(it)
        else: slots[p].extend(it)

VB = 32 + 128 + 48
V_BW = 204

def stage16(a, ring, p, swap, first=False, dma=True, vm=16, next_reads=True):
    a("s_waitcnt lgkmcnt(0)" if vm is None else f"s_waitcnt vmcnt({vm}) lgkmcnt(0)")
    a("s_barrier")
    sl = {}
    if next_reads: place(sl, frag_reads16(p ^ 1, (ring+1) & 3), range(0, 48, 2))
    if dma: place(sl, dma_ops(ring, V_BW), range(3, 64, 8))
    for ln in weave(mfmas16(p, first, swap), sl): a(ln)

def signal_op(soff):
    return f"buffer_atomic_add {vr(V_ONE)}, {vr(V_SIG)}, {sr(S_WS,4)}, {soff} offen sc1"

NEP = 32
def e1_prologue(a):
    for ring in range(4):
        for g in dma_ops(ring, V_BW):
            for ln in g: a(ln)
    a("s_waitcnt vmcnt(24)")
    a("s_barrier")
    for ln in frag_reads16(0, 0): a(ln)
    pad_ops(a, NEP)

def pad_ops(a, n):
    for _ in range(n): a(f"buffer_store_dword {vr(V_ONE)}, {vr(V_OOB)}, {sr(S_WS,4)}, 0 offen")

def e1_body(a, swap, tag):
    a(f"L_f4{tag}:")
    tl_task_start(a)
    for r in range(4):
        a(f"s_waitcnt vmcnt({16 + NEP if r < 3 else 16}) lgkmcnt(0)")
        a("s_barrier")
        sl = {}
        place(sl, frag_reads16((r & 1) ^ 1, (r+1) & 3), range(0, 48, 2))
        place(sl, dma_ops(r, V_BW), range(3, 64, 8))
        if r == 3: place(sl, [signal_op(sr(S_PDONE))], [1])
        for ln in weave(mfmas16(r & 1, r == 0, swap), sl): a(ln)
    top = a.label("Lmid"); sw = a.label("Lsw"); back = a.label("Lswb")
    a(f"{top}:")
    a(f"s_cmp_eq_u32 {sr(S_CNT)}, 1")
    a(f"s_cbranch_scc1 {sw}")
    a(f"{back}:")
    for r in range(4): stage16(a, r, r & 1, swap)
    a(f"s_sub_u32 {sr(S_CNT)}, {sr(S_CNT)}, 1")
    a(f"s_cmp_lg_u32 {sr(S_CNT)}, 0")
    a(f"s_cbranch_scc1 {top}")
    a("s_branch L_e1ep")
    a(f"{sw}:")
    e1_next(a, back)

def e1_setup_regs(a):
    a(f"""
    v_and_b32 v1, 15, v0
    v_lshrrev_b32 v2, 4, v0         ; g
    v_lshlrev_b32 v4, 4, v1
    v_lshlrev_b32 v5, 12, v2
    v_add_u32 {vr(V_AD)}, v4, v5    ; g*4096 + i*16
    s_lshr_b32 s4, {sr(S_W)}, 1
    s_lshl_b32 s5, s4, 11
    v_add_u32 {vr(V_XA)}, s5, {vr(V_AD)}
    v_add_u32 {vr(V_XA+1)}, 0x10000, {vr(V_XA)}
    v_mov_b32 {vr(V_EP)}, {vr(V_XA)}
    v_bfe_u32 v3, v0, 2, 2          ; r
    v_lshlrev_b32 v4, 2, v2         ; 4g
    v_add_u32 v4, v4, v3            ; k
    v_and_b32 v6, 7, v4             ; k&7
    v_lshlrev_b32 v4, 8, v4         ; k*256
    v_and_b32 v5, 3, v0
    v_lshlrev_b32 v5, 3, v5         ; c*8
    v_add_u32 v4, v4, v5
    s_and_b32 s5, {sr(S_W)}, 1
    s_lshl_b32 s5, s5, 2            ; 4wn
    """)
    for tl in range(4):
        a(f"""
        s_add_u32 s6, s5, {tl}
        v_xor_b32 v5, s6, v6
        v_lshlrev_b32 v5, 5, v5
        v_add_u32 {vr(V_WA+tl)}, v4, v5
        v_add_u32 {vr(V_WA+4+tl)}, 0x10000, {vr(V_WA+tl)}
        """)
    a(f"""
    v_lshlrev_b32 v4, 4, v0
    s_lshl_b32 s5, {sr(S_W)}, 12
    v_add_u32 {vr(V_AOFF)}, s5, v4
    v_lshrrev_b32 v1, 4, v0
    v_and_b32 v2, 15, v0
    """)
    for j in range(2):
        a(f"""
        v_add_u32 v3, {4*j}, v1
        v_lshlrev_b32 v3, 1, v3
        v_xor_b32 v3, v2, v3
        v_lshlrev_b32 {vr(V_SWZ+j)}, 4, v3
        """)
    a(f"""
    s_lshr_b32 s5, {sr(S_W)}, 1
    s_lshl_b32 s5, s5, 4
    v_add_u32 {vr(V_ROW0)}, s5, v1
    s_lshl_b32 {sr(S_M0A)}, {sr(S_W)}, 12
    s_and_b32 s6, {sr(S_W)}, 1
    s_lshl_b32 s6, s6, 13
    s_lshr_b32 s7, {sr(S_W)}, 1
    s_lshl_b32 s7, s7, 12
    s_add_u32 s6, s6, s7
    s_add_u32 {sr(S_M0B)}, s6, 16384
    s_mov_b32 {sr(S_A)}, {sr(S_WS)}
    s_mov_b32 {sr(S_A+1)}, {sr(S_WS+1)}
    s_mov_b32 {sr(S_A+2)}, 0
    s_mov_b32 {sr(S_A+3)}, 0x20000
    """)

def e1_bvoff(a, s_ldb):
    a(f"""
    v_mul_u32_u24 v1, {sr(s_ldb)}, {vr(V_ROW0)}
    s_lshl_b32 s4, {sr(s_ldb)}, 2
    s_sub_u32 s4, s4, 1024
    v_add_u32 {vr(V_BW)}, v1, {vr(V_SWZ)}
    v_add3_u32 {vr(V_BW+1)}, v1, {vr(V_SWZ+1)}, s4
    s_lshl_b32 s5, s4, 1
    v_add3_u32 {vr(V_BW+2)}, v1, {vr(V_SWZ)}, s5
    s_add_u32 s5, s5, s4
    v_add3_u32 {vr(V_BW+3)}, v1, {vr(V_SWZ+1)}, s5
    s_lshl_b32 {sr(S_BSTEP)}, {sr(s_ldb)}, 5
    """)

def ep_chunks(a):
    a(f"""
    s_and_b32 s5, {sr(S_W)}, 1
    s_lshl_b32 s5, s5, 15
    s_add_u32 s7, {sr(S_COFF)}, s5
    s_nop 4
    """)
    tmp = 160; n = 0
    for p in range(4):
        a(f"s_add_u32 s6, s7, {(16*(p>>1) + 4*(p&1))*4096}")
        for i in range(8):
            b = tmp + (n % 3)*12; n += 1
            for tt in range(2):
                for r in range(4):
                    a(f"v_accvgpr_read_b32 {vr(b+4*tt+r)}, {ar(ACC16(2*p+tt,i)+r)}")
            for r in range(4):
                a(f"v_cvt_pk_bf16_f32 {vr(b+8+r)}, {vr(b+2*r)}, {vr(b+2*r+1)}")
            a(EPST(f"buffer_store_dwordx4 {vr(b+8,4)}, {vr(V_EP)}, {sr(S_WS,4)}, s6 offen offset:{i*256}{SSC1()}"))

def ep_vt(a):
    a(f"""
    s_lshr_b32 s5, {sr(S_W)}, 1
    s_lshl_b32 s5, s5, 20             ; wm*16*65536
    s_add_u32 s7, {sr(S_COFF)}, s5
    s_and_b32 s5, {sr(S_W)}, 1
    s_lshl_b32 s5, s5, 10             ; 64 wn * 16
    s_add_u32 s7, s7, s5
    s_nop 4
    """)
    tmp = 160; n = 0
    for P in range(4):
        a(f"s_add_u32 s6, s7, {4*P*65536}")
        for t in range(8):
            b = tmp + (n % 3)*12; n += 1
            for ii in range(2):
                for r in range(4):
                    a(f"v_accvgpr_read_b32 {vr(b+4*ii+r)}, {ar(ACC16(t,2*P+ii)+r)}")
            for r in range(4):
                a(f"v_cvt_pk_bf16_f32 {vr(b+8+r)}, {vr(b+2*r)}, {vr(b+2*r+1)}")
            a(EPST(f"buffer_store_dwordx4 {vr(b+8,4)}, {vr(V_VD)}, {sr(S_WS,4)}, s6 offen offset:{(t>>2)*2048 + (t&3)*256}{SSC1()}"))

def ep_gu(a):
    a(f"""
    s_and_b32 s5, {sr(S_W)}, 1
    s_lshl_b32 s5, s5, 15
    s_add_u32 s7, {sr(S_COFF)}, s5
    s_nop 4
    """)
    tmp = 160; n = 0
    for p in range(2):
        a(f"s_add_u32 s6, s7, {4*p*4096}")
        for i in range(8):
            b = tmp + (n % 2)*20; n += 1
            for tt in range(2):
                for r in range(4):
                    a(f"v_accvgpr_read_b32 {vr(b+4*tt+r)}, {ar(ACC16(2*p+tt,i)+r)}")
                    a(f"v_accvgpr_read_b32 {vr(b+8+4*tt+r)}, {ar(ACC16(4+2*p+tt,i)+r)}")
            for r in range(8):
                a(f"v_max_f32 {vr(b+r)}, 0, {vr(b+r)}")
            for r in range(0, 8, 2):
                a(f"v_pk_mul_f32 {vr(b+r,2)}, {vr(b+r,2)}, {vr(b+8+r,2)}")
            for r in range(4):
                a(f"v_cvt_pk_bf16_f32 {vr(b+16+r)}, {vr(b+2*r)}, {vr(b+2*r+1)}")
            a(f"buffer_store_dwordx4 {vr(b+16,4)}, {vr(V_EP)}, {sr(S_WS,4)}, s6 offen offset:{i*256}{SSC1()}")

    pad_ops(a, NEP - 16)

def ep_down1(a):
    c = fbits(-1.4426950408889634)
    a(f"""
    s_and_b32 s5, {sr(S_W)}, 1
    s_lshl_b32 s5, s5, 15
    s_add_u32 s7, {sr(S_COFF)}, s5
    s_mov_b32 s4, {c:#x}
    s_nop 4
    """)
    tmp = 160; n = 0
    for p in range(4):
        a(f"s_add_u32 s6, s7, {(16*(p>>1) + 4*(p&1))*4096}")
        for i in range(8):
            b = tmp + (n % 2)*20; n += 1
            for tt in range(2):
                for r in range(4):
                    a(f"v_accvgpr_read_b32 {vr(b+4*tt+r)}, {ar(ACC16(2*p+tt,i)+r)}")
            for r in range(8): a(f"v_mul_f32 {vr(b+8+r)}, s4, {vr(b+r)}")
            for r in range(8): a(f"v_exp_f32 {vr(b+8+r)}, {vr(b+8+r)}")
            for r in range(8): a(f"v_add_f32 {vr(b+8+r)}, 1.0, {vr(b+8+r)}")
            for r in range(8): a(f"v_rcp_f32 {vr(b+8+r)}, {vr(b+8+r)}")
            for r in range(8): a(f"v_mul_f32 {vr(b+r)}, {vr(b+r)}, {vr(b+8+r)}")
            for r in range(4): a(f"v_cvt_pk_bf16_f32 {vr(b+16+r)}, {vr(b+2*r)}, {vr(b+2*r+1)}")
            a(f"buffer_store_dwordx4 {vr(b+16,4)}, {vr(V_EP)}, {sr(S_WS,4)}, s6 offen offset:{i*256} sc1")

def load_srd(a, srd, ka, nbytes):
    a(f"""
    s_load_dwordx2 {sr(srd,2)}, s[0:1], {ka}
    s_mov_b32 {sr(srd+2)}, {nbytes}
    s_mov_b32 {sr(srd+3)}, 0x20000
    """)

def X2(r, i): return 32 + 32*r + 4*i
def W2(p, t): return 160 + 16*p + 4*t
def ACC2(t, i): return (i*4 + t)*4
def e2_tr(p, slot):
    return [f"ds_read_b64_tr_b16 {vr(W2(p,t) + 2*sec, 2)}, {vr(V2_WA + t)} offset:{slot*4096 + sec*2048}" for t in range(4) for sec in range(2)]
PITCH2 = 8192
def e2_wdma(slot):
    g = [[f"s_add_u32 m0, {sr(S_M2)}, {slot*4096}", "s_nop 0",
          f"buffer_load_dwordx4 {vr(V2_BD)}, {sr(S_B,4)}, {sr(S_BOFF)} offen lds"]]
    for j in range(1, 4):
        g.append([f"buffer_load_dwordx4 {vr(V2_BD+j)}, {sr(S_B,4)}, {sr(S_BOFF)} offen offset:{j*1024} lds"])
    g[-1].append(f"s_add_u32 {sr(S_BOFF)}, {sr(S_BOFF)}, {32*PITCH2}")
    return g
def e2_xload(r, i):
    return f"buffer_load_dwordx4 {vr(X2(r,i),4)}, {vr(V2_XD + (i >> 1))}, {sr(S_WS,4)}, {sr(S_AOFF)} offen offset:{(i & 1)*256}{LSC1()}"
def e2_stage(a, r, swap, first=False, issue=True, vm=32, nxt=True):
    p = r & 1
    a(f"s_waitcnt vmcnt({vm}) lgkmcnt(0)")
    main = []
    for i in range(8):
        for t in range(4):
            x, y = (X2(r,i), W2(p,t)) if swap else (W2(p,t), X2(r,i))
            main.append(f"v_mfma_f32_16x16x32_bf16 {ar(ACC2(t,i),4)}, {vr(x,4)}, {vr(y,4)}, {'0' if first else ar(ACC2(t,i),4)}")
    sl = {}
    if issue: place(sl, e2_wdma(r), [0, 1, 2, 3])
    if nxt: place(sl, e2_tr(p ^ 1, (r+1) & 3), [4, 5, 6, 8, 9, 10, 12, 13])
    if issue:
        for i in range(8): place(sl, [e2_xload(r, i)], [4*i + 3])
        place(sl, [f"s_add_u32 {sr(S_AOFF)}, {sr(S_AOFF)}, 16384"], [31])
    for ln in weave(main, sl): a(ln)

def e2_wpro(a):
    for s in range(4):
        for g in e2_wdma(s):
            for ln in g: a(ln)

def e2_main8(a, swap):
    for s in range(4):
        for i in range(8): a(e2_xload(s, i))
        a(f"s_add_u32 {sr(S_AOFF)}, {sr(S_AOFF)}, 16384")
    a("s_waitcnt vmcnt(44)")
    for ln in e2_tr(0, 0): a(ln)
    for r, vm in enumerate((24, 28, 32, 32)): e2_stage(a, r, swap, first=(r == 0), vm=vm)
    e2_stage(a, 0, swap, issue=False, vm=32)
    e2_stage(a, 1, swap, issue=False, vm=20)
    e2_stage(a, 2, swap, issue=False, vm=8)
    e2_stage(a, 3, swap, issue=False, vm=0, nxt=False)

R2 = 32
def e2_reduce(a):
    a("s_nop 7")
    for dd in range(1, 4):
        for ii in range(2):
            for t in range(4):
                a(f"ds_write_b128 {vr(V2_RW + dd-1)}, {ar(ACC2(t, 2*dd+ii), 4)} offset:{(ii*4+t)*1024}")
    for k in range(8):
        for r in range(4): a(f"v_accvgpr_read_b32 {vr(R2 + 4*k + r)}, {ar(ACC2(k & 3, k >> 2) + r)}")
    a("s_waitcnt lgkmcnt(0)")
    a("s_barrier")
    P = 64
    for dd in range(3):
        for k in range(8):
            a(f"ds_read_b128 {vr(P + 32*dd + 4*k, 4)}, {vr(V2_RR + dd)} offset:{k*1024}")
        a(f"s_waitcnt lgkmcnt({8 if dd > 0 else 15})") if dd > 0 else None
        if dd > 0:
            for k in range(16):
                a(f"v_pk_add_f32 {vr(R2 + 2*k, 2)}, {vr(R2 + 2*k, 2)}, {vr(P + 32*(dd-1) + 2*k, 2)}")
    a("s_waitcnt lgkmcnt(0)")
    for k in range(16):
        a(f"v_pk_add_f32 {vr(R2 + 2*k, 2)}, {vr(R2 + 2*k, 2)}, {vr(P + 64 + 2*k, 2)}")

def e2_setup_regs(a):
    a(f"""
    v_lshlrev_b32 {vr(V2_L16)}, 4, v0
    """)
    for dd in range(4):
        a(f"""
        s_add_u32 s4, {sr(S_W)}, {dd}
        s_and_b32 s4, s4, 3
        s_lshl_b32 s4, s4, 9
        v_add_u32 {vr(V2_XD+dd)}, s4, {vr(V_AD)}
        """)
    a(f"""
    v_lshrrev_b32 v1, 3, v0
    v_lshlrev_b32 v1, 13, v1
    v_bfe_u32 v2, v0, 1, 2
    v_lshrrev_b32 v3, 4, v0
    v_xor_b32 v2, v2, v3
    v_lshlrev_b32 v2, 5, v2
    v_add_u32 v1, v1, v2
    v_and_b32 v2, 1, v0
    v_lshlrev_b32 v2, 4, v2
    v_add_u32 {vr(V2_BD)}, v1, v2
    """)
    for j in range(1, 4): a(f"v_add_u32 {vr(V2_BD+j)}, {j*(8*PITCH2-1024)}, {vr(V2_BD)}")
    a(f"""
    v_lshrrev_b32 v1, 4, v0
    v_lshlrev_b32 v1, 2, v1
    v_bfe_u32 v2, v0, 2, 2
    v_add_u32 v1, v1, v2              ; k
    v_bfe_u32 v2, v1, 1, 2            ; (k>>1)&3
    v_lshlrev_b32 v1, 7, v1
    v_and_b32 v3, 3, v0
    v_lshlrev_b32 v3, 3, v3
    v_add_u32 v1, v1, v3
    s_lshl_b32 s4, {sr(S_W)}, 14
    v_add_u32 v1, s4, v1
    """)
    for tl in range(4):
        a(f"""
        v_xor_b32 v3, {tl}, v2
        v_lshlrev_b32 v3, 5, v3
        v_add_u32 {vr(V2_WA+tl)}, v1, v3
        """)
    a(f"""
    s_lshl_b32 s4, {sr(S_W)}, 14
    v_add_u32 {vr(V2_RW)}, s4, {vr(V2_L16)}
    v_add_u32 {vr(V2_RW+1)}, 8192, {vr(V2_RW)}
    s_lshl_b32 s4, {sr(S_W)}, 13
    s_add_u32 s4, s4, 65536
    v_add_u32 {vr(V2_RW+2)}, s4, {vr(V2_L16)}
    """)
    for dd in range(1, 4):
        a(f"""
        s_sub_u32 s4, {sr(S_W)}, {dd}
        s_and_b32 s4, s4, 3
        """)
        if dd < 3:
            a(f"""
            s_lshl_b32 s4, s4, 14
            s_add_u32 s4, s4, {(dd-1)*8192}
            """)
        else:
            a(f"""
            s_lshl_b32 s4, s4, 13
            s_add_u32 s4, s4, 65536
            """)
        a(f"v_add_u32 {vr(V2_RR+dd-1)}, s4, {vr(V2_L16)}")

def ep_kv0(a, swap):
    Q = 96
    if not swap:
        for ii in range(2):
            for pr in range(2):
                q = Q + 4*(ii*2+pr); b = R2 + (ii*4 + 2*pr)*4
                for d in range(4): a(f"v_cvt_pk_bf16_f32 {vr(q+d)}, {vr(b+2*d)}, {vr(b+2*d+1)}")
        a(f"s_add_u32 s5, {sr(S_COFF)}, 16384")
        for ii in range(2):
            for pr in range(2):
                so = sr(S_COFF) if pr == 0 else "s5"
                a(f"buffer_store_dwordx4 {vr(Q+4*(ii*2+pr),4)}, {vr(V_AD)}, {sr(S_WS,4)}, {so} offen offset:{ii*256} sc1")
    else:
        for t in range(4):
            q = Q + 4*t
            for ii in range(2):
                b = R2 + (ii*4 + t)*4
                a(f"v_cvt_pk_bf16_f32 {vr(q+2*ii)}, {vr(b)}, {vr(b+1)}")
                a(f"v_cvt_pk_bf16_f32 {vr(q+2*ii+1)}, {vr(b+2)}, {vr(b+3)}")
        for t in range(4):
            a(f"buffer_store_dwordx4 {vr(Q+4*t,4)}, {vr(V_VD)}, {sr(S_WS,4)}, {sr(S_COFF)} offen offset:{t*256} sc1")

def kv0_setup(a):
    l1 = a.label("Lk0"); l2 = a.label("Lk0"); l3 = a.label("Lk0")
    a(f"""
    s_lshl_b32 s4, {sr(S_J)}, 5
    s_add_u32 s5, s4, {sr(S_T)}
    s_mov_b32 {sr(S_MT)}, 0                       ; half
    s_mov_b32 {sr(S_DONE)}, {OFF_CNT + CN_KV0A*256}
    s_cmp_eq_u32 {sr(S_KIND)}, 0
    s_cbranch_scc1 {l1}
    s_add_u32 s5, s5, {sr(S_T)}
    s_add_u32 s5, s5, {sr(S_KIND)}
    s_sub_u32 s5, s5, 1
    s_mov_b32 {sr(S_MT)}, 1
    s_mov_b32 {sr(S_DONE)}, {OFF_CNT + CN_KV*256}
    {l1}:
    s_and_b32 {sr(S_NT)}, s5, 63
    s_lshr_b32 s4, {sr(S_J)}, 1
    s_lshl_b32 s4, s4, 3
    s_add_u32 s4, s4, {KA_WK}
    s_load_dwordx2 {sr(S_B,2)}, s[0:1], s4
    s_mov_b32 {sr(S_B+2)}, {8*MB}
    s_mov_b32 {sr(S_B+3)}, 0x20000
    s_lshl_b32 {sr(S_AOFF)}, {sr(S_W)}, 17
    s_lshl_b32 s4, {sr(S_MT)}, 11
    s_add_u32 {sr(S_AOFF)}, {sr(S_AOFF)}, s4
    s_add_u32 {sr(S_AOFF)}, {sr(S_AOFF)}, {OFF_XN}
    s_lshl_b32 {sr(S_BOFF)}, {sr(S_W)}, 21
    s_lshl_b32 s4, {sr(S_NT)}, 7
    s_add_u32 {sr(S_BOFF)}, {sr(S_BOFF)}, s4
    s_lshl_b32 {sr(S_M2)}, {sr(S_W)}, 14
    s_cmp_ge_u32 {sr(S_J)}, 2
    s_cbranch_scc1 {l2}
    s_lshl_b32 s4, {sr(S_NT)}, 15
    s_lshl_b32 s5, {sr(S_MT)}, 11
    s_add_u32 s4, s4, s5
    s_lshl_b32 s5, {sr(S_W)}, 9
    s_add_u32 s4, s4, s5
    s_add_u32 {sr(S_COFF)}, s4, {OFF_KX}
    s_branch {l3}
    {l2}:
    s_lshl_b32 s4, {sr(S_MT)}, 2
    s_add_u32 s4, s4, {sr(S_W)}
    s_lshl_b32 s4, s4, 18
    s_lshl_b32 s5, {sr(S_NT)}, 10
    s_add_u32 s4, s4, s5
    s_add_u32 {sr(S_COFF)}, s4, {OFF_VT}
    {l3}:
    s_waitcnt lgkmcnt(0)
    """)

def kv0_loop(a):
    a("L_kv0:")
    tl_stamp(a, 1)
    a(f"s_cmp_ge_u32 {sr(S_J)}, 2")
    a("s_cbranch_scc1 L_kv0V")
    e2_main8(a, False)
    e2_reduce(a)
    ep_kv0(a, False)
    a("s_branch L_kv0done")
    a("L_kv0V:")
    e2_main8(a, True)
    e2_reduce(a)
    ep_kv0(a, True)
    a("L_kv0done:")
    drain_signal(a)
    if CFG.get('tl'):
        a(f"s_lshl_b32 s68, {sr(S_KIND)}, 4")
        a("s_or_b32 s68, s68, 8")
        tl_store_nowait(a, "s68")
    a(f"""
    s_add_u32 {sr(S_KIND)}, {sr(S_KIND)}, 1
    s_cmp_ge_u32 {sr(S_T)}, 16
    s_cbranch_scc1 L_kv0end
    s_cmp_ge_u32 {sr(S_KIND)}, 3
    s_cbranch_scc1 L_kv0end
    """)
    kv0_setup(a)
    e2_wpro(a)
    a("s_branch L_kv0")
    a("L_kv0end:")

V3_TR, V3_WD, V3_XO, V3_RW, V3_RR, V_PA, V_PT, V_PV = 208, 210, 211, 212, 213, 214, 215, 216
X3 = lambda p, ii: 32 + ((p & 15)*2 + ii)*4
W3 = lambda p, t: (p*2 + t)*4
ACC3, XG3 = 160, 176
S_CB, S_SEG, S_NSEG, S_XO, S_GO, S_NAOFF, S_RDY = 30, 31, 32, 33, 34, 35, 36
S_MSK = 80

def e3_setup(a):
    load_srd(a, S_B, KA_WO, 8*MB)
    a(f"""
    v_lshrrev_b32 v1, 2, v0
    v_lshlrev_b32 v1, 11, v1
    v_and_b32 v2, 3, v0
    v_lshlrev_b32 v2, 4, v2
    v_add_u32 {vr(V3_WD)}, v1, v2                 ; (l>>2)*2048 + (l&3)*16
    v_lshrrev_b32 v1, 4, v0
    v_lshlrev_b32 v1, 2, v1
    v_bfe_u32 v2, v0, 2, 2
    v_add_u32 v1, v1, v2                          ; k = 4g + r
    v_lshlrev_b32 v1, 6, v1
    v_and_b32 v2, 3, v0
    v_lshlrev_b32 v2, 3, v2
    v_add_u32 v1, v1, v2
    s_lshl_b32 s4, {sr(S_W)}, 14
    v_add_u32 {vr(V3_TR)}, s4, v1
    v_add_u32 {vr(V3_TR+1)}, 0x10000, {vr(V3_TR)}
    v_and_b32 v1, 15, v0
    v_lshlrev_b32 v1, 11, v1
    v_lshrrev_b32 v2, 4, v0
    v_lshlrev_b32 v2, 3, v2
    v_add_u32 {vr(V3_XO)}, v1, v2                 ; i*2048 + g*8
    v_lshlrev_b32 v1, 4, v0
    s_lshl_b32 s4, {sr(S_W)}, 12
    v_add_u32 {vr(V3_RW)}, s4, v1
    s_lshl_b32 s4, {sr(S_W)}, 10
    v_add_u32 {vr(V3_RR)}, s4, v1
    s_lshl_b32 {sr(S_BOFF)}, {sr(S_W)}, 21
    s_lshl_b32 s4, {sr(S_CB)}, 6
    s_add_u32 {sr(S_BOFF)}, {sr(S_BOFF)}, s4
    s_lshl_b32 {sr(S_M2)}, {sr(S_W)}, 14
    s_waitcnt lgkmcnt(0)
    """)
    def batch(b):
        for i in range(16):
            a(f"""
            s_add_u32 m0, {sr(S_M2)}, {(b & 1)*65536 + i*1024}
            s_nop 0
            buffer_load_dwordx4 {vr(V3_WD)}, {sr(S_B,4)}, {sr(S_BOFF)} offen lds
            s_add_u32 {sr(S_BOFF)}, {sr(S_BOFF)}, {16*2048}
            """)
    def reads(b):
        n = 0
        for p in range(8):
            for t in range(2):
                for sec in range(2):
                    a(f"ds_read_b64_tr_b16 {ar(W3(8*b+p, t) + 2*sec, 2)}, {vr(V3_TR + (b & 1))} offset:{p*2048 + sec*1024 + t*32}")
                    n += 1
                    if n % 8 == 0: a("s_waitcnt lgkmcnt(4)")
        a("s_waitcnt lgkmcnt(0)")
    batch(0); batch(1)
    for b in range(4):
        a(f"s_waitcnt vmcnt({16 if b < 3 else 0})")
        reads(b)
        if b < 2: batch(b + 2)
    a("s_barrier")
    load_srd(a, S_B, KA_X, 4*MB)
    load_srd(a, S_OUT, KA_OUT, 4*MB)
    a(f"""
    s_mov_b32 {sr(S_A)}, {sr(S_WS)}
    s_mov_b32 {sr(S_A+1)}, {sr(S_WS+1)}
    s_mov_b32 {sr(S_A+3)}, 0x20000
    s_waitcnt lgkmcnt(0)
    """)

def e3_xbase(a, dst, seg):
    a(f"""
    s_lshr_b32 s4, {sr(seg)}, 3
    s_lshl_b32 s4, s4, 21
    s_and_b32 s5, {sr(seg)}, 7
    s_lshl_b32 s5, s5, 9
    s_add_u32 s4, s4, s5
    s_lshl_b32 s5, {sr(S_W)}, 19
    s_add_u32 s4, s4, s5
    s_add_u32 {sr(dst)}, s4, {OFF_OX}
    """)

def e3_polladdr(a, seg):
    a(f"""
    s_lshl_b32 s4, {sr(seg)}, 8
    s_add_u32 s4, s4, {OFF_CNT + CN_AT*256}
    v_mov_b32 {vr(V_PA)}, s4
    s_lshr_b32 s5, {sr(seg)}, 3
    s_lshl_b32 s5, s5, 8
    s_add_u32 s5, s5, {OFF_CNT + CN_DN*256}
    v_writelane_b32 {vr(V_PA)}, s5, 1
    """)

def e3_ld(p, ii, srd, soff):
    return f"buffer_load_dwordx4 {vr(X3(p,ii),4)}, {vr(V_AD)}, {sr(srd,4)}, {sr(soff)} offen offset:{ii*256} sc1"

def e3_loop(a):
    a(f"""
    v_mov_b32 {vr(V_PT)}, 8
    s_mov_b32 s4, 4
    v_writelane_b32 {vr(V_PT)}, s4, 1
    s_ff1_i32_b64 {sr(S_SEG)}, {sr(S_MSK,2)}
    s_bitset0_b64 {sr(S_MSK,2)}, {sr(S_SEG)}
    L_e3cold:
    """)
    tl_stamp(a, 0)
    e3_polladdr(a, S_SEG)
    top = a.label("Le3p"); ok = a.label("Le3o")
    a(f"""
    {top}:
    buffer_load_dword {vr(V_PV)}, {vr(V_PA)}, {sr(S_WS,4)}, 0 offen sc1
    s_waitcnt vmcnt(0)
    v_cmp_ge_u32 vcc, {vr(V_PV)}, {vr(V_PT)}
    s_cmp_eq_u64 vcc, -1
    s_cbranch_scc1 {ok}
    s_sleep 8
    s_sub_u32 {sr(S_GBUD)}, {sr(S_GBUD)}, 1
    s_cbranch_scc0 {top}
    s_branch L_abort
    {ok}:
    """)
    e3_xbase(a, S_AOFF, S_SEG)
    for p in range(16):
        a(e3_ld(p, 0, S_WS, S_AOFF)); a(e3_ld(p, 1, S_WS, S_AOFF))
        a(f"s_add_u32 {sr(S_AOFF)}, {sr(S_AOFF)}, 16384")
    pad_ops(a, 1)
    a("L_e3top:")
    tl_stamp(a, 1)
    a(f"""
    s_lshl_b32 s4, {sr(S_SEG)}, 16
    s_lshr_b32 s5, {sr(S_W)}, 1
    s_lshl_b32 s6, s5, 15
    s_add_u32 s4, s4, s6
    s_lshl_b32 s6, {sr(S_CB)}, 6
    s_add_u32 s4, s4, s6
    s_and_b32 s7, {sr(S_W)}, 1
    s_lshl_b32 s6, s7, 5
    s_add_u32 {sr(S_XO)}, s4, s6
    s_lshr_b32 s4, {sr(S_SEG)}, 3
    s_lshl_b32 s4, s4, 19
    s_lshl_b32 s6, {sr(S_CB)}, 14
    s_add_u32 s4, s4, s6
    s_and_b32 s6, {sr(S_SEG)}, 7
    s_lshl_b32 s6, s6, 9
    s_add_u32 s4, s4, s6
    s_lshl_b32 s6, s5, 8
    s_add_u32 s4, s4, s6
    s_lshl_b32 s6, s7, 3
    s_add_u32 s4, s4, s6
    s_add_u32 {sr(S_GO)}, s4, {OFF_GS}
    s_ff1_i32_b64 {sr(S_NSEG)}, {sr(S_MSK,2)}
    s_max_i32 s7, {sr(S_NSEG)}, 0
    s_mov_b32 {sr(S_T0+8)}, s7
    """)
    e3_polladdr(a, S_T0+8)
    a(f"""
    buffer_load_dwordx2 {vr(XG3,2)}, {vr(V3_XO)}, {sr(S_B,4)}, {sr(S_XO)} offen
    buffer_load_dwordx2 {vr(XG3+2,2)}, {vr(V_AD)}, {sr(S_WS,4)}, {sr(S_GO)} offen sc1
    buffer_load_dword {vr(V_PV)}, {vr(V_PA)}, {sr(S_WS,4)}, 0 offen sc1
    """)
    e3_xbase(a, S_NAOFF, S_T0+8)
    for p in range(32):
        a(f"s_waitcnt vmcnt({34 if p < 16 else 30})")
        if p == 16:
            a(f"""
            v_cmp_ge_u32 vcc, {vr(V_PV)}, {vr(V_PT)}
            s_cmp_eq_u64 vcc, -1
            s_cselect_b32 {sr(S_RDY)}, 1, 0
            s_cmp_lt_i32 {sr(S_NSEG)}, 0
            s_cselect_b32 {sr(S_RDY)}, 0, {sr(S_RDY)}
            s_cmp_eq_u32 {sr(S_RDY)}, 1
            s_cselect_b32 {sr(S_A+2)}, {WS_BYTES}, 0
            """)
        for ii in range(2):
            for t in range(2):
                acc = ACC3 + (ii*2 + t)*4
                a(f"v_mfma_f32_16x16x32_bf16 {vr(acc,4)}, {ar(W3(p,t),4)}, {vr(X3(p,ii),4)}, {'0' if p == 0 else vr(acc,4)}")
        if p < 16:
            a(e3_ld(p, 0, S_WS, S_AOFF)); a(e3_ld(p, 1, S_WS, S_AOFF))
            a(f"s_add_u32 {sr(S_AOFF)}, {sr(S_AOFF)}, 16384")
        else:
            a(e3_ld(p, 0, S_A, S_NAOFF)); a(e3_ld(p, 1, S_A, S_NAOFF))
            a(f"s_add_u32 {sr(S_NAOFF)}, {sr(S_NAOFF)}, 16384")
    a("s_nop 7")
    for q in range(4): a(f"ds_write_b128 {vr(V3_RW)}, {vr(ACC3+4*q,4)} offset:{q*1024}")
    a("s_waitcnt lgkmcnt(0)")
    a("s_barrier")
    for src in range(4): a(f"ds_read_b128 {vr(ACC3+4*src,4)}, {vr(V3_RR)} offset:{src*4096}")
    T = 180
    a(f"""
    v_xor_b32 {vr(V3_RW)}, 16384, {vr(V3_RW)}
    v_xor_b32 {vr(V3_RR)}, 16384, {vr(V3_RR)}
    v_lshlrev_b32 {vr(T)}, 16, {vr(XG3)}
    v_and_b32 {vr(T+1)}, 0xffff0000, {vr(XG3)}
    v_lshlrev_b32 {vr(T+2)}, 16, {vr(XG3+1)}
    v_and_b32 {vr(T+3)}, 0xffff0000, {vr(XG3+1)}
    v_lshlrev_b32 {vr(T+4)}, 16, {vr(XG3+2)}
    v_and_b32 {vr(T+5)}, 0xffff0000, {vr(XG3+2)}
    v_lshlrev_b32 {vr(T+6)}, 16, {vr(XG3+3)}
    v_and_b32 {vr(T+7)}, 0xffff0000, {vr(XG3+3)}
    s_waitcnt lgkmcnt(0)
    v_pk_add_f32 {vr(ACC3,2)}, {vr(ACC3,2)}, {vr(ACC3+4,2)}
    v_pk_add_f32 {vr(ACC3+2,2)}, {vr(ACC3+2,2)}, {vr(ACC3+6,2)}
    v_pk_add_f32 {vr(ACC3+8,2)}, {vr(ACC3+8,2)}, {vr(ACC3+12,2)}
    v_pk_add_f32 {vr(ACC3+10,2)}, {vr(ACC3+10,2)}, {vr(ACC3+14,2)}
    v_pk_add_f32 {vr(ACC3,2)}, {vr(ACC3,2)}, {vr(ACC3+8,2)}
    v_pk_add_f32 {vr(ACC3+2,2)}, {vr(ACC3+2,2)}, {vr(ACC3+10,2)}
    v_fma_f32 {vr(T)}, {vr(ACC3)}, {vr(T+4)}, {vr(T)}
    v_fma_f32 {vr(T+1)}, {vr(ACC3+1)}, {vr(T+5)}, {vr(T+1)}
    v_fma_f32 {vr(T+2)}, {vr(ACC3+2)}, {vr(T+6)}, {vr(T+2)}
    v_fma_f32 {vr(T+3)}, {vr(ACC3+3)}, {vr(T+7)}, {vr(T+3)}
    v_cvt_pk_bf16_f32 {vr(T+8)}, {vr(T)}, {vr(T+1)}
    v_cvt_pk_bf16_f32 {vr(T+9)}, {vr(T+2)}, {vr(T+3)}
    buffer_store_dwordx2 {vr(T+8,2)}, {vr(V3_XO)}, {sr(S_OUT,4)}, {sr(S_XO)} offen
    """)
    if CFG.get('tl'):
        a(f"s_lshl_b32 s68, {sr(S_SEG)}, 4")
        a("s_or_b32 s68, s68, 7")
        tl_store_nowait(a, "s68")
    a(f"""
    s_cmp_lt_i32 {sr(S_NSEG)}, 0
    s_cbranch_scc1 L_e3end
    s_mov_b32 {sr(S_SEG)}, {sr(S_NSEG)}
    s_bitset0_b64 {sr(S_MSK,2)}, {sr(S_SEG)}
    s_cmp_eq_u32 {sr(S_RDY)}, 0
    s_cbranch_scc1 L_e3cold
    s_mov_b32 {sr(S_AOFF)}, {sr(S_NAOFF)}
    """)
    tl_stamp(a, 0)
    a("""
    s_branch L_e3top
    L_e3end:
    s_waitcnt vmcnt(0)
    """)

AQ, AK, AKM, AV, AVM = 32, 64, 96, 112, 144
A_ONE = 156
ASC = 160
APX, APA, APB = 180, 188, 196
def att_setup_regs(a):
    a(f"""
    v_and_b32 v1, 15, v0
    v_lshrrev_b32 v2, 4, v0
    v_lshlrev_b32 v4, 16, v2
    v_lshlrev_b32 v5, 4, v1
    v_add_u32 {vr(V_VD)}, v4, v5                  ; g*65536 + n*16
    v_bfe_u32 v4, v1, 2, 1
    v_lshlrev_b32 v4, 2, v4
    v_lshrrev_b32 v5, 3, v1
    v_lshlrev_b32 v5, 1, v5
    v_add_u32 v4, v4, v5
    v_and_b32 v5, 1, v1
    v_add_u32 v4, v4, v5
    v_lshlrev_b32 v4, 4, v4
    v_lshlrev_b32 v5, 7, v2
    v_add_u32 {vr(V_KMD)}, v4, v5
    v_mov_b32 {vr(V_NB)}, {fbits(-3.0e38):#x}
    v_lshlrev_b32 v4, 2, v2
    """)
    for r in range(4):
        a(f"""
        v_add_u32 v5, {r}, v4
        v_cmp_le_u32 {sr(S_MASK+2*r,2)}, v5, v1
        """)

def att_km_loads(so):
    l = [f"buffer_load_dwordx4 {vr(AKM+4*c,4)}, {vr(V_KMD)}, {sr(S_WS,4)}, {so} offen offset:{c*1024} sc1" for c in range(4)]
    l += [f"buffer_load_dword {vr(AVM+2*c+t)}, {vr(V_L4)}, {sr(S_WS,4)}, {so} offen offset:{c*1024+512+t*256} sc1" for c in range(4) for t in range(2)]
    return l

def xreduce(a, M, T, op):
    a(f"""
    v_mov_b32 {vr(T)}, {vr(M)}
    s_nop 1
    v_permlane32_swap_b32 {vr(T)}, {vr(M)}
    {op} {vr(M)}, {vr(M)}, {vr(T)}
    v_mov_b32 {vr(T)}, {vr(M)}
    s_nop 1
    v_permlane16_swap_b32 {vr(T)}, {vr(M)}
    {op} {vr(M)}, {vr(M)}, {vr(T)}
    """)

def att_task(a):
    sSM, sH, sQ, sK, sV, sKM, sO = [S_T0 + k for k in range(7)]
    a(f"""
    s_and_b32 {sr(sSM)}, {sr(S_NT)}, 7
    s_lshr_b32 {sr(sH)}, {sr(S_NT)}, 3
    s_lshl_b32 {sr(sH)}, {sr(sH)}, 2
    s_add_u32 {sr(sH)}, {sr(sH)}, {sr(S_W)}
    s_lshl_b32 s4, {sr(S_MT)}, 21
    s_lshl_b32 s5, {sr(sH)}, 16
    s_add_u32 s4, s4, s5
    s_lshl_b32 s5, {sr(sSM)}, 9
    s_add_u32 s4, s4, s5
    s_add_u32 {sr(sQ)}, s4, {OFF_QX}
    s_add_u32 {sr(sK)}, s4, {OFF_KX}
    s_add_u32 {sr(sO)}, s4, {OFF_OX}
    s_lshl_b32 s4, {sr(S_MT)}, 3
    s_add_u32 s4, s4, {sr(sSM)}                ; segment
    s_lshl_b32 s5, s4, 18
    s_lshl_b32 s6, {sr(sH)}, 11
    s_add_u32 s5, s5, s6
    s_add_u32 {sr(sV)}, s5, {OFF_VT}
    s_lshl_b32 s5, s4, 17
    s_lshl_b32 s6, {sr(sH)}, 12
    s_add_u32 s5, s5, s6
    s_add_u32 {sr(sKM)}, s5, {OFF_KM}
    """)
    for c in range(4):
        for t in range(2):
            a(f"buffer_load_dwordx4 {vr(AK+16*t+4*c,4)}, {vr(V_AD)}, {sr(S_WS,4)}, {sr(sK)} offen offset:{t*256} sc1")
            a(f"buffer_load_dwordx4 {vr(AQ+16*t+4*c,4)}, {vr(V_AD)}, {sr(S_WS,4)}, {sr(sQ)} offen offset:{t*256} sc1")
        if c < 3:
            a(f"s_add_u32 {sr(sK)}, {sr(sK)}, 16384")
            a(f"s_add_u32 {sr(sQ)}, {sr(sQ)}, 16384")
    for dt in range(8):
        a(f"buffer_load_dwordx4 {vr(AV+4*dt,4)}, {vr(V_VD)}, {sr(S_WS,4)}, {sr(sV)} offen offset:{dt*256} sc1")
    km = att_km_loads(sr(sKM))
    for ln in km: a(ln)
    a(f"v_mov_b32 {vr(AVM+8)}, 0")
    a(f"v_mov_b32 {vr(AVM+9)}, 0")
    for r in range(4): a(f"v_mov_b32 {vr(A_ONE+r)}, 0x3f803f80")
    for k in range(APA, APB + 8): a(f"v_mov_b32 {vr(k)}, 0")
    top = a.label("Latp"); ok = a.label("Lato")
    a(f"{top}:")
    a("s_waitcnt vmcnt(0)")
    t = 1
    regs = [AKM + k for k in range(16)] + [AVM + k for k in range(8)]
    a(f"v_max3_u32 {vr(t)}, {vr(regs[0])}, {vr(regs[1])}, {vr(regs[2])}")
    rr = regs[3:]
    while len(rr) >= 2:
        a(f"v_max3_u32 {vr(t)}, {vr(t)}, {vr(rr[0])}, {vr(rr[1])}"); rr = rr[2:]
    if rr: a(f"v_max_u32 {vr(t)}, {vr(t)}, {vr(rr[0])}")
    a(f"""
    v_cmp_eq_u32 vcc, -1, {vr(t)}
    s_cbranch_vccz {ok}
    s_sleep 16
    s_sub_u32 {sr(S_GBUD)}, {sr(S_GBUD)}, 1
    s_cbranch_scc1 L_abort
    """)
    for ln in km: a(ln)
    a(f"s_branch {top}")
    a(f"{ok}:")
    Dm = [ASC, ASC + 8]; D0 = [ASC + 4, ASC + 12]; D1 = ASC + 16
    def sc(d, kreg, qt, c):
        a(f"v_mfma_f32_16x16x32_bf16 {vr(d,4)}, {vr(kreg,4)}, {vr(AQ+16*qt+4*c,4)}, {'0' if c == 0 else vr(d,4)}")
    for c in range(4):
        sc(Dm[0], AKM+4*c, 0, c); sc(D0[0], AK+4*c, 0, c)
        sc(Dm[1], AKM+4*c, 1, c); sc(D0[1], AK+4*c, 1, c); sc(D1, AK+16+4*c, 1, c)
    a("s_nop 7")
    csc = fbits(128**-0.5 * 1.4426950408889634)
    a(f"s_mov_b32 s4, {csc:#x}")
    M, T = 2, 3
    for qt in range(2):
        dm = Dm[qt]; d0 = D0[qt]
        masked = d0 if qt == 0 else D1
        for r in range(4):
            a(f"v_cndmask_b32 {vr(masked+r)}, {vr(V_NB)}, {vr(masked+r)}, {sr(S_MASK+2*r,2)}")
        a(f"v_max3_f32 {vr(M)}, {vr(dm)}, {vr(dm+1)}, {vr(d0)}")
        a(f"v_max3_f32 {vr(M)}, {vr(M)}, {vr(d0+1)}, {vr(d0+2)}")
        a(f"v_max_f32 {vr(M)}, {vr(M)}, {vr(d0+3)}")
        if qt == 1:
            a(f"v_max3_f32 {vr(M)}, {vr(M)}, {vr(D1)}, {vr(D1+1)}")
            a(f"v_max3_f32 {vr(M)}, {vr(M)}, {vr(D1+2)}, {vr(D1+3)}")
        xreduce(a, M, T, "v_max_f32")
        a(f"v_mul_f32 {vr(M)}, s4, {vr(M)}")
        vals = [dm, dm+1] + [d0+r for r in range(4)] + ([D1+r for r in range(4)] if qt == 1 else [])
        for v in vals: a(f"v_fma_f32 {vr(v)}, {vr(v)}, s4, -{vr(M)}")
        for v in vals: a(f"v_exp_f32 {vr(v)}, {vr(v)}")
        px = APX + 4*qt
        a(f"v_cvt_pk_bf16_f32 {vr(APA+4*qt)}, {vr(dm)}, {vr(dm+1)}")
        a(f"v_cvt_pk_bf16_f32 {vr(px)}, {vr(d0)}, {vr(d0+1)}")
        a(f"v_cvt_pk_bf16_f32 {vr(px+1)}, {vr(d0+2)}, {vr(d0+3)}")
        if qt == 1:
            a(f"v_cvt_pk_bf16_f32 {vr(px+2)}, {vr(D1)}, {vr(D1+1)}")
            a(f"v_cvt_pk_bf16_f32 {vr(px+3)}, {vr(D1+2)}, {vr(D1+3)}")
        else:
            a(f"v_mov_b32 {vr(px+2)}, 0")
            a(f"v_mov_b32 {vr(px+3)}, 0")
        a(f"v_mov_b32 {vr(APB+4*qt+1)}, {vr(APA+4*qt)}")
    a("s_nop 1")
    for qt in range(2):
        a(f"v_mfma_f32_16x16x32_bf16 {ar(64+4*qt,4)}, {vr(A_ONE,4)}, {vr(APX+4*qt,4)}, 0")
        for dt in range(8):
            a(f"v_mfma_f32_16x16x32_bf16 {ar(32*qt+4*dt,4)}, {vr(AV+4*dt,4)}, {vr(APX+4*qt,4)}, 0")
    for qt in range(2):
        a(f"v_mfma_f32_16x16x32_bf16 {ar(64+4*qt,4)}, {vr(A_ONE,4)}, {vr(APA+4*qt,4)}, {ar(64+4*qt,4)}")
        for dt in range(8):
            pm = (APA if dt % 2 == 0 else APB) + 4*qt
            a(f"v_mfma_f32_16x16x32_bf16 {ar(32*qt+4*dt,4)}, {vr(AVM+(dt & ~1),4)}, {vr(pm,4)}, {ar(32*qt+4*dt,4)}")
    a("s_nop 7")
    for qt in range(2):
        L = 2 + qt
        a(f"v_accvgpr_read_b32 {vr(L)}, {ar(64+4*qt)}")
        a("s_nop 0")
        a(f"v_rcp_f32 {vr(L)}, {vr(L)}")
    n = 0
    for qt in range(2):
        L = 2 + qt
        for c in range(4):
            b = 32 + 12*(n % 4); n += 1
            for k in range(8): a(f"v_accvgpr_read_b32 {vr(b+k)}, {ar(32*qt+8*c+k)}")
            for k in range(8): a(f"v_mul_f32 {vr(b+k)}, {vr(b+k)}, {vr(L)}")
            for k in range(4): a(f"v_cvt_pk_bf16_f32 {vr(b+8+k)}, {vr(b+2*k)}, {vr(b+2*k+1)}")
            a(f"s_add_u32 s5, {sr(sO)}, {c*16384}")
            a(f"buffer_store_dwordx4 {vr(b+8,4)}, {vr(V_AD)}, {sr(S_WS,4)}, s5 offen offset:{qt*256} sc1")

def ln_task(a, s_rank):
    load_srd(a, S_OUT, KA_X, 4*MB)
    F = 64
    a(f"""
    v_and_b32 v1, 15, v0
    v_lshrrev_b32 v2, 4, v0
    v_lshlrev_b32 v4, 11, v1
    v_lshlrev_b32 v5, 3, v2
    v_add_u32 v4, v4, v5
    s_lshl_b32 s4, {sr(s_rank)}, 15
    s_lshl_b32 s5, {sr(S_W)}, 9
    s_add_u32 s4, s4, s5
    s_waitcnt lgkmcnt(0)
    """)
    for p in range(8):
        a(f"buffer_load_dwordx2 {vr(32+4*p,2)}, v4, {sr(S_OUT,4)}, s4 offen offset:{p*64}")
        a(f"buffer_load_dwordx2 {vr(32+4*p+2,2)}, v4, {sr(S_OUT,4)}, s4 offen offset:{p*64+32}")
    a(f"""
    s_lshl_b32 s5, {sr(S_W)}, 6
    v_lshlrev_b32 v5, 2, v1
    v_add_u32 v6, s5, v5
    v_add_u32 v6, {LSC}, v6
    v_add_u32 v7, {LSC}, v5
    s_waitcnt vmcnt(0)
    """)
    for d in range(32):
        a(f"v_lshlrev_b32 {vr(F+2*d)}, 16, {vr(32+d)}")
        a(f"v_and_b32 {vr(F+2*d+1)}, 0xffff0000, {vr(32+d)}")
    def total(src, region):
        for k in range(16): a(f"v_pk_add_f32 {vr(128+2*k,2)}, {vr(src+4*k,2)}, {vr(src+4*k+2,2)}")
        n = 16
        while n > 1:
            n //= 2
            for k in range(n): a(f"v_pk_add_f32 {vr(128+2*k,2)}, {vr(128+2*k,2)}, {vr(128+2*(k+n),2)}")
        a("v_add_f32 v2, v128, v129")
        xreduce(a, 2, 3, "v_add_f32")
        a(f"""
        ds_write_b32 v6, v2 offset:{region}
        s_waitcnt lgkmcnt(0)
        s_barrier
        ds_read_b32 v128, v7 offset:{region}
        ds_read_b32 v129, v7 offset:{region+64}
        ds_read_b32 v130, v7 offset:{region+128}
        ds_read_b32 v131, v7 offset:{region+192}
        s_waitcnt lgkmcnt(0)
        v_add_f32 v128, v128, v129
        v_add_f32 v130, v130, v131
        v_add_f32 v2, v128, v130
        v_mul_f32 v2, {fbits(1/1024):#x}, v2
        """)
    total(F, 0)
    a("v_mov_b32 v5, v2")
    D = 160
    for k in range(64): a(f"v_sub_f32 {vr(D+k)}, {vr(F+k)}, v5")
    for k in range(0, 64, 2): a(f"v_pk_mul_f32 {vr(D+k,2)}, {vr(D+k,2)}, {vr(D+k,2)}")
    total(D, 256)
    a(f"""
    v_cvt_pk_bf16_f32 v5, v5, v5
    v_cvt_pk_bf16_f32 v2, v2, v2
    v_lshlrev_b32 v5, 16, v5
    v_lshlrev_b32 v2, 16, v2
    v_add_f32 v2, {fbits(1e-5):#x}, v2
    v_cvt_pk_bf16_f32 v2, v2, v2
    v_lshlrev_b32 v2, 16, v2
    v_sqrt_f32 v2, v2
    s_nop 0
    v_cvt_pk_bf16_f32 v2, v2, v2
    v_lshlrev_b32 v2, 16, v2
    v_rcp_f32 v2, v2
    """)
    for k in range(64): a(f"v_sub_f32 {vr(F+k)}, {vr(F+k)}, v5")
    for d in range(32): a(f"v_cvt_pk_bf16_f32 {vr(32+d)}, {vr(F+2*d)}, {vr(F+2*d+1)}")
    for d in range(32):
        a(f"v_lshlrev_b32 {vr(F+2*d)}, 16, {vr(32+d)}")
        a(f"v_and_b32 {vr(F+2*d+1)}, 0xffff0000, {vr(32+d)}")
    for k in range(64): a(f"v_mul_f32 {vr(F+k)}, {vr(F+k)}, v2")
    for d in range(32): a(f"v_cvt_pk_bf16_f32 {vr(32+d)}, {vr(F+2*d)}, {vr(F+2*d+1)}")
    a(f"""
    s_lshr_b32 s4, {sr(s_rank)}, 4
    s_lshl_b32 s4, s4, 19
    s_and_b32 s5, {sr(s_rank)}, 15
    s_lshl_b32 s5, s5, 8
    s_add_u32 s4, s4, s5
    s_lshl_b32 s5, {sr(S_W)}, 17
    s_add_u32 s4, s4, s5
    s_add_u32 s4, s4, {OFF_XN}
    """)
    for p in range(8):
        a(f"buffer_store_dwordx4 {vr(32+4*p,4)}, {vr(V_AD)}, {sr(S_WS,4)}, s4 offen sc1")
        if p < 7: a("s_add_u32 s4, s4, 16384")

S_PID, S_PCNT = 92, 93
def tl_stamp(a, i):
    if CFG.get('tl'):
        a(f"s_memrealtime s[{70+2*i}:{71+2*i}]")
        a("s_waitcnt lgkmcnt(0)")
def tl_task_start(a):
    if CFG.get('tl'):
        tl_stamp(a, 1)
def tl_store(a, tk):
    if CFG.get('tl'):
        lab = a.label("Ltl")
        tl_stamp(a, 2)
        if not isinstance(tk, str):
            a(f"s_mov_b32 s68, {tk}"); tk = "s68"
        a(f"""
        s_cmp_lg_u32 {sr(S_W)}, 0
        s_cbranch_scc1 {lab}
        v_mov_b32 v4, 0
        v_writelane_b32 v4, {tk}, 0
        v_writelane_b32 v4, s70, 1
        v_writelane_b32 v4, s72, 2
        v_writelane_b32 v4, s74, 3
        s_lshl_b32 s4, {sr(S_PID)}, 11
        s_lshl_b32 s5, {sr(S_PCNT)}, 4
        s_add_u32 s4, s4, s5
        s_add_u32 s4, s4, {OFF_DBG}
        v_mov_b32 v5, 0x80000000
        v_cmp_gt_u32 vcc, 4, v0
        s_nop 1
        v_cndmask_b32 v5, v5, {vr(V_L4)}, vcc
        buffer_store_dword v4, v5, {sr(S_WS,4)}, s4 offen
        s_waitcnt vmcnt(0)
        {lab}:
        s_add_u32 {sr(S_PCNT)}, {sr(S_PCNT)}, 1
        s_min_u32 {sr(S_PCNT)}, {sr(S_PCNT)}, 127
        s_mov_b32 s70, s74
        """)

def wait_word(a, srd, s_off, target, sleep=8):
    top = a.label("Lww"); ok = a.label("Lwwo")
    a(f"""
    s_cmp_lg_u32 {sr(S_W)}, 0
    s_cbranch_scc1 {ok}
    v_mov_b32 v1, {s_off}
    {top}:
    buffer_load_dword v2, v1, {sr(srd,4)}, 0 offen sc1
    s_waitcnt vmcnt(0)
    v_cmp_le_u32 vcc, {target}, v2
    s_cbranch_vccnz {ok}
    s_sleep {sleep}
    s_sub_u32 {sr(S_GBUD)}, {sr(S_GBUD)}, 1
    s_cbranch_scc0 {top}
    s_branch L_abort
    {ok}:
    s_barrier
    """)

def wait_cnt(a, base, s_idx, target, scale=1, sleep=8):
    if s_idx is None:
        wait_word(a, S_WS, OFF_CNT + base*256, target, sleep)
    else:
        a(f"s_mul_i32 s4, {sr(s_idx)}, {256*scale}")
        a(f"s_add_u32 s4, s4, {OFF_CNT + base*256}")
        wait_word(a, S_WS, "s4", target, sleep)

def drain_signal(a):
    a("s_waitcnt vmcnt(0) lgkmcnt(0)")
    a("s_barrier")
    a(signal_op(sr(S_DONE)))

G_END, G_KV, G_GU, G_Q, G_DN = 0, 1, 2, 3, 4
K_K, K_V, K_Q, K_GU, K_DN = 1, 2, 3, 4, 5
SCHED = [
    [(0, G_GU, 8), (8, G_KV, 8), (16, G_KV, -8), (24, G_GU, -24)],
    [(0, G_GU, 32), (8, G_GU, 32), (16, G_GU, 0), (24, G_GU, 0)],
    [(0, G_Q, 0), (8, G_KV, 24), (16, G_KV, 8), (24, G_DN, -24), (28, G_Q, 0)],
    [(0, G_Q, 8), (8, G_Q, 8), (16, G_GU, 32), (24, G_Q, 2), (26, G_END, 0), (28, G_DN, -24), (30, G_Q, -6)],
    [(0, G_END, 0), (8, G_KV, 40), (16, G_KV, 24), (24, G_END, 0), (30, G_DN, -24)],
    [(0, G_END, 0), (16, G_KV, 40), (24, G_END, 0)],
    [(0, G_END, 0)],
]
def sched_setup(a):
    sched = CFG.get('sched', SCHED)
    for k in range(8):
        rows = sched[k] if k < len(sched) else [(0, G_END, 0)]
        d = S_SCH + k
        for n, (t0, g, off) in enumerate(rows):
            val = f"s_add_u32 s4, {sr(S_T)}, {(g << 8) + off}" if g != G_END else "s_mov_b32 s4, 0"
            a(val)
            if n == 0: a(f"s_mov_b32 {sr(d)}, s4")
            else:
                a(f"s_cmp_ge_u32 {sr(S_T)}, {t0}")
                a(f"s_cselect_b32 {sr(d)}, s4, {sr(d)}")

def sched_pop(a):
    for k in range(7): a(f"s_mov_b32 {sr(S_SCH+k)}, {sr(S_SCH+k+1)}")
    a(f"s_mov_b32 {sr(S_SCH+7)}, 0")

def e1_decode(a, dn):
    lq = a.label("Ldq"); lg = a.label("Ldg"); lv = a.label("Ldv"); lb = a.label("Ldb"); le = a.label("Lde"); ld = a.label("Ldd")
    a(f"""
    s_lshr_b32 s6, {sr(S_SCH)}, 8             ; group
    s_and_b32 s7, {sr(S_SCH)}, 0xff           ; index
    s_mov_b32 {sr(S_A+2)}, {WS_BYTES}
    s_mov_b32 {sr(S_NCNT)}, 7
    s_cmp_eq_u32 s6, {G_GU}
    s_cbranch_scc1 {lg}
    """)
    if dn:
        a(f"""
        s_cmp_eq_u32 s6, {G_DN}
        s_cbranch_scc1 {ld}
        """)
    a(f"""
    s_cmp_eq_u32 s6, {G_Q}
    s_cbranch_scc1 {lq}
    s_lshr_b32 {sr(S_T0)}, s7, 3
    s_and_b32 {sr(S_T0+1)}, s7, 3
    s_lshl_b32 s4, {sr(S_J)}, 2
    s_add_u32 {sr(S_T0+1)}, {sr(S_T0+1)}, s4      ; nt
    s_add_u32 s4, {sr(S_T0)}, {CN_KV}
    s_lshl_b32 s4, s4, 8
    s_add_u32 {sr(S_NDONE)}, s4, {OFF_CNT}
    s_bitcmp1_b32 s7, 2
    s_cbranch_scc1 {lv}
    s_load_dwordx2 {sr(S_B,2)}, s[0:1], {KA_WK}
    s_mov_b32 {sr(S_NKIND)}, {K_K}
    s_lshl_b32 s4, {sr(S_T0)}, 21
    s_lshl_b32 s5, {sr(S_T0+1)}, 17
    s_add_u32 s4, s4, s5
    s_add_u32 {sr(S_NCOFF)}, s4, {OFF_KX}
    s_branch {lb}
    {lv}:
    s_load_dwordx2 {sr(S_B,2)}, s[0:1], {KA_WV}
    s_mov_b32 {sr(S_NKIND)}, {K_V}
    s_lshl_b32 s4, {sr(S_T0)}, 21
    s_lshl_b32 s5, {sr(S_T0+1)}, 12
    s_add_u32 s4, s4, s5
    s_add_u32 {sr(S_NCOFF)}, s4, {OFF_VT}
    s_branch {lb}
    {lq}:
    s_lshr_b32 {sr(S_T0)}, s7, 2
    s_and_b32 {sr(S_T0+1)}, s7, 3
    s_lshl_b32 s4, {sr(S_J)}, 2
    s_add_u32 {sr(S_T0+1)}, {sr(S_T0+1)}, s4
    s_add_u32 s4, {sr(S_T0)}, {CN_Q}
    s_lshl_b32 s4, s4, 8
    s_add_u32 {sr(S_NDONE)}, s4, {OFF_CNT}
    s_load_dwordx2 {sr(S_B,2)}, s[0:1], {KA_WQ}
    s_mov_b32 {sr(S_NKIND)}, {K_Q}
    s_lshl_b32 s4, {sr(S_T0)}, 21
    s_lshl_b32 s5, {sr(S_T0+1)}, 17
    s_add_u32 s4, s4, s5
    s_add_u32 {sr(S_NCOFF)}, s4, {OFF_QX}
    {lb}:
    s_mov_b32 {sr(S_B+2)}, {8*MB}
    s_mov_b32 {sr(S_T0+2)}, 8192
    s_lshl_b32 {sr(S_BOFF)}, {sr(S_T0+1)}, 9
    s_and_b32 s4, {sr(S_W)}, 1
    s_lshl_b32 s4, s4, 8
    s_add_u32 {sr(S_BOFF)}, {sr(S_BOFF)}, s4
    s_lshl_b32 {sr(S_AOFF)}, {sr(S_T0)}, 19
    s_add_u32 {sr(S_AOFF)}, {sr(S_AOFF)}, {OFF_XN}
    s_branch {le}
    """)
    if dn:
        a(f"""
        {ld}:
        s_load_dwordx2 {sr(S_B,2)}, s[0:1], {KA_WD}
        s_mov_b32 {sr(S_B+2)}, {3584*2048}
        s_mov_b32 {sr(S_NKIND)}, {K_DN}
        s_mov_b32 {sr(S_NCNT)}, 27
        s_add_u32 s4, s7, {CN_DN}
        s_lshl_b32 s4, s4, 8
        s_add_u32 {sr(S_NDONE)}, s4, {OFF_CNT}
        s_mov_b32 {sr(S_T0+2)}, 2048
        s_lshl_b32 {sr(S_BOFF)}, {sr(S_J)}, 9
        s_and_b32 s4, {sr(S_W)}, 1
        s_lshl_b32 s4, s4, 8
        s_add_u32 {sr(S_BOFF)}, {sr(S_BOFF)}, s4
        s_mul_i32 {sr(S_AOFF)}, s7, {448*4096}
        s_add_u32 {sr(S_AOFF)}, {sr(S_AOFF)}, {OFF_H}
        s_lshl_b32 s4, s7, 19
        s_lshl_b32 s5, {sr(S_J)}, 17
        s_add_u32 s4, s4, s5
        s_add_u32 {sr(S_NCOFF)}, s4, {OFF_GS}
        s_branch {le}
        """)
    a(f"""
    {lg}:
    s_mul_i32 s5, s7, 9363
    s_lshr_b32 {sr(S_T0)}, s5, 16
    s_mul_i32 s5, {sr(S_T0)}, 7
    s_sub_u32 s4, s7, s5
    s_mul_i32 {sr(S_T0+1)}, {sr(S_J)}, 7
    s_add_u32 {sr(S_T0+1)}, {sr(S_T0+1)}, s4   ; nt
    s_add_u32 s4, {sr(S_T0)}, {CN_GU}
    s_lshl_b32 s4, s4, 8
    s_add_u32 {sr(S_NDONE)}, s4, {OFF_CNT}
    s_and_b32 s4, {sr(S_W)}, 1
    s_lshl_b32 s4, s4, 3
    s_add_u32 s4, s4, {KA_WG}
    s_load_dwordx2 {sr(S_B,2)}, s[0:1], s4
    s_mov_b32 {sr(S_B+2)}, {1024*7168}
    s_mov_b32 {sr(S_NKIND)}, {K_GU}
    s_mov_b32 {sr(S_T0+2)}, 7168
    s_lshl_b32 {sr(S_BOFF)}, {sr(S_T0+1)}, 8
    s_mul_i32 s4, {sr(S_T0)}, {448*4096}
    s_lshl_b32 s5, {sr(S_T0+1)}, 16
    s_add_u32 s4, s4, s5
    s_add_u32 {sr(S_NCOFF)}, s4, {OFF_H}
    s_lshl_b32 {sr(S_AOFF)}, {sr(S_T0)}, 19
    s_add_u32 {sr(S_AOFF)}, {sr(S_AOFF)}, {OFF_XN}
    {le}:
    s_mov_b32 {sr(S_B+3)}, 0x20000
    """)
    e1_bvoff(a, S_T0+2)

def e1_next(a, back):
    nul = a.label("Lnul")
    a(f"""
    s_lshr_b32 s6, {sr(S_SCH)}, 8
    s_cmp_eq_u32 s6, {G_END}
    s_cbranch_scc1 {nul}
    s_cmp_eq_u32 s6, {G_DN}
    s_cbranch_scc1 {nul}
    """)
    e1_decode(a, False)
    sched_pop(a)
    a(f"s_branch {back}")
    a(f"""
    {nul}:
    s_mov_b32 {sr(S_NKIND)}, 0
    s_mov_b32 {sr(S_A+2)}, 0
    s_mov_b32 {sr(S_B+2)}, 0
    s_branch {back}
    """)

def promote(a):
    a(f"""
    s_mov_b32 {sr(S_COFF)}, {sr(S_NCOFF)}
    s_mov_b32 {sr(S_DONE)}, {sr(S_NDONE)}
    s_mov_b32 {sr(S_KIND)}, {sr(S_NKIND)}
    s_mov_b32 {sr(S_CNT)}, {sr(S_NCNT)}
    s_cmp_eq_u32 {sr(S_KIND)}, {K_V}
    s_cbranch_scc1 L_f4S
    s_branch L_f4N
    """)

def g_setup(a):
    a(f"""
    v_lshlrev_b32 {vr(V_L4)}, 2, v0
    v_mov_b32 {vr(V_ONE)}, 1
    v_mov_b32 {vr(V_OOB)}, 0x80000000
    s_cmp_eq_u32 {sr(S_W)}, 0
    s_cselect_b32 s5, 0, 0x80000000
    v_mov_b32 v1, s5
    v_mov_b32 v2, 0x80000000
    v_cmp_eq_u32 vcc, 0, v0
    s_nop 1
    v_cndmask_b32 {vr(V_SIG)}, v2, v1, vcc
    s_mov_b32 {sr(S_GBUD)}, {CFG.get('budget', 400000)}
    """)
    e1_setup_regs(a)
    att_setup_regs(a)

def g_start(a, s_rank):
    lab = a.label("Lini"); l2 = a.label("Lln0")
    e2_setup_regs(a)
    a(f"s_mov_b32 {sr(S_KIND)}, 0")
    kv0_setup(a)
    e2_wpro(a)
    a(f"""
    s_cmp_lg_u32 {sr(s_rank)}, 0
    s_cbranch_scc1 {lab}
    v_lshlrev_b32 v1, 8, v0
    v_mov_b32 v2, 0
    s_mov_b32 s4, {OFF_CNT}
    buffer_store_dword v2, v1, {sr(S_WS,4)}, s4 offen sc1
    s_add_u32 s4, s4, {64*256}
    buffer_store_dword v2, v1, {sr(S_WS,4)}, s4 offen sc1
    {lab}:
    s_lshl_b32 {sr(S_PDONE)}, {sr(S_T)}, 2
    s_add_u32 {sr(S_PDONE)}, {sr(S_PDONE)}, {sr(S_J)}
    """)
    ln_task(a, S_PDONE)
    e2_setup_regs(a)
    sched_setup(a)
    a("s_waitcnt vmcnt(0) lgkmcnt(0)")
    a("s_barrier")
    a(f"buffer_atomic_add {vr(V_ONE)}, {vr(V_SIG)}, {sr(S_DBG,4)}, 0 offen offset:{C_LN*4} sc1")
    a(f"""
    s_cmp_ge_u32 {sr(S_PDONE)}, 16
    s_cbranch_scc1 {l2}
    buffer_atomic_add {vr(V_ONE)}, {vr(V_SIG)}, {sr(S_DBG,4)}, 0 offen offset:{C_LN0*4} sc1
    {l2}:
    """)
    if CFG.get('tl'):
        a("s_mov_b32 s72, s70")
        tl_store(a, 0xffff)
    wait_word(a, S_DBG, C_LN0*4, 16)
    kv0_loop(a)
    wait_word(a, S_DBG, C_LN*4, 128)

def g_main(a):
    a("L_e1start:")
    lab = a.label("Lnd")
    a(f"""
    s_lshr_b32 s6, {sr(S_SCH)}, 8
    s_cmp_eq_u32 s6, {G_END}
    s_cbranch_scc1 L_p2
    s_cmp_eq_u32 s6, {G_DN}
    s_cbranch_scc0 {lab}
    s_and_b32 {sr(S_MT)}, {sr(S_SCH)}, 0xff
    """)
    wait_cnt(a, CN_GU, S_MT, 28)
    a(f"{lab}:")
    e1_decode(a, True)
    sched_pop(a)
    a(f"s_mov_b32 {sr(S_DONE)}, {OFF_CNT + CN_SPARE*256}")
    a("s_waitcnt lgkmcnt(0)")
    e1_prologue(a)
    a(f"s_mov_b32 {sr(S_PDONE)}, {OFF_CNT + CN_SPARE*256}")
    promote(a)
    e1_body(a, False, "N")
    e1_body(a, True, "S")
    a("L_e1ep:")
    a(f"""
    s_cmp_eq_u32 {sr(S_KIND)}, {K_V}
    s_cbranch_scc1 L_epV
    s_cmp_eq_u32 {sr(S_KIND)}, {K_GU}
    s_cbranch_scc1 L_epGU
    s_cmp_eq_u32 {sr(S_KIND)}, {K_DN}
    s_cbranch_scc1 L_epDN
    """)
    ep_chunks(a)
    a("s_branch L_e1done")
    a("L_epV:")
    ep_vt(a)
    a("s_branch L_e1done")
    a("L_epGU:")
    ep_gu(a)
    a("s_branch L_e1done")
    a("L_epDN:")
    ep_down1(a)
    a("L_e1done:")
    if CFG.get('tl'):
        a(f"s_lshr_b32 s5, {sr(S_COFF)}, 12")
        a(f"s_lshl_b32 s5, s5, 4")
        a(f"s_or_b32 s5, s5, {sr(S_KIND)}")
        a(f"s_mov_b32 s68, s5")
        tl_store_nowait(a, "s68")
    a(f"""
    s_cmp_eq_u32 {sr(S_NKIND)}, 0
    s_cbranch_scc1 L_e1drain
    s_mov_b32 {sr(S_PDONE)}, {sr(S_DONE)}
    """)
    promote(a)
    a("L_e1drain:")
    drain_signal(a)
    a("s_branch L_e1start")

def tl_store_nowait(a, tk):
    lab = a.label("Ltw")
    tl_stamp(a, 2)
    a(f"""
    s_and_b32 s4, {sr(S_PCNT)}, 63
    s_mov_b32 s5, m0
    s_mov_b32 m0, s4
    s_nop 0
    v_writelane_b32 v252, {tk}, m0
    v_writelane_b32 v253, s70, m0
    v_writelane_b32 v254, s72, m0
    v_writelane_b32 v255, s74, m0
    s_mov_b32 m0, s5
    s_add_u32 {sr(S_PCNT)}, {sr(S_PCNT)}, 1
    s_mov_b32 s70, s74
    """)

def tl_dump(a):
    if CFG.get('tl'):
        lab = a.label("Ltd")
        a(f"""
        s_cmp_lg_u32 {sr(S_W)}, 0
        s_cbranch_scc1 {lab}
        s_lshl_b32 s4, {sr(S_PID)}, 11
        s_add_u32 s4, s4, {OFF_DBG}
        v_lshlrev_b32 v4, 4, v0
        v_mov_b32 v5, 0x80000000
        v_cmp_lt_u32 vcc, 0, v0
        v_cmp_gt_u32 s[6:7], {sr(S_PCNT)}, v0
        s_and_b64 vcc, vcc, s[6:7]
        s_nop 1
        v_cndmask_b32 v4, v5, v4, vcc
        buffer_store_dword v252, v4, {sr(S_WS,4)}, s4 offen
        buffer_store_dword v253, v4, {sr(S_WS,4)}, s4 offen offset:4
        buffer_store_dword v254, v4, {sr(S_WS,4)}, s4 offen offset:8
        buffer_store_dword v255, v4, {sr(S_WS,4)}, s4 offen offset:12
        s_waitcnt vmcnt(0)
        {lab}:
        """)

def wait_multi(a, sleep=8):
    top = a.label("Lwm"); ok = a.label("Lwmo")
    a(f"""
    s_cmp_lg_u32 {sr(S_W)}, 0
    s_cbranch_scc1 {ok}
    {top}:
    buffer_load_dword {vr(V_PV)}, {vr(V_PA)}, {sr(S_WS,4)}, 0 offen sc1
    s_waitcnt vmcnt(0)
    v_cmp_ge_u32 vcc, {vr(V_PV)}, {vr(V_PT)}
    s_cmp_eq_u64 vcc, -1
    s_cbranch_scc1 {ok}
    s_sleep {sleep}
    s_sub_u32 {sr(S_GBUD)}, {sr(S_GBUD)}, 1
    s_cbranch_scc0 {top}
    s_branch L_abort
    {ok}:
    s_barrier
    """)

def phase2(a):
    from wosim import masks
    mk = CFG.get('wo_masks') or masks()[0]
    a("L_p2:")
    tl_dump(a)
    if CFG.get('nop2'): a("s_branch L_exit")
    a(f"""
    s_cmp_ge_u32 {sr(S_T)}, 8
    s_cbranch_scc1 L_WO
    """)
    wait_word(a, S_DBG, C_RBAR*4, 128)
    a(f"s_lshr_b32 {sr(S_KIND)}, {sr(S_T)}, 1             ; segment")
    a("L_AT:")
    a(f"""
    s_lshr_b32 {sr(S_MT)}, {sr(S_KIND)}, 3
    s_lshl_b32 s5, {sr(S_J)}, 1
    s_and_b32 s4, {sr(S_T)}, 1
    s_add_u32 s4, s4, s5
    s_lshl_b32 s4, s4, 3
    s_and_b32 s6, {sr(S_KIND)}, 7
    s_add_u32 {sr(S_NT)}, s4, s6
    s_lshl_b32 s5, {sr(S_KIND)}, 8
    s_add_u32 {sr(S_DONE)}, s5, {OFF_CNT + CN_AT*256}
    s_lshl_b32 s4, {sr(S_MT)}, 8
    s_add_u32 s5, s4, {OFF_CNT + CN_KV*256}
    v_mov_b32 {vr(V_PA)}, s5
    s_add_u32 s5, s4, {OFF_CNT + CN_Q*256}
    v_writelane_b32 {vr(V_PA)}, s5, 1
    s_mov_b32 s5, {OFF_CNT + CN_PROG*256}
    v_writelane_b32 {vr(V_PA)}, s5, 2
    s_cmp_eq_u32 {sr(S_MT)}, 0
    s_cselect_b32 s5, 128, 32
    v_mov_b32 {vr(V_PT)}, s5
    s_mov_b32 s5, 16
    v_writelane_b32 {vr(V_PT)}, s5, 1
    s_add_u32 s5, {sr(S_KIND)}, 2
    s_min_u32 s5, s5, 63
    v_writelane_b32 {vr(V_PT)}, s5, 2
    """)
    tl_stamp(a, 0)
    wait_multi(a)
    tl_stamp(a, 1)
    att_task(a)
    drain_signal(a)
    if CFG.get('tl'):
        a(f"s_lshl_b32 s68, {sr(S_KIND)}, 4")
        a("s_or_b32 s68, s68, 6")
        tl_store_nowait(a, "s68")
    a(f"""
    s_add_u32 {sr(S_KIND)}, {sr(S_KIND)}, 4
    s_cmp_lt_u32 {sr(S_KIND)}, 64
    s_cbranch_scc1 L_AT
    s_branch L_p2end
    L_WO:
    s_lshl_b32 s4, {sr(S_J)}, 3
    s_and_b32 s5, {sr(S_T)}, 7
    s_add_u32 {sr(S_CB)}, s4, s5
    s_mov_b32 {sr(S_MSK)}, {mk[0] & 0xffffffff:#x}
    s_mov_b32 {sr(S_MSK+1)}, {mk[0] >> 32:#x}
    s_cmp_ge_u32 {sr(S_T)}, 16
    s_cselect_b32 {sr(S_MSK)}, {mk[1] & 0xffffffff:#x}, {sr(S_MSK)}
    s_cselect_b32 {sr(S_MSK+1)}, {mk[1] >> 32:#x}, {sr(S_MSK+1)}
    s_cmp_ge_u32 {sr(S_T)}, 24
    s_cselect_b32 {sr(S_MSK)}, {mk[2] & 0xffffffff:#x}, {sr(S_MSK)}
    s_cselect_b32 {sr(S_MSK+1)}, {mk[2] >> 32:#x}, {sr(S_MSK+1)}
    """)
    tl_stamp(a, 0)
    e3_setup(a)
    if CFG.get('tl'):
        tl_stamp(a, 1)
        a("s_mov_b32 s68, 9")
        tl_store_nowait(a, "s68")
    e3_loop(a)
    a("L_p2end:")
    tl_dump(a)
    a("s_branch L_exit")
```

```python
MB = 1 << 20
OFF_XN = 0
OFF_KX = 4 * MB
OFF_VT = 20 * MB
OFF_QX = 36 * MB
OFF_H  = 52 * MB
OFF_OX = 68 * MB
OFF_KM = 84 * MB
OFF_RA = 92 * MB
OFF_RB = 92 * MB + 512 * 1024
OFF_RO = 93 * MB
OFF_RC = 94 * MB
OFF_DBG = 95 * MB
OFF_MEMDBG = 96 * MB
OFF_GS = 100 * MB

OFF_EX = 112 * MB

KA_X, KA_MEM0, KA_WQ, KA_WK, KA_WV, KA_WO = 0, 8, 16, 24, 32, 40
KA_WG, KA_WU, KA_WD, KA_OUT, KA_DBG, KA_WS = 64, 72, 80, 88, 96, 104
WS_BYTES = 268435456

C_XCC = 0
C_RBAR1 = 8
C_Q0 = 9
C_LN1, C_KV, C_QX, C_GU, C_DN, C_AT = 16, 24, 32, 40, 48, 56
C_LN = 8
C_RBAR = 40
OFF_CNT = 98 * MB
CN_KV, CN_Q, CN_GU, CN_DN, CN_PROG, CN_SPARE, CN_KV0A = 0, 8, 16, 24, 48, 49, 50
CN_AT2 = 32
CN_AT = 64
C_LN0 = 44
C_LN0A = 48
```

```python
from asmlib import *
from layout import *
import struct

def fbits(x):
    return struct.unpack("<I", struct.pack("<f", x))[0]

V_ALD, V_L16, V_AST, V_BST, V_OST, V_OLD, V_CST, V_CLD, V_PW, V_KXD, V_VTD, V_IDX, V_SEL = range(8, 21)
V_SEL2, V_VMX, V_EXP = 21, 22, 23
V_NEG = 24
V_T = 28
V_R1, V_R2, V_R3, V_EXPK, V_EXPV, V_EXPM = 30, 31, 32, 33, 34, 35
V_ID = 36
DT = 40
D2 = 64
CF = 68
V_EXR = 72
V_W = 76
AF = 96
PR = 112
OF = 128
KXF = 160
XF = 192
PA0 = 208
PA1 = 212
ONES = 216
PB = 220
A_WO = 192
S_W = 3
S_WS = 8
S_T = 12
S_G, S_M, S_H, S_STEP, S_BUD = 16, 17, 18, 19, 20
S_A, S_B, S_O, S_C = 21, 22, 23, 24
S_PAR = 26
S_CRE, S_ORE, S_EXP, S_KXD, S_VTD, S_LRD, S_LWR, S_CSC = 28, 29, 30, 31, 32, 33, 34, 35
S_C4 = 36
S_TMP = 37
S_PROF = 40
S_AB, S_BB, S_OB, S_Q, S_KXB, S_VTB = 72, 73, 74, 75, 76, 77
S_ARE, S_BRE = 78, 79
S_ACC = 80
LA, LO, LV, LEXP, LKX = 0, 16384, 24576, 25600, 26624
KXSLOT = 10240
LVP = LKX + 2*KXSLOT
CSLOT = 131072

CFG = dict(local_sc1=False, prof=False, dbg_mem=False, nsteps=64)

def st_local():
    return " sc1" if CFG['local_sc1'] else ""

def stamp(a, i):
    if CFG['prof']:
        a(f"s_memtime {sr(S_PROF + 2*i, 2)}")

def check(a, regs, retry):
    t = V_T
    rr = list(regs)
    if len(rr) >= 3:
        a(f"v_max3_u32 {vr(t)}, {vr(rr[0])}, {vr(rr[1])}, {vr(rr[2])}")
        rr = rr[3:]
    else:
        a(f"v_max_u32 {vr(t)}, {vr(rr[0])}, {vr(rr[1])}")
        rr = rr[2:]
    while len(rr) >= 2:
        a(f"v_max3_u32 {vr(t)}, {vr(t)}, {vr(rr[0])}, {vr(rr[1])}"); rr = rr[2:]
    if rr:
        a(f"v_max_u32 {vr(t)}, {vr(t)}, {vr(rr[0])}")
    a(f"v_cmp_eq_u32 vcc, -1, {vr(t)}")
    a(f"s_cbranch_vccnz {retry}")

def retry_code(a, name, retry, loads, back):
    cnt = ""
    if CFG.get('proto'):
        ci = 68 + "ABOC".index(name)
        cnt = f"s_add_u32 s{ci}, s{ci}, 1"
    rd = CFG.get('rdelay' + name, 0)
    sl = f"s_sleep {rd}\n" if rd else ""
    lds = "\n".join(loads)
    a.cold.append(f"""{retry}:
    {cnt}
    s_sub_u32 {sr(S_BUD)}, {sr(S_BUD)}, 1
    s_cbranch_scc1 L_R_abort
    {sl}{lds}
    s_branch {back}""")

def poll_issue(a, name, loads):
    d = CFG.get('delay' + name, 0)
    if d: a(f"s_sleep {d}")
    for ln in loads: a(ln)

def poll_wait(a, name, loads, regs):
    top = a.label("Lp" + name); retry = a.label("Lr" + name)
    a(f"{top}:")
    a("s_waitcnt vmcnt(0)")
    check(a, regs, retry)
    retry_code(a, name, retry, loads, top)

def calib(a, dst):
    lab = a.label("Lcal")
    a(f"""
    s_memrealtime s[88:89]
    s_waitcnt lgkmcnt(0)
    s_mov_b32 s92, 200
    {lab}:
    s_memrealtime s[90:91]
    s_waitcnt lgkmcnt(0)
    s_sub_u32 s92, s92, 1
    s_cbranch_scc1 {lab}_x
    s_cmp_eq_u32 s90, s88
    s_cbranch_scc1 {lab}
    {lab}_x:
    s_memtime s[88:89]
    s_waitcnt lgkmcnt(0)
    s_mov_b32 s{dst}, s90
    s_mov_b32 s{dst+1}, s88
    """)

def halves_sum(a, d, o0, o1):
    a(f"""
    v_permlane32_swap_b32 {vr(d)}, {vr(d+2)}
    v_permlane32_swap_b32 {vr(d+1)}, {vr(d+3)}
    v_add_f32 {vr(o0)}, {vr(d)}, {vr(d+2)}
    v_add_f32 {vr(o1)}, {vr(d+1)}, {vr(d+3)}
    """)

def pack_pairs(a, o0, o1, out, tmp):
    a(f"""
    v_cvt_pk_bf16_f32 {vr(out)}, {vr(o0)}, {vr(o1)}
    s_nop 1
    v_mov_b32_dpp {vr(tmp)}, {vr(out)} quad_perm:[1,0,3,2] row_mask:0xf bank_mask:0xf
    v_perm_b32 {vr(out)}, {vr(out)}, {vr(tmp)}, {vr(V_SEL)}
    """)

def oob_hi(dst, src):
    return f"""v_mov_b32 v5, 0x80000000
    v_cmp_gt_u32 vcc, 32, v0
    s_nop 1
    v_cndmask_b32 {vr(dst)}, v5, {vr(src)}, vcc"""

def setup(a):
    a(f"""
    s_lshr_b32 s4, {sr(S_M)}, 2
    s_lshl_b32 {sr(S_H)}, {sr(S_G)}, 2
    s_add_u32 {sr(S_H)}, {sr(S_H)}, s4          ; head
    s_and_b32 {sr(S_C4)}, {sr(S_M)}, 3
    s_and_b32 {sr(S_Q)}, {sr(S_G)}, 1
    v_and_b32 v1, 15, v0                        ; n / j
    v_lshrrev_b32 v2, 4, v0                     ; g
    v_lshlrev_b32 {vr(V_L16)}, 4, v0
    s_lshl_b32 s4, {sr(S_W)}, 12
    v_add_u32 {vr(V_ALD)}, s4, {vr(V_L16)}
    s_lshl_b32 s4, {sr(S_W)}, 11
    v_add_u32 {vr(V_OLD)}, s4, {vr(V_L16)}
    s_lshl_b32 s4, {sr(S_W)}, 10
    v_add_u32 {vr(V_PW)}, s4, {vr(V_L16)}
    v_lshlrev_b32 v3, 2, v2
    v_and_b32 v4, 1, v1
    v_lshlrev_b32 v4, 1, v4
    v_add_u32 v3, v3, v4
    v_lshrrev_b32 v4, 3, v1
    v_add_u32 v6, v3, v4
    v_lshlrev_b32 v4, 4, v6
    v_bfe_u32 v5, v1, 1, 2
    v_lshlrev_b32 v5, 2, v5
    v_add_u32 v4, v4, v5
    s_lshl_b32 s4, {sr(S_M)}, 10
    s_lshl_b32 s5, {sr(S_Q)}, 9
    s_add_u32 s4, s4, s5
    s_lshl_b32 s5, {sr(S_W)}, 7
    s_add_u32 s4, s4, s5
    v_add_u32 v4, s4, v4
    {oob_hi(V_AST, 4)}
    v_and_b32 v3, 1, v2
    v_lshlrev_b32 v3, 2, v3
    v_lshrrev_b32 v4, 1, v2
    v_lshlrev_b32 v4, 1, v4
    v_add_u32 v3, v3, v4
    v_and_b32 v4, 1, v1
    v_add_u32 v3, v3, v4                        ; row
    v_lshrrev_b32 v4, 2, v1
    v_lshlrev_b32 v4, 8, v4
    v_lshlrev_b32 v5, 4, v3
    v_add_u32 v4, v4, v5
    v_bfe_u32 v5, v1, 1, 1
    v_lshlrev_b32 v5, 2, v5
    v_add_u32 v4, v4, v5                        ; (n>>2)*256 + row*16 + ((n>>1)&1)*4
    s_lshl_b32 s4, {sr(S_C4)}, 10
    s_lshr_b32 s5, {sr(S_W)}, 1
    s_xor_b32 s5, s5, 1
    s_lshl_b32 s5, s5, 7
    s_add_u32 s4, s4, s5
    s_and_b32 s5, {sr(S_W)}, 1
    s_lshl_b32 s5, s5, 3
    s_add_u32 s4, s4, s5
    v_add_u32 {vr(V_BST)}, s4, v4
    v_lshrrev_b32 v4, 2, v1
    v_lshlrev_b32 v4, 7, v4
    v_lshlrev_b32 v5, 4, v3
    v_add_u32 v4, v4, v5
    v_bfe_u32 v5, v1, 1, 1
    v_lshlrev_b32 v5, 2, v5
    v_add_u32 v4, v4, v5
    s_and_b32 s5, {sr(S_W)}, 1
    s_lshl_b32 s4, s5, 3
    v_add_u32 v4, s4, v4
    v_lshlrev_b32 v5, 2, v0
    s_lshl_b32 s4, s5, 8
    v_add_u32 v5, s4, v5
    v_add_u32 {vr(V_EXPK)}, {LEXP}, v4
    v_add_u32 {vr(V_EXPV)}, {LEXP + 512}, v5
    s_lshl_b32 s4, {sr(S_H)}, 12
    s_lshl_b32 s5, {sr(S_C4)}, 10
    s_add_u32 s4, s4, s5
    s_add_u32 s4, s4, {OFF_KM}
    v_add_u32 {vr(V_EXPM)}, s4, {vr(V_L16)}
    v_mov_b32 {vr(V_NEG)}, -1
    v_mov_b32 {vr(V_NEG+1)}, -1
    v_mov_b32 {vr(V_NEG+2)}, -1
    v_mov_b32 {vr(V_NEG+3)}, -1
    s_lshl_b32 s4, {sr(S_M)}, 10
    s_lshl_b32 s5, {sr(S_Q)}, 9
    s_add_u32 s4, s4, s5
    v_add_u32 v4, s4, {vr(V_L16)}
    {oob_hi(7, 4)}
    v_lshrrev_b32 v4, 3, v0
    v_lshlrev_b32 v4, 10, v4
    v_and_b32 v5, 7, v0
    v_lshlrev_b32 v5, 4, v5
    v_add_u32 v4, v4, v5
    s_lshl_b32 s4, {sr(S_M)}, 13
    s_lshl_b32 s5, {sr(S_G)}, 7
    s_add_u32 s4, s4, s5
    v_add_u32 v4, s4, v4
    s_cmp_eq_u32 {sr(S_W)}, 0
    s_cselect_b64 vcc, -1, 0
    v_cndmask_b32 {vr(V_R1)}, v4, v7, vcc
    s_lshl_b32 s4, {sr(S_C4)}, 10
    v_add_u32 {vr(V_R2)}, s4, {vr(V_L16)}
    s_lshr_b32 s4, {sr(S_M)}, 2
    s_lshl_b32 s4, s4, 1
    s_lshr_b32 s5, {sr(S_C4)}, 1
    s_add_u32 s4, s4, s5
    s_lshl_b32 s4, s4, 10
    s_and_b32 s5, {sr(S_C4)}, 1
    s_lshl_b32 s5, s5, 7
    s_add_u32 s4, s4, s5
    v_lshrrev_b32 v4, 3, v0
    v_lshlrev_b32 v4, 8, v4
    v_and_b32 v5, 7, v0
    v_lshlrev_b32 v5, 4, v5
    v_add_u32 v4, v4, v5
    v_add_u32 v4, s4, v4
    {oob_hi(V_R3, 4)}
    s_lshr_b32 s4, {sr(S_M)}, 2
    s_lshl_b32 s4, s4, 1
    s_lshr_b32 s5, {sr(S_C4)}, 1
    s_add_u32 s4, s4, s5
    s_lshl_b32 s4, s4, 10
    s_and_b32 s5, {sr(S_C4)}, 1
    s_lshl_b32 s5, s5, 7
    s_add_u32 s4, s4, s5
    s_and_b32 s5, {sr(S_W)}, 1
    s_lshl_b32 s5, s5, 3
    s_add_u32 s4, s4, s5
    v_lshlrev_b32 v4, 8, v2
    v_lshlrev_b32 v5, 4, v1
    v_add_u32 v4, v4, v5
    v_add_u32 v4, s4, v4
    v_mov_b32 v5, 0x80000000
    v_cmp_gt_u32 vcc, 8, v1
    s_nop 1
    v_cndmask_b32 {vr(V_OST)}, v5, v4, vcc
    v_lshrrev_b32 v4, 3, v1
    v_lshlrev_b32 v4, 10, v4
    v_and_b32 v5, 7, v1
    v_lshlrev_b32 v5, 4, v5
    v_add_u32 v4, v4, v5
    v_lshlrev_b32 v5, 3, v2
    v_add_u32 v4, v4, v5
    s_lshl_b32 s4, {sr(S_M)}, 13
    s_lshl_b32 s5, {sr(S_W)}, 11
    s_add_u32 s4, s4, s5
    s_lshl_b32 s5, {sr(S_G)}, 7
    s_add_u32 s4, s4, s5
    v_add_u32 v4, s4, v4
    {oob_hi(V_CST, 4)}
    s_lshl_b32 s4, {sr(S_M)}, 13
    s_lshl_b32 s5, {sr(S_Q)}, 12
    s_add_u32 s4, s4, s5
    s_lshl_b32 s5, {sr(S_W)}, 10
    s_add_u32 s4, s4, s5
    v_add_u32 {vr(V_CLD)}, s4, {vr(V_L16)}
    v_lshlrev_b32 v4, 12, v2
    v_lshlrev_b32 v5, 4, v1
    v_add_u32 {vr(V_KXD)}, v4, v5
    v_lshlrev_b32 v4, 16, v2
    v_add_u32 {vr(V_VTD)}, v4, v5
    v_mov_b32 v4, 0x44444444
    v_mov_b32 v5, 0xeeeeeeee
    v_cmp_gt_u32 vcc, 8, v1
    s_nop 1
    v_cndmask_b32 {vr(V_IDX)}, v5, v4, vcc
    v_and_b32 v4, 1, v1
    v_cmp_eq_u32 vcc, 0, v4
    v_mov_b32 v4, 0x01000504
    v_mov_b32 v5, 0x07060302
    v_cndmask_b32 {vr(V_SEL)}, v5, v4, vcc
    v_mov_b32 v4, 0x01000504
    v_mov_b32 v5, 0x05040100
    v_cndmask_b32 v4, v5, v4, vcc
    v_lshrrev_b32 v5, 3, v1
    v_mul_u32_u24 v5, 0x020202, v5
    v_lshrrev_b32 v7, 3, v1
    v_lshlrev_b32 v7, 25, v7
    v_add_u32 v5, v5, v7
    v_add_u32 {vr(V_SEL2)}, v4, v5
    s_mov_b32 {sr(S_PAR)}, 0xaaaaaaaa
    s_mov_b32 {sr(S_PAR+1)}, 0xaaaaaaaa
    """)
    for r in range(4):
        a(f"""
        v_mov_b32 v4, 0
        v_mov_b32 v5, 0x3f80
        v_cmp_eq_u32 vcc, {2*r}, v1
        s_nop 1
        v_cndmask_b32 v4, v4, v5, vcc
        v_mov_b32 v5, 0x3f800000
        v_cmp_eq_u32 vcc, {2*r+1}, v1
        s_nop 1
        v_cndmask_b32 {vr(V_ID+r)}, v4, v5, vcc
        """)
    a(f"""
    v_lshlrev_b32 v4, 3, v0
    s_and_b32 s5, {sr(S_W)}, 1
    s_lshl_b32 s5, s5, 9
    s_add_u32 s5, s5, {LV}
    v_add_u32 {vr(V_VMX)}, s5, v4
    s_mov_b32 {sr(S_CSC)}, {fbits(128**-0.5 * 1.4426950408889634)}
    s_lshr_b32 s4, {sr(S_G)}, 1
    s_lshl_b32 s4, s4, 16
    s_add_u32 {sr(S_AB)}, s4, {OFF_RA}
    s_lshl_b32 s4, {sr(S_H)}, 14
    s_add_u32 {sr(S_BB)}, s4, {OFF_RB}
    s_lshl_b32 s4, {sr(S_G)}, 15
    s_add_u32 {sr(S_OB)}, s4, {OFF_RO}
    s_lshl_b32 s4, {sr(S_H)}, 16
    s_lshl_b32 s5, {sr(S_W)}, 14
    s_add_u32 s4, s4, s5
    s_add_u32 {sr(S_KXB)}, s4, {OFF_KX}
    s_lshl_b32 s4, {sr(S_H)}, 11
    s_lshl_b32 s5, {sr(S_C4)}, 9
    s_add_u32 s4, s4, s5
    s_lshl_b32 s5, {sr(S_W)}, 8
    s_add_u32 s4, s4, s5
    s_add_u32 {sr(S_VTB)}, s4, {OFF_VT}
    """)

def arm_and_mem0(a):
    a(f"""
    s_load_dwordx2 {sr(S_T,2)}, s[0:1], {KA_MEM0}
    s_mov_b32 {sr(S_T+2)}, 16384
    s_mov_b32 {sr(S_T+3)}, 0x20000
    v_lshlrev_b32 v4, 11, v6
    v_and_b32 v5, 6, v1
    v_lshlrev_b32 v5, 1, v5
    v_add_u32 v4, v4, v5
    {oob_hi(4, 4)}
    s_lshl_b32 s4, {sr(S_M)}, 7
    s_lshl_b32 s5, {sr(S_Q)}, 6
    s_add_u32 s4, s4, s5
    s_lshl_b32 s5, {sr(S_W)}, 4
    s_add_u32 s4, s4, s5
    s_waitcnt lgkmcnt(0)
    buffer_load_dword v6, v4, {sr(S_T,4)}, s4 offen
    s_mov_b32 s4, {sr(S_AB)}
    s_waitcnt vmcnt(0)
    buffer_store_dword v6, {vr(V_AST)}, {sr(S_WS,4)}, s4 offen{st_local()}
    """)
    for sl in range(1, 4):
        a(f"""
        s_add_u32 s4, s4, 16384
        buffer_store_dword {vr(V_NEG)}, {vr(V_AST)}, {sr(S_WS,4)}, s4 offen{st_local()}
        """)
    a(f"""
    s_mov_b32 s4, {sr(S_BB)}
    s_mov_b32 s5, {sr(S_OB)}
    s_mov_b32 s6, {OFF_RC}
    """)
    for sl in range(4):
        a(f"""
        buffer_store_dword {vr(V_NEG)}, {vr(V_BST)}, {sr(S_WS,4)}, s4 offen{st_local()}
        buffer_store_dwordx2 {vr(V_NEG,2)}, {vr(V_CST)}, {sr(S_WS,4)}, s6 offen sc1
        s_add_u32 s4, s4, 4096
        s_add_u32 s6, s6, {CSLOT}
        """)
    if CFG.get('arm_export', True):
        a(f"s_lshl_b32 s4, {sr(S_W)}, 21")
        for k in range(16):
            a(f"buffer_store_dwordx4 {vr(V_NEG,4)}, {vr(V_EXPM)}, {sr(S_WS,4)}, s4 offen sc1")
            a(f"s_add_u32 s4, s4, 131072")
    lab = a.label("Lnoo")
    a(f"""
    s_cmp_lt_u32 {sr(S_W)}, 2
    s_cbranch_scc1 {lab}
    """)
    for sl in range(4):
        a(f"""
        buffer_store_dwordx2 {vr(V_NEG,2)}, {vr(V_OST)}, {sr(S_WS,4)}, s5 offen{st_local()}
        s_add_u32 s5, s5, 8192
        """)
    a(f"{lab}:")

def load_srd(a, ka, nbytes):
    a(f"""
    s_load_dwordx2 {sr(S_T,2)}, s[0:1], {ka}
    s_mov_b32 {sr(S_T+2)}, {nbytes}
    s_mov_b32 {sr(S_T+3)}, 0x20000
    s_waitcnt lgkmcnt(0)
    """)

def load_weights(a):
    VQ, VO, VT0, VT1, VWO = 76, 77, 78, 79, 80
    a(f"""
    v_lshrrev_b32 v4, 2, v0
    v_lshlrev_b32 v4, 13, v4
    v_and_b32 v5, 3, v0
    v_lshlrev_b32 v5, 4, v5
    v_add_u32 v{VQ}, v4, v5
    v_lshrrev_b32 v4, 3, v0
    v_lshlrev_b32 v4, 11, v4
    v_and_b32 v5, 7, v0
    v_lshlrev_b32 v5, 4, v5
    v_add_u32 v{VO}, v4, v5
    s_lshl_b32 s4, {sr(S_H)}, 8
    s_lshl_b32 s5, {sr(S_C4)}, 6
    s_add_u32 {sr(S_TMP)}, s4, s5
    s_lshl_b32 s4, {sr(S_W)}, 21
    s_add_u32 {sr(S_TMP)}, {sr(S_TMP)}, s4  ; + 256w rows * 8192
    v_lshrrev_b32 v4, 5, v0                 ; gb>>1
    v_lshlrev_b32 v4, 4, v4
    v_bfe_u32 v5, v0, 4, 1                  ; gb&1
    v_lshlrev_b32 v6, 2, v5
    v_add_u32 v4, v4, v6
    v_bfe_u32 v6, v0, 3, 1                  ; r>>1
    v_lshlrev_b32 v7, 3, v6
    v_add_u32 v4, v4, v7
    v_bfe_u32 v7, v0, 2, 1                  ; r&1
    v_add_u32 v4, v4, v7
    v_lshlrev_b32 v4, 6, v4
    v_and_b32 v7, 3, v0
    v_lshlrev_b32 v7, 3, v7                 ; c4*8
    v_add_u32 v4, v4, v7
    s_lshl_b32 s4, {sr(S_W)}, 14
    v_add_u32 v{VT0}, s4, v4
    s_add_u32 s4, s4, 65536
    v_add_u32 v{VT1}, s4, v4
    v_lshlrev_b32 v4, 5, v6
    v_lshlrev_b32 v5, 4, v5
    v_add_u32 v4, v4, v5
    v_lshrrev_b32 v5, 5, v0
    v_lshlrev_b32 v5, 2, v5
    v_add_u32 v4, v4, v5
    v_bfe_u32 v5, v0, 2, 1
    v_add_u32 v4, v4, v5
    v_lshlrev_b32 v4, 7, v4
    v_add_u32 v4, v4, v7
    s_lshl_b32 s4, {sr(S_W)}, 5
    s_add_u32 s4, s4, 65536
    v_add_u32 v{VWO}, s4, v4
    """)
    def dma_qkv(ka, ldsbase):
        load_srd(a, ka, 8*MB)
        a(f"""
        s_mov_b32 s4, {sr(S_TMP)}
        s_lshl_b32 s5, {sr(S_W)}, 14
        s_add_u32 s5, s5, {ldsbase}
        """)
        for i in range(16):
            a(f"""
            s_mov_b32 m0, s5
            s_add_u32 s5, s5, 1024
            buffer_load_dwordx4 v{VQ}, {sr(S_T,4)}, s4 offen lds
            s_add_u32 s4, s4, 131072
            """)
    def tr_tiles(vaddr, tile0):
        n = 0
        for t in range(2):
            for i in range(4):
                for hb in range(2):
                    for pr in range(2):
                        a(f"ds_read_b64_tr_b16 {ar(((tile0+t)*4 + i)*8 + 4*hb + 2*pr, 2)}, v{vaddr} offset:{i*4096 + hb*2048 + pr*128 + t*32}")
                        n += 1
                        if n % 8 == 0: a("s_waitcnt lgkmcnt(4)")
        a("s_waitcnt lgkmcnt(0)")
    dma_qkv(KA_WQ, 0)
    dma_qkv(KA_WK, 65536)
    a("s_waitcnt vmcnt(16)")
    tr_tiles(VT0, 2)
    dma_qkv(KA_WV, 0)
    a("s_waitcnt vmcnt(16)")
    tr_tiles(VT1, 0)
    load_srd(a, KA_WO, 8*MB)
    a(f"""
    s_lshl_b32 s4, {sr(S_G)}, 9
    s_lshl_b32 s5, {sr(S_W)}, 7
    s_add_u32 s4, s4, s5
    s_lshl_b32 s4, s4, 11                   ; row*2048
    s_lshl_b32 s5, {sr(S_M)}, 7
    s_add_u32 s4, s4, s5
    s_lshl_b32 s5, {sr(S_W)}, 14
    s_add_u32 s5, s5, 65536
    """)
    for i in range(16):
        a(f"""
        s_mov_b32 m0, s5
        s_add_u32 s5, s5, 1024
        buffer_load_dwordx4 v{VO}, {sr(S_T,4)}, s4 offen lds
        s_add_u32 s4, s4, 16384
        """)
    a("s_waitcnt vmcnt(16)")
    tr_tiles(VT0, 4)
    a("""
    s_waitcnt vmcnt(0)
    s_barrier
    """)
    for ks in range(8):
        for hb in range(2):
            for pr in range(2):
                a(f"ds_read_b64_tr_b16 {ar(A_WO + 8*ks + 4*hb + 2*pr, 2)}, v{VWO} offset:{ks*8192 + hb*1024 + pr*256}")
        if ks % 2 == 1: a("s_waitcnt lgkmcnt(4)")
    a("""
    s_waitcnt lgkmcnt(0)
    s_barrier
    """)

def seg_offsets_l(seg):
    return [x.strip() for x in f"""s_lshr_b32 s4, {sr(seg)}, 3
    s_lshl_b32 s4, s4, 21
    s_and_b32 s5, {sr(seg)}, 7
    s_lshl_b32 s5, s5, 9
    s_add_u32 s4, s4, s5
    s_add_u32 {sr(S_KXD)}, s4, {sr(S_KXB)}
    s_lshl_b32 s4, {sr(seg)}, 18
    s_add_u32 {sr(S_VTD)}, s4, {sr(S_VTB)}
    s_and_b32 s4, {sr(seg)}, 1
    s_mul_i32 s4, s4, {KXSLOT}
    s_add_u32 {sr(S_LWR)}, s4, {LKX}""".split("\n")]

def prefetch_l(vwave, part=0):
    if CFG.get('nopf'): return []
    if CFG.get('pf01') and not vwave: return []
    if part == 1:
        if not CFG.get('pf01'): return []
        return [[f"s_lshl_b32 s6, {sr(S_W)}, 10", f"s_add_u32 s6, s6, {sr(S_LWR)}", f"s_add_u32 s6, s6, 2048", f"s_add_u32 s7, {sr(S_KXD)}, 32768"],
           ["s_mov_b32 m0, s6", f"s_add_u32 s6, s6, {4096 - 256}",
            f"buffer_load_dwordx4 {vr(V_KXD)}, {sr(S_WS,4)}, s7 offen sc1 lds"],
           ["s_mov_b32 m0, s6", "s_nop 0",
            f"buffer_load_dwordx4 {vr(V_KXD)}, {sr(S_WS,4)}, s7 offen offset:256 sc1 lds"]]
    out = [[f"s_lshl_b32 s6, {sr(S_W)}, 10", f"s_add_u32 s6, s6, {sr(S_LWR)}"],
           ["s_mov_b32 m0, s6", f"s_add_u32 s6, s6, {4096 - 256}",
            f"buffer_load_dwordx4 {vr(V_KXD)}, {sr(S_WS,4)}, {sr(S_KXD)} offen sc1 lds"],
           ["s_mov_b32 m0, s6", f"s_add_u32 s6, s6, {4096 + 256}",
            f"buffer_load_dwordx4 {vr(V_KXD)}, {sr(S_WS,4)}, {sr(S_KXD)} offen offset:256 sc1 lds"]]
    if vwave:
        out.append(["s_mov_b32 m0, s6", "s_nop 0",
                    f"buffer_load_dwordx4 {vr(V_VTD)}, {sr(S_WS,4)}, {sr(S_VTD)} offen sc1 lds"])
    return out

def flat(groups):
    out = []
    for g in groups:
        if isinstance(g, str): out.append(g)
        else: out.extend(g)
    return out

def front_offsets_l():
    return [x.strip() for x in f"""s_and_b32 s4, {sr(S_STEP)}, 3
    s_lshl_b32 s5, s4, 17
    s_add_u32 {sr(S_C)}, s5, {OFF_RC}
    s_add_u32 s5, s4, 2
    s_and_b32 s5, s5, 3
    s_lshl_b32 s5, s5, 17
    s_add_u32 {sr(S_CRE)}, s5, {OFF_RC}
    s_add_u32 s4, s4, 3
    s_and_b32 s4, s4, 3
    s_lshl_b32 s5, s4, 14
    s_add_u32 {sr(S_ARE)}, s5, {sr(S_AB)}
    s_lshl_b32 s5, s4, 12
    s_add_u32 {sr(S_BRE)}, s5, {sr(S_BB)}
    s_lshl_b32 s5, s4, 13
    s_add_u32 {sr(S_ORE)}, s5, {sr(S_OB)}
    s_lshl_b32 {sr(S_EXP)}, {sr(S_STEP)}, 17""".split("\n")]

def next_offsets_l():
    return [x.strip() for x in f"""s_add_u32 {sr(S_STEP)}, {sr(S_STEP)}, 1
    s_and_b32 s4, {sr(S_STEP)}, 3
    s_lshl_b32 s5, s4, 14
    s_add_u32 {sr(S_A)}, s5, {sr(S_AB)}
    s_lshl_b32 s5, s4, 12
    s_add_u32 {sr(S_B)}, s5, {sr(S_BB)}
    s_lshl_b32 s5, s4, 13
    s_add_u32 {sr(S_O)}, s5, {sr(S_OB)}
    s_and_b32 s4, {sr(S_STEP)}, 1
    s_mul_i32 s4, s4, {KXSLOT}
    s_add_u32 {sr(S_LRD)}, s4, {LKX}
    s_add_u32 {sr(S_TMP)}, {sr(S_STEP)}, 1
    s_min_u32 {sr(S_TMP)}, {sr(S_TMP)}, 63""".split("\n")] + seg_offsets_l(S_TMP)

def smf(d, af, b_reg):
    return f"v_smfmac_f32_16x16x64_bf16 {vr(d,4)}, {vr(af,4)}, {b_reg}, {vr(V_IDX)}"

def tile_smf(tile, i):
    return smf(DT + 4*tile, AF + 4*i, ar((tile*4 + i)*8, 8))

def sum4(a, base):
    a(f"""
    v_pk_add_f32 {vr(base,2)}, {vr(base,2)}, {vr(base+4,2)}
    v_pk_add_f32 {vr(base+2,2)}, {vr(base+2,2)}, {vr(base+6,2)}
    v_pk_add_f32 {vr(base+8,2)}, {vr(base+8,2)}, {vr(base+12,2)}
    v_pk_add_f32 {vr(base+10,2)}, {vr(base+10,2)}, {vr(base+14,2)}
    v_pk_add_f32 {vr(base,2)}, {vr(base,2)}, {vr(base+8,2)}
    v_pk_add_f32 {vr(base+2,2)}, {vr(base+2,2)}, {vr(base+10,2)}
    s_nop 1
    """)

def gemm1(a, w, last=False):
    loads = [f"buffer_load_dwordx4 {vr(AF + 4*i, 4)}, {vr(V_ALD)}, {sr(S_WS,4)}, {sr(S_A)} offen offset:{i*1024} sc1" for i in range(4)]
    poll_issue(a, "A", loads)
    for r in range(24): a(f"v_mov_b32 {vr(DT+r)}, 0")
    for ln in front_offsets_l(): a(ln)
    if CFG['prof']:
        a("s_waitcnt lgkmcnt(0)")
        for i in range(1, 8):
            a(f"s_sub_u32 s4, {sr(S_PROF + 2*i)}, {sr(S_PROF)}")
            a(f"s_add_u32 {sr(S_ACC + i)}, {sr(S_ACC + i)}, s4")
    for i in range(4):
        top = a.label("LpA"); retry = a.label("LrA")
        a(f"s_waitcnt vmcnt({3-i})")
        a(f"{top}:")
        check(a, [AF + 4*i + r for r in range(4)], retry)
        back = a.label("LbA")
        retry_code(a, "A", retry, loads[i:] + [f"s_waitcnt vmcnt({3-i})"], top)
        if i == 3: stamp(a, 0)
        for tile in range(4): a(tile_smf(tile, i))
    vs = [tile_smf(4 + t, i) for i in range(4) for t in range(2)]
    a(vs[0]); a(vs[1])
    for tile in range(4):
        a(f"ds_write_b128 {vr(V_PW)}, {vr(DT + 4*tile, 4)} offset:{LA + tile*4096}")
        a(vs[2 + tile])
    a(vs[6]); a(vs[7])
    a("s_waitcnt lgkmcnt(0)")
    a("s_barrier")
    for src in range(4):
        a(f"ds_read_b128 {vr(PR + 4*src, 4)}, {vr(V_ALD)} offset:{LA + src*1024}")
    for t in range(2):
        a(f"ds_write_b128 {vr(V_PW)}, {vr(DT + 16 + 4*t, 4)} offset:{LVP + t*4096}")
    if not last:
        for ln in flat(prefetch_l(w < 2)): a(ln)
    a("s_waitcnt lgkmcnt(2)")
    sum4(a, PR)
    halves_sum(a, PR, V_W, V_W+1)
    pack_pairs(a, V_W, V_W+1, V_W+2, V_W+3)
    if not last:
        a(f"buffer_store_dword {vr(V_W+2)}, {vr(V_BST)}, {sr(S_WS,4)}, {sr(S_B)} offen{st_local()}")
        for ln in flat(prefetch_l(w < 2, 1)): a(ln)
    stamp(a, 1)

def v_reduce(a):
    for src in range(4):
        a(f"ds_read_b128 {vr(PR + 4*src, 4)}, {vr(V_ALD)} offset:{LVP + src*1024}")
    a(f"ds_write_b32 {vr(V_EXPK)}, {vr(V_W+2)}")
    a("s_waitcnt lgkmcnt(1)")
    sum4(a, PR)
    halves_sum(a, PR, V_W+4, V_W+5)
    a(f"""
    v_cvt_pk_bf16_f32 {vr(V_W+6)}, {vr(V_W+4)}, 0
    v_cvt_pk_bf16_f32 {vr(V_W+7)}, {vr(V_W+5)}, 0
    v_cvt_pk_bf16_f32 {vr(V_EXP)}, {vr(V_W+4)}, {vr(V_W+5)}
    ds_write_b64 {vr(V_VMX)}, {vr(V_W+6,2)}
    ds_write_b32 {vr(V_EXPV)}, {vr(V_EXP)}
    """)

def export_read(a):
    a(f"ds_read_b128 {vr(V_EXR,4)}, {vr(V_L16)} offset:{LEXP}")

def export_store(a):
    a(f"buffer_store_dwordx4 {vr(V_EXR,4)}, {vr(V_EXPM)}, {sr(S_WS,4)}, {sr(S_EXP)} offen sc1")

def shadow(a, w):
    if w == 0:
        a(f"buffer_store_dwordx4 {vr(V_NEG,4)}, {vr(V_R1)}, {sr(S_WS,4)}, {sr(S_ARE)} offen{st_local()}")
        a(f"buffer_store_dwordx4 {vr(V_NEG,4)}, {vr(V_R2)}, {sr(S_WS,4)}, {sr(S_BRE)} offen{st_local()}")
        a(f"buffer_store_dwordx4 {vr(V_NEG,4)}, {vr(V_R3)}, {sr(S_WS,4)}, {sr(S_ORE)} offen{st_local()}")
    if w == 1 and CFG.get('progress'):
        lab = a.label("Lprg")
        a(f"""
        s_or_b32 s4, {sr(S_G)}, {sr(S_M)}
        s_cmp_lg_u32 s4, 0
        s_cbranch_scc1 {lab}
        s_add_u32 s4, {sr(S_STEP)}, 1
        v_mov_b32 {vr(V_T)}, {OFF_CNT + CN_PROG*256}
        v_mov_b32 {vr(V_T+1)}, s4
        s_mov_b64 exec, 1
        buffer_store_dword {vr(V_T+1)}, {vr(V_T)}, {sr(S_WS,4)}, 0 offen sc1
        s_mov_b64 exec, -1
        {lab}:
        """)

def kv_check(a, dbg_srd):
    if not CFG.get('kv_flags'): return
    lab = a.label("Lkv")
    a(f"""
    s_add_u32 s4, {sr(S_STEP)}, 2
    s_mov_b32 s6, 128
    s_cmp_eq_u32 s4, 4
    s_cselect_b32 s4, 64, s4
    s_cselect_b32 s7, 0, 1
    s_and_b32 s5, s4, 7
    s_cmp_lg_u32 s5, 0
    s_cbranch_scc1 {lab}_ok
    s_lshr_b32 s4, s4, 3
    s_mul_i32 s4, s4, s7
    s_cmp_eq_u32 s7, 1
    s_cselect_b32 s6, 32, s6
    s_cmp_ge_u32 s4, 8
    s_cbranch_scc1 {lab}_ok
    s_add_u32 s4, s4, {CN_KV}
    s_lshl_b32 s4, s4, 8
    s_add_u32 s4, s4, {OFF_CNT}
    s_branch {lab}_cold
    {lab}_ok:
    """)
    a.cold.append(f"""{lab}_cold:
    v_mov_b32 v4, s4
    {lab}_l:
    buffer_load_dword v5, v4, {sr(S_WS,4)}, 0 offen sc1
    s_waitcnt vmcnt(0)
    v_cmp_le_u32 vcc, s6, v5
    s_cbranch_vccnz {lab}_ok
    s_sleep 4
    s_sub_u32 {sr(S_BUD)}, {sr(S_BUD)}, 1
    s_cbranch_scc0 {lab}_l
    s_branch L_R_abort""")

def after_c_store(a, w):
    if w == 0:
        export_store(a)
    if w == 1:
        a(f"buffer_store_dwordx4 {vr(V_NEG,4)}, {vr(V_R1)}, {sr(S_WS,4)}, {sr(S_CRE)} offen sc1")

def attention(a, w):
    t = w & 1
    loads = [f"buffer_load_dwordx4 {vr(XF + 4*c, 4)}, {vr(V_L16)}, {sr(S_WS,4)}, {sr(S_B)} offen offset:{c*1024} sc1" for c in range(4)]
    poll_issue(a, "B", loads)
    a("s_waitcnt lgkmcnt(0)")
    a("s_barrier")
    a(f"v_add_u32 {vr(V_T+1)}, {sr(S_LRD)}, {vr(V_L16)}")
    for tau in range(2):
        for c in range(4):
            a(f"ds_read_b128 {vr(KXF + 16*tau + 4*c, 4)}, {vr(V_T+1)} offset:{(tau*4 + c)*1024}")
    a(f"ds_read_b64 {vr(PA0,2)}, {vr(V_T+1)} offset:{8192 + t*1024}")
    a(f"ds_read_b64 {vr(PA1,2)}, {vr(V_T+1)} offset:{8192 + t*1024 + 8}")
    a("s_barrier")
    a(f"ds_read_b32 {vr(PA0+2)}, {vr(V_VMX)}")
    a(f"ds_read_b32 {vr(PA1+2)}, {vr(V_VMX)} offset:4")
    poll_wait(a, "B", loads, [XF + r for r in range(16)])
    stamp(a, 2)
    a("s_waitcnt lgkmcnt(0)")
    Dm, D0, D1 = V_W, V_W+4, V_W+8
    for c in range(4):
        cm = "0" if c == 0 else vr(Dm,4); c0 = "0" if c == 0 else vr(D0,4); c1 = "0" if c == 0 else vr(D1,4)
        a(f"v_mfma_f32_16x16x32_bf16 {vr(Dm,4)}, {vr(XF+4*c,4)}, {vr(XF+4*c,4)}, {cm}")
        a(f"v_mfma_f32_16x16x32_bf16 {vr(D0,4)}, {vr(KXF+4*c,4)}, {vr(XF+4*c,4)}, {c0}")
        a(f"v_mfma_f32_16x16x32_bf16 {vr(D1,4)}, {vr(KXF+16+4*c,4)}, {vr(XF+4*c,4)}, {c1}")
    a("s_nop 0")
    a(f"v_mov_b32_dpp {vr(Dm)}, {vr(Dm+1)} row_shr:8 row_mask:0xf bank_mask:0xc")
    a(f"v_mov_b32_dpp {vr(Dm+2)}, {vr(Dm+3)} row_shr:8 row_mask:0xf bank_mask:0xc")
    a("s_nop 4")
    for r in range(4):
        a(f"v_mov_b32_dpp {vr(D0+r)}, {vr(D1+r)} row_shr:8 row_mask:0xf bank_mask:0xc")
    a(f"v_permlane32_swap_b32 {vr(Dm)}, {vr(Dm+2)}")
    pm = Dm+2; M = V_W+12; T2 = V_W+13
    a(f"""
    v_max3_f32 {vr(M)}, {vr(D0)}, {vr(D0+1)}, {vr(D0+2)}
    v_max3_f32 {vr(M)}, {vr(M)}, {vr(D0+3)}, {vr(pm)}
    s_nop 1
    v_max_f32_dpp {vr(T2)}, {vr(M)}, {vr(M)} row_ror:8 row_mask:0xf bank_mask:0xf
    v_max_f32_dpp {vr(M)}, {vr(M)}, {vr(M)} row_ror:8 row_mask:0xf bank_mask:0xf
    s_nop 1
    v_permlane16_swap_b32 {vr(M)}, {vr(T2)}
    v_max_f32 {vr(M)}, {vr(M)}, {vr(T2)}
    v_max_f32 {vr(T2)}, {vr(M)}, {vr(M)}
    s_nop 1
    v_permlane32_swap_b32 {vr(M)}, {vr(T2)}
    v_max_f32 {vr(M)}, {vr(M)}, {vr(T2)}
    v_mul_f32 {vr(M)}, {sr(S_CSC)}, {vr(M)}
    """)
    for r in range(4):
        a(f"v_fma_f32 {vr(D0+r)}, {vr(D0+r)}, {sr(S_CSC)}, -{vr(M)}")
    a(f"v_fma_f32 {vr(pm)}, {vr(pm)}, {sr(S_CSC)}, -{vr(M)}")
    for r in range(4):
        a(f"v_exp_f32 {vr(D0+r)}, {vr(D0+r)}")
    a(f"v_exp_f32 {vr(pm)}, {vr(pm)}")
    a(f"""
    v_cvt_pk_bf16_f32 {vr(PB)}, {vr(D0)}, {vr(D0+1)}
    v_cvt_pk_bf16_f32 {vr(PB+1)}, {vr(D0+2)}, {vr(D0+3)}
    v_cvt_pk_bf16_f32 {vr(PB+2)}, {vr(pm)}, 0
    s_nop 1
    """)
    DA, DB, DS = V_W, V_W+4, V_W+8
    a(f"v_mfma_f32_16x16x32_bf16 {vr(DS,4)}, {vr(ONES,4)}, {vr(PB,4)}, 0")
    a(f"v_mfma_f32_16x16x32_bf16 {vr(DA,4)}, {vr(PA0,4)}, {vr(PB,4)}, 0")
    a(f"v_mfma_f32_16x16x32_bf16 {vr(DB,4)}, {vr(PA1,4)}, {vr(PB,4)}, 0")
    L = V_W+12
    a("s_nop 3")
    a(f"v_add_f32_dpp {vr(L)}, {vr(DS)}, {vr(DS)} row_ror:8 row_mask:0xf bank_mask:0xf")
    a(f"v_rcp_f32 {vr(L)}, {vr(L)}")
    a("s_nop 2")
    for r in range(4):
        a(f"v_add_f32_dpp {vr(DA+r)}, {vr(DB+r)}, {vr(DA+r)} row_ror:8 row_mask:0xf bank_mask:0xf")
    for r in range(4):
        a(f"v_mul_f32 {vr(DA+r)}, {vr(DA+r)}, {vr(L)}")
    a(f"""
    v_cvt_pk_bf16_f32 {vr(DB)}, {vr(DA)}, {vr(DA+1)}
    v_cvt_pk_bf16_f32 {vr(DB+1)}, {vr(DA+2)}, {vr(DA+3)}
    buffer_store_dwordx2 {vr(DB,2)}, {vr(V_OST)}, {sr(S_WS,4)}, {sr(S_O)} offen{st_local()}
    """)
    stamp(a, 3)

def gemm2(a, w):
    own = [2*w, 2*w+1]
    loads = [f"buffer_load_dwordx4 {vr(OF + 4*(2*w+i), 4)}, {vr(V_OLD)}, {sr(S_WS,4)}, {sr(S_O)} offen offset:{i*1024} sc1" for i in range(2)]
    poll_issue(a, "O", loads)
    for r in range(4): a(f"v_mov_b32 {vr(D2+r)}, 0")
    poll_wait(a, "O", loads, [OF + 8*w + r for r in range(8)])
    stamp(a, 4)
    for i in range(2):
        a(f"ds_write_b128 {vr(V_OLD)}, {vr(OF + 4*(2*w+i), 4)} offset:{LO + i*1024}")
    a(smf(D2, OF + 4*own[0], ar(A_WO + 8*own[0], 8)))
    a("s_waitcnt lgkmcnt(0)")
    a("s_barrier")
    others = [k for k in range(8) if k not in own]
    for k in others:
        a(f"ds_read_b128 {vr(OF + 4*k, 4)}, {vr(V_L16)} offset:{LO + k*1024}")
    a(smf(D2, OF + 4*own[1], ar(A_WO + 8*own[1], 8)))
    for n, k in enumerate(others):
        a(f"s_waitcnt lgkmcnt({5-n})")
        a(smf(D2, OF + 4*k, ar(A_WO + 8*k, 8)))
    a("s_nop 7")
    for r in range(4): a(f"v_permlane32_swap_b32 {vr(D2+r)}, {vr(V_W+r)}")
    a(f"""
    v_pk_add_f32 {vr(D2,2)}, {vr(D2,2)}, {vr(V_W,2)}
    v_pk_add_f32 {vr(D2+2,2)}, {vr(D2+2,2)}, {vr(V_W+2,2)}
    v_cvt_pk_bf16_f32 {vr(V_W+4)}, {vr(D2)}, {vr(D2+1)}
    v_cvt_pk_bf16_f32 {vr(V_W+5)}, {vr(D2+2)}, {vr(D2+3)}
    buffer_store_dwordx2 {vr(V_W+4,2)}, {vr(V_CST)}, {sr(S_WS,4)}, {sr(S_C)} offen sc1
    """)
    stamp(a, 5)

def reduce_c(a, w):
    loads = [f"buffer_load_dwordx4 {vr(CF,4)}, {vr(V_CLD)}, {sr(S_WS,4)}, {sr(S_C)} offen sc1"]
    poll_issue(a, "C", loads)
    for ln in next_offsets_l(): a(ln)
    poll_wait(a, "C", loads, [CF + r for r in range(4)])
    stamp(a, 6)
    D = V_W
    a(f"v_mfma_f32_16x16x32_bf16 {vr(D,4)}, {vr(V_ID,4)}, {vr(CF,4)}, 0")
    a("s_nop 7")
    for r in range(4):
        a(f"v_add_f32_dpp {vr(D+r)}, {vr(D+r)}, {vr(D+r)} row_ror:8 row_mask:0xf bank_mask:0xf")
    a(f"""
    v_cvt_pk_bf16_f32 {vr(D+4)}, {vr(D)}, {vr(D+1)}
    v_cvt_pk_bf16_f32 {vr(D+5)}, {vr(D+2)}, {vr(D+3)}
    v_cndmask_b32 {vr(D+6)}, {vr(D+5)}, {vr(D+4)}, {sr(S_PAR,2)}
    v_cndmask_b32 {vr(D+7)}, {vr(D+4)}, {vr(D+5)}, {sr(S_PAR,2)}
    s_nop 0
    v_mov_b32_dpp {vr(D+8)}, {vr(D+6)} quad_perm:[1,0,3,2] row_mask:0xf bank_mask:0xf
    v_perm_b32 {vr(D+9)}, {vr(D+7)}, {vr(D+8)}, {vr(V_SEL2)}
    buffer_store_dword {vr(D+9)}, {vr(V_AST)}, {sr(S_WS,4)}, {sr(S_A)} offen{st_local()}
    """)
    if CFG['dbg_mem']:
        lab = a.label("Lnd")
        a(f"""
        s_cmp_gt_u32 {sr(S_G)}, 1
        s_cbranch_scc1 {lab}
        s_lshl_b32 s4, {sr(S_STEP)}, 14
        s_add_u32 s4, s4, {OFF_MEMDBG}
        buffer_store_dword {vr(D+9)}, {vr(V_AST)}, {sr(S_WS,4)}, s4 offen sc1
        {lab}:
        """)
    stamp(a, 7)

def wave_loop(a, w):
    ns = CFG['nsteps']
    top = a.label("Lstep")
    if w >= 2:
        for r in range(4): a(f"v_mov_b32 {vr(ONES+r)}, 0x3f803f80")
        a(f"v_mov_b32 {vr(PA0+3)}, 0")
        a(f"v_mov_b32 {vr(PA1+3)}, 0")
        a(f"v_mov_b32 {vr(PB+3)}, 0")
    last = a.label("Llast")
    a(f"{top}:")
    if CFG.get('tl') and w == 0:
        a("s_memrealtime s[94:95]")
        a("s_waitcnt lgkmcnt(0)")
        a(f"s_mov_b32 m0, {sr(S_STEP)}")
        a("s_nop 0")
        a("v_writelane_b32 v250, s94, m0")
        a("s_memtime s[94:95]")
        a("s_waitcnt lgkmcnt(0)")
        a("v_writelane_b32 v251, s94, m0")
    a(f"s_cmp_eq_u32 {sr(S_STEP)}, {ns-1}")
    a(f"s_cbranch_scc1 {last}")
    gemm1(a, w)
    if w < 2:
        a("s_waitcnt lgkmcnt(0)")
        a("s_barrier")
        v_reduce(a)
        shadow(a, w)
        a("s_waitcnt lgkmcnt(0)")
        a("s_barrier")
        if w == 0:
            export_read(a)
            kv_check(a, a.dbg_srd)
    else:
        attention(a, w)
    gemm2(a, w)
    after_c_store(a, w)
    reduce_c(a, w)
    a(f"s_branch {top}")
    a(f"{last}:")
    sv = CFG['prof']; CFG['prof'] = False
    gemm1(a, w, last=True)
    CFG['prof'] = sv
    a("s_waitcnt lgkmcnt(0)")
    a("s_barrier")
    if w < 2:
        v_reduce(a)
    a("s_waitcnt lgkmcnt(0)")
    a("s_barrier")
    if w == 0:
        export_read(a)
        a("s_waitcnt lgkmcnt(0)")
        export_store(a)
    a("s_waitcnt vmcnt(0)")
    a("s_branch L_R_done")

def start_barrier(a, dbg_srd, off):
    ok = a.label("Lsbo")
    a(f"""
    s_waitcnt vmcnt(0)
    s_barrier
    s_cmp_lg_u32 {sr(S_W)}, 0
    s_cbranch_scc1 {ok}
    v_mov_b32 v4, {off}
    v_mov_b32 v5, 1
    v_cmp_eq_u32 vcc, 0, v0
    s_and_saveexec_b64 s[6:7], vcc
    buffer_atomic_add v5, v4, {sr(dbg_srd,4)}, 0 offen sc1
    s_mov_b64 exec, s[6:7]
    {ok}:
    """)

def wait_barrier(a, srd, off, count):
    lab = a.label("Lwb")
    a(f"""
    s_cmp_lg_u32 {sr(S_W)}, 0
    s_cbranch_scc1 {lab}_ok
    v_mov_b32 v4, {off}
    {lab}:
    buffer_load_dword v5, v4, {sr(srd,4)}, 0 offen sc1
    s_waitcnt vmcnt(0)
    v_cmp_le_u32 vcc, {count}, v5
    s_cbranch_vccnz {lab}_ok
    s_sleep 8
    s_sub_u32 {sr(S_BUD)}, {sr(S_BUD)}, 1
    s_cbranch_scc0 {lab}
    s_branch L_R_abort
    {lab}_ok:
    s_barrier
    """)

def emit_R(a, dbg_srd, bar_off):
    a.cold = []
    a.dbg_srd = dbg_srd
    setup(a)
    arm_and_mem0(a)
    start_barrier(a, dbg_srd, bar_off)
    if CFG.get('proto'): a(f"s_memtime {sr(S_PROF + 16, 2)}")
    load_weights(a)
    if CFG.get('proto'): a(f"s_memtime {sr(S_PROF + 18, 2)}")
    wait_barrier(a, dbg_srd, bar_off, CFG.get('bar_count', 128))
    if CFG.get('kv_flags'):
        wait_barrier(a, dbg_srd, C_LN0*4, 16)
        wait_barrier(a, S_WS, OFF_CNT + CN_KV0A*256, 128)
    a(f"s_mov_b32 {sr(S_STEP)}, 0")
    for ln in seg_offsets_l(S_STEP): a(ln)
    l0 = a.label("Lpf"); l1 = a.label("Lpf")
    a(f"s_cmp_lt_u32 {sr(S_W)}, 2")
    a(f"s_cbranch_scc1 {l0}")
    for ln in flat(prefetch_l(False)): a(ln)
    a(f"s_branch {l1}")
    a(f"{l0}:")
    for ln in flat(prefetch_l(True)): a(ln)
    for ln in flat(prefetch_l(True, 1)): a(ln)
    a(f"{l1}:")
    a(f"s_mov_b32 {sr(S_STEP)}, -1")
    for ln in next_offsets_l(): a(ln)
    a("s_waitcnt vmcnt(0)")
    a("s_barrier")
    if CFG['prof']:
        for i in range(8):
            a(f"s_mov_b32 {sr(S_PROF + 2*i)}, 0")
            a(f"s_mov_b32 {sr(S_ACC + i)}, 0")
    if CFG.get('proto'):
        for ci in range(68, 72): a(f"s_mov_b32 s{ci}, 0")
        calib(a, 96)
        a(f"s_memtime {sr(S_PROF + 20, 2)}")
    labs = [a.label("Lwave") for _ in range(4)]
    for w in range(1, 4):
        a(f"s_cmp_eq_u32 {sr(S_W)}, {w}")
        a(f"s_cbranch_scc1 {labs[w]}")
    for w in range(4):
        a(f"{labs[w]}:")
        wave_loop(a, w)
    for c in a.cold: a(c)
```

```python
def masks(avail=(127.5,137.5,165.0), rate=2.3, rstart=15.0, rstep=3.0, at0=102.5, atr=0.75, dn=(124,124,124,124,140,140,160,160), verbose=False):
    free=list(avail); m=[0]*len(avail); end=0
    atprev=at0
    for s in range(64):
        rdy_exp=rstart+rstep*(s+1.5)
        at=max(atprev+atr, rdy_exp+3.0); atprev=at
        rdy=max(at,dn[s>>3])
        k=min(range(len(free)),key=lambda i:(max(free[i],rdy),free[i]))
        st=max(free[k],rdy); free[k]=st+rate; m[k]|=1<<s
        if verbose: print(s,k,round(at,1),round(st,1),round(free[k],1))
        end=max(end,free[k])
    return m,end
if __name__=="__main__":
    m,e=masks(verbose=True); print([hex(x) for x in m],e,[bin(x).count('1') for x in m])
```

```python
import sys
from asmlib import *
from layout import *
import gk3 as gk, rk6 as rk

NAME = "recurrent_scan__memory_aug_recurrent_mem_tr__glu_gated_reglu__prompt_kernel"
STUB = open("recurrent_scan__memory_aug_recurrent_mem_tr__glu_gated_reglu__prompt.s.ref").read()

def header(name):
    lines = STUB.split("\n")
    hdr = [l for l in lines if l.startswith(";") and not l.startswith("; @launch")]
    out = []
    for l in lines:
        if l.startswith("; @launch"):
            out.append("; @launch grid=(256,1,1) block=(256,1,1) lds=163840")
            break
        out.append(l)
    out.append(f""".amdgcn_target "amdgcn-amd-amdhsa--gfx950"
.text
.globl {name}
.p2align 8
.type {name},@function
{name}:""")
    return "\n".join(out)

def footer(name):
    return f"""
.section .rodata,"a"
.p2align 6
.amdhsa_kernel {name}
  .amdhsa_next_free_vgpr 512
  .amdhsa_next_free_sgpr 102
  .amdhsa_accum_offset 256
  .amdhsa_group_segment_fixed_size 0
  .amdhsa_kernarg_size 112
  .amdhsa_user_sgpr_count 2
  .amdhsa_user_sgpr_kernarg_segment_ptr 1
  .amdhsa_system_sgpr_workgroup_id_x 1
.end_amdhsa_kernel
"""

S_IDX, S_RANK = 90, 91

def gen(name=NAME, rmask=0xaa, rcfg=None, gcfg=None, noR=False):
    rk.CFG.clear(); rk.CFG.update(dict(local_sc1=False, prof=False, dbg_mem=False, nsteps=64, bar_count=128, kv_flags=True, progress=True,
                                       delayA=4, delayB=6, delayO=4, delayC=8))
    if rcfg: rk.CFG.update(rcfg)
    if gcfg and gcfg.get('tl'): rk.CFG['tl'] = True
    gk.CFG.clear()
    if gcfg: gk.CFG.update(gcfg)
    a = Asm()
    S_WS, S_DBG, S_W = gk.S_WS, gk.S_DBG, gk.S_W
    a.lines.append(header(name))
    a(f"""
    s_cmp_ge_u32 s2, 256
    s_cbranch_scc1 L_exit
    s_load_dwordx2 {sr(S_WS,2)}, s[0:1], {KA_WS}
    s_load_dwordx2 {sr(S_DBG,2)}, s[0:1], {KA_DBG}
    s_mov_b32 {sr(S_WS+2)}, {WS_BYTES}
    s_mov_b32 {sr(S_WS+3)}, 0x20000
    s_mov_b32 {sr(S_DBG+2)}, 256
    s_mov_b32 {sr(S_DBG+3)}, 0x20000
    v_lshrrev_b32 v1, 6, v0
    v_and_b32 v0, 63, v0
    s_getreg_b32 s4, hwreg(HW_REG_XCC_ID, 0, 4)
    v_readfirstlane_b32 {sr(S_W)}, v1
    s_and_b32 s4, s4, 7
    s_and_b32 s5, s4, 3
    s_lshr_b32 s6, s4, 2
    s_lshl_b32 s6, s6, 5
    s_add_u32 s5, s5, s6
    s_lshl_b32 s5, s5, 2
    v_mov_b32 v1, s5
    v_mov_b32 v2, 1
    v_mov_b32 v3, {gk.LMB + 8}
    s_cmp_lg_u32 {sr(S_W)}, 0
    s_waitcnt lgkmcnt(0)
    s_cbranch_scc1 L_notk
    v_cmp_eq_u32 vcc, 0, v0
    s_and_saveexec_b64 s[6:7], vcc
    buffer_atomic_add v2, v1, {sr(S_DBG,4)}, 0 offen sc0 sc1
    s_waitcnt vmcnt(0)
    ds_write_b32 v3, v2
    s_mov_b64 exec, s[6:7]
    L_notk:
    s_waitcnt lgkmcnt(0)
    s_barrier
    ds_read_b32 v2, v3
    s_lshl_b32 s6, 1, s4
    s_sub_u32 s6, s6, 1
    s_lshr_b32 s7, {rmask}, s4
    s_and_b32 s7, s7, 1
    s_mov_b32 s5, {rmask}
    s_cmp_eq_u32 s7, 1
    s_cselect_b32 s5, s5, {(~rmask) & 0xff}
    s_and_b32 s6, s6, s5
    s_bcnt1_i32_b32 {sr(S_IDX)}, s6
    s_and_b32 {sr(S_IDX)}, {sr(S_IDX)}, 3
    s_waitcnt lgkmcnt(0)
    v_readfirstlane_b32 s5, v2
    s_cmp_ge_u32 s5, 32
    s_cbranch_scc1 L_exit
    s_lshl_b32 {sr(S_RANK)}, {sr(S_IDX)}, 5
    s_add_u32 {sr(S_RANK)}, {sr(S_RANK)}, s5
    s_lshl_b32 s6, s7, 7
    s_add_u32 {sr(gk.S_PID)}, {sr(S_RANK)}, s6
    s_mov_b32 {sr(gk.S_PCNT)}, 0
    """)
    gk.tl_stamp(a, 0)
    a(f"""
    s_cmp_eq_u32 s7, 0
    s_cbranch_scc1 L_G
    """)
    if noR:
        a("s_branch L_exit")
    else:
        a(f"""
        s_mov_b32 {sr(rk.S_BUD)}, 400000
        s_lshr_b32 {sr(rk.S_G)}, {sr(S_RANK)}, 4
        s_and_b32 {sr(rk.S_M)}, {sr(S_RANK)}, 15
        """)
        rk.emit_R(a, S_DBG, C_RBAR*4)
        a("L_R_abort:")
        a("s_endpgm")
        a("L_R_done:")
        if gk.CFG.get('tl'):
            a(f"""
            v_lshlrev_b32 v4, 2, v0
            s_lshl_b32 s4, {sr(S_RANK)}, 8
            s_add_u32 s4, s4, {OFF_DBG + 512*1024}
            buffer_store_dword v250, v4, {sr(S_WS,4)}, s4 offen
            s_add_u32 s4, s4, 32768
            buffer_store_dword v251, v4, {sr(S_WS,4)}, s4 offen
            v_lshlrev_b32 {vr(gk.V_L4)}, 2, v0
            s_mov_b32 s72, s70
            """)
            gk.tl_store(a, 0xfffe)
        a("s_branch L_exit")
    a("L_G:")
    a(f"s_mov_b32 {sr(gk.S_J)}, {sr(S_IDX)}")
    a(f"s_and_b32 {sr(gk.S_T)}, {sr(S_RANK)}, 31")
    gk.g_setup(a)
    gk.g_start(a, S_RANK)
    gk.g_main(a)
    gk.phase2(a)
    a("""
    L_abort:
    L_exit:
    s_endpgm
    """)
    a.lines.append(footer(name))
    return a.text()

if __name__ == "__main__":
    s = gen()
    open("recurrent_scan__memory_aug_recurrent_mem_tr__glu_gated_reglu__prompt.s", "w").write(s)
    print(len(s), s.count("\n"))
```

```python
from asmlib import *
from layout import *
import struct

def fbits(x):
    return struct.unpack("<I", struct.pack("<f", x))[0]

CFG = dict()
def LSC1(): return "" if CFG.get('nolsc1') else " sc1"
def SSC1(): return CFG.get('sflag', "" if CFG.get('nossc1') else " sc1")
def EPST(x): return "s_nop 0" if CFG.get('noepst') else x

S_W = 3
S_WS = 8
S_B = 12
S_AOFF, S_BOFF, S_BSTEP, S_M0A, S_M0B, S_CNT = 16, 17, 18, 19, 20, 21
S_GBUD, S_J, S_TK, S_T, S_MT, S_NT = 22, 23, 24, 25, 26, 27
S_COFF, S_DONE, S_M2 = 29, 40, 41
S_NCOFF, S_NDONE = 42, 43
S_A = 48
S_KIND, S_NKIND, S_PDONE, S_NCNT = 60, 61, 62, 63
S_SCH = 80
S_T0 = 30
S_OUT = 44
S_MASK = 52
S_DBG = 64
V_XA, V_WA, V_AOFF = 8, 10, 18
V_ROW0, V_SWZ = 19, 20
V_SIG, V_ONE, V_L4, V_OOB = 23, 24, 25, 26
V_EP = 30
V_FRAG = 32
V2_XD, V2_BD, V2_WA, V2_RW, V2_RR = 208, 212, 216, 220, 223
V2_XO, V2_L16 = 226, 227
V_AD, V_KMD, V_VD, V_NB = 228, 229, 230, 231
STAGE = 32768
LMB = 131072
LSC = LMB + 64

def XF16(p, i): return V_FRAG + 64*p + 4*i
def WF16(p, t): return V_FRAG + 64*p + 32 + 4*t
def ACC16(t, i): return (t*8 + i)*4
def frag_reads16(p, ring):
    hi = ring >> 1; base = (ring & 1)*STAGE
    xs = [f"ds_read_b128 {vr(XF16(p,i),4)}, {vr(V_XA + hi)} offset:{base + i*256}" for i in range(8)]
    ws = []
    for t in range(8):
        for sec in range(2):
            off = base + 16384 + (t >> 2)*8192 + (16*sec)*256
            ws.append(f"ds_read_b64_tr_b16 {vr(WF16(p,t) + 2*sec, 2)}, {vr(V_WA + 4*hi + (t & 3))} offset:{off}")
    return [ws[0], ws[1]] + xs + ws[2:]
def mfmas16(p, first, swap):
    out = []
    for t in range(8):
        for i in range(8):
            x, y = (XF16(p,i), WF16(p,t)) if swap else (WF16(p,t), XF16(p,i))
            out.append(f"v_mfma_f32_16x16x32_bf16 {ar(ACC16(t,i),4)}, {vr(x,4)}, {vr(y,4)}, {'0' if first else ar(ACC16(t,i),4)}")
    return out

def dma_ops(ring, vb):
    g = []
    base = ring*STAGE
    g.append([f"s_add_u32 m0, {sr(S_M0A)}, {base}", "s_nop 0",
              f"buffer_load_dwordx4 {vr(V_AOFF)}, {sr(S_A,4)}, {sr(S_AOFF)} offen{LSC1()} lds"])
    for j in range(1, 4):
        g.append([f"buffer_load_dwordx4 {vr(V_AOFF)}, {sr(S_A,4)}, {sr(S_AOFF)} offen offset:{j*1024}{LSC1()} lds"])
    g[-1].append(f"s_add_u32 {sr(S_AOFF)}, {sr(S_AOFF)}, 16384")
    g.append([f"s_add_u32 m0, {sr(S_M0B)}, {base}", "s_nop 0",
              f"buffer_load_dwordx4 {vr(vb)}, {sr(S_B,4)}, {sr(S_BOFF)} offen lds"])
    for j in range(1, 4):
        g.append([f"buffer_load_dwordx4 {vr(vb+j)}, {sr(S_B,4)}, {sr(S_BOFF)} offen offset:{j*1024} lds"])
    g[-1].append(f"s_add_u32 {sr(S_BOFF)}, {sr(S_BOFF)}, {sr(S_BSTEP)}")
    return g

def weave(main, slots):
    out = []
    for i, m in enumerate(main):
        out.append(m)
        if i in slots: out.extend(slots[i])
    return out

def place(slots, items, positions):
    for it, p in zip(items, positions):
        slots.setdefault(p, [])
        if isinstance(it, str): slots[p].append(it)
        else: slots[p].extend(it)

VB = 32 + 128 + 48
V_BW = 204

def stage16(a, ring, p, swap, first=False, dma=True, vm=16, next_reads=True):
    a("s_waitcnt lgkmcnt(0)" if vm is None else f"s_waitcnt vmcnt({vm}) lgkmcnt(0)")
    a("s_barrier")
    sl = {}
    if next_reads: place(sl, frag_reads16(p ^ 1, (ring+1) & 3), range(0, 48, 2))
    if dma: place(sl, dma_ops(ring, V_BW), range(3, 64, 8))
    for ln in weave(mfmas16(p, first, swap), sl): a(ln)

def signal_op(soff):
    return f"buffer_atomic_add {vr(V_ONE)}, {vr(V_SIG)}, {sr(S_WS,4)}, {soff} offen sc1"

NEP = 32
def e1_prologue(a):
    for ring in range(4):
        for g in dma_ops(ring, V_BW):
            for ln in g: a(ln)
    a("s_waitcnt vmcnt(24)")
    a("s_barrier")
    for ln in frag_reads16(0, 0): a(ln)
    pad_ops(a, NEP)

def pad_ops(a, n):
    for _ in range(n): a(f"buffer_store_dword {vr(V_ONE)}, {vr(V_OOB)}, {sr(S_WS,4)}, 0 offen")

def e1_body(a, swap, tag):
    a(f"L_f4{tag}:")
    tl_task_start(a)
    for r in range(4):
        a(f"s_waitcnt vmcnt({16 + NEP if r < 3 else 16}) lgkmcnt(0)")
        a("s_barrier")
        sl = {}
        place(sl, frag_reads16((r & 1) ^ 1, (r+1) & 3), range(0, 48, 2))
        place(sl, dma_ops(r, V_BW), range(3, 64, 8))
        if r == 3: place(sl, [signal_op(sr(S_PDONE))], [1])
        for ln in weave(mfmas16(r & 1, r == 0, swap), sl): a(ln)
    top = a.label("Lmid"); sw = a.label("Lsw"); back = a.label("Lswb")
    a(f"{top}:")
    a(f"s_cmp_eq_u32 {sr(S_CNT)}, 1")
    a(f"s_cbranch_scc1 {sw}")
    a(f"{back}:")
    for r in range(4): stage16(a, r, r & 1, swap)
    a(f"s_sub_u32 {sr(S_CNT)}, {sr(S_CNT)}, 1")
    a(f"s_cmp_lg_u32 {sr(S_CNT)}, 0")
    a(f"s_cbranch_scc1 {top}")
    a("s_branch L_e1ep")
    a(f"{sw}:")
    e1_next(a, back)

def e1_setup_regs(a):
    a(f"""
    v_and_b32 v1, 15, v0
    v_lshrrev_b32 v2, 4, v0         ; g
    v_lshlrev_b32 v4, 4, v1
    v_lshlrev_b32 v5, 12, v2
    v_add_u32 {vr(V_AD)}, v4, v5    ; g*4096 + i*16
    s_lshr_b32 s4, {sr(S_W)}, 1
    s_lshl_b32 s5, s4, 11
    v_add_u32 {vr(V_XA)}, s5, {vr(V_AD)}
    v_add_u32 {vr(V_XA+1)}, 0x10000, {vr(V_XA)}
    v_mov_b32 {vr(V_EP)}, {vr(V_XA)}
    v_bfe_u32 v3, v0, 2, 2          ; r
    v_lshlrev_b32 v4, 2, v2         ; 4g
    v_add_u32 v4, v4, v3            ; k
    v_and_b32 v6, 7, v4             ; k&7
    v_lshlrev_b32 v4, 8, v4         ; k*256
    v_and_b32 v5, 3, v0
    v_lshlrev_b32 v5, 3, v5         ; c*8
    v_add_u32 v4, v4, v5
    s_and_b32 s5, {sr(S_W)}, 1
    s_lshl_b32 s5, s5, 2            ; 4wn
    """)
    for tl in range(4):
        a(f"""
        s_add_u32 s6, s5, {tl}
        v_xor_b32 v5, s6, v6
        v_lshlrev_b32 v5, 5, v5
        v_add_u32 {vr(V_WA+tl)}, v4, v5
        v_add_u32 {vr(V_WA+4+tl)}, 0x10000, {vr(V_WA+tl)}
        """)
    a(f"""
    v_lshlrev_b32 v4, 4, v0
    s_lshl_b32 s5, {sr(S_W)}, 12
    v_add_u32 {vr(V_AOFF)}, s5, v4
    v_lshrrev_b32 v1, 4, v0
    v_and_b32 v2, 15, v0
    """)
    for j in range(2):
        a(f"""
        v_add_u32 v3, {4*j}, v1
        v_lshlrev_b32 v3, 1, v3
        v_xor_b32 v3, v2, v3
        v_lshlrev_b32 {vr(V_SWZ+j)}, 4, v3
        """)
    a(f"""
    s_lshr_b32 s5, {sr(S_W)}, 1
    s_lshl_b32 s5, s5, 4
    v_add_u32 {vr(V_ROW0)}, s5, v1
    s_lshl_b32 {sr(S_M0A)}, {sr(S_W)}, 12
    s_and_b32 s6, {sr(S_W)}, 1
    s_lshl_b32 s6, s6, 13
    s_lshr_b32 s7, {sr(S_W)}, 1
    s_lshl_b32 s7, s7, 12
    s_add_u32 s6, s6, s7
    s_add_u32 {sr(S_M0B)}, s6, 16384
    s_mov_b32 {sr(S_A)}, {sr(S_WS)}
    s_mov_b32 {sr(S_A+1)}, {sr(S_WS+1)}
    s_mov_b32 {sr(S_A+2)}, 0
    s_mov_b32 {sr(S_A+3)}, 0x20000
    """)

def e1_bvoff(a, s_ldb):
    a(f"""
    v_mul_u32_u24 v1, {sr(s_ldb)}, {vr(V_ROW0)}
    s_lshl_b32 s4, {sr(s_ldb)}, 2
    s_sub_u32 s4, s4, 1024
    v_add_u32 {vr(V_BW)}, v1, {vr(V_SWZ)}
    v_add3_u32 {vr(V_BW+1)}, v1, {vr(V_SWZ+1)}, s4
    s_lshl_b32 s5, s4, 1
    v_add3_u32 {vr(V_BW+2)}, v1, {vr(V_SWZ)}, s5
    s_add_u32 s5, s5, s4
    v_add3_u32 {vr(V_BW+3)}, v1, {vr(V_SWZ+1)}, s5
    s_lshl_b32 {sr(S_BSTEP)}, {sr(s_ldb)}, 5
    """)

def ep_chunks(a):
    a(f"""
    s_and_b32 s5, {sr(S_W)}, 1
    s_lshl_b32 s5, s5, 15
    s_add_u32 s7, {sr(S_COFF)}, s5
    s_nop 4
    """)
    tmp = 160; n = 0
    for p in range(4):
        a(f"s_add_u32 s6, s7, {(16*(p>>1) + 4*(p&1))*4096}")
        for i in range(8):
            b = tmp + (n % 3)*12; n += 1
            for tt in range(2):
                for r in range(4):
                    a(f"v_accvgpr_read_b32 {vr(b+4*tt+r)}, {ar(ACC16(2*p+tt,i)+r)}")
            for r in range(4):
                a(f"v_cvt_pk_bf16_f32 {vr(b+8+r)}, {vr(b+2*r)}, {vr(b+2*r+1)}")
            a(EPST(f"buffer_store_dwordx4 {vr(b+8,4)}, {vr(V_EP)}, {sr(S_WS,4)}, s6 offen offset:{i*256}{SSC1()}"))

def ep_vt(a):
    a(f"""
    s_lshr_b32 s5, {sr(S_W)}, 1
    s_lshl_b32 s5, s5, 20             ; wm*16*65536
    s_add_u32 s7, {sr(S_COFF)}, s5
    s_and_b32 s5, {sr(S_W)}, 1
    s_lshl_b32 s5, s5, 10             ; 64 wn * 16
    s_add_u32 s7, s7, s5
    s_nop 4
    """)
    tmp = 160; n = 0
    for P in range(4):
        a(f"s_add_u32 s6, s7, {4*P*65536}")
        for t in range(8):
            b = tmp + (n % 3)*12; n += 1
            for ii in range(2):
                for r in range(4):
                    a(f"v_accvgpr_read_b32 {vr(b+4*ii+r)}, {ar(ACC16(t,2*P+ii)+r)}")
            for r in range(4):
                a(f"v_cvt_pk_bf16_f32 {vr(b+8+r)}, {vr(b+2*r)}, {vr(b+2*r+1)}")
            a(EPST(f"buffer_store_dwordx4 {vr(b+8,4)}, {vr(V_VD)}, {sr(S_WS,4)}, s6 offen offset:{(t>>2)*2048 + (t&3)*256}{SSC1()}"))

def ep_gu(a):
    a(f"""
    s_and_b32 s5, {sr(S_W)}, 1
    s_lshl_b32 s5, s5, 15
    s_add_u32 s7, {sr(S_COFF)}, s5
    s_nop 4
    """)
    tmp = 160; n = 0
    for p in range(2):
        a(f"s_add_u32 s6, s7, {4*p*4096}")
        for i in range(8):
            b = tmp + (n % 2)*20; n += 1
            for tt in range(2):
                for r in range(4):
                    a(f"v_accvgpr_read_b32 {vr(b+4*tt+r)}, {ar(ACC16(2*p+tt,i)+r)}")
                    a(f"v_accvgpr_read_b32 {vr(b+8+4*tt+r)}, {ar(ACC16(4+2*p+tt,i)+r)}")
            for r in range(8):
                a(f"v_max_f32 {vr(b+r)}, 0, {vr(b+r)}")
            for r in range(0, 8, 2):
                a(f"v_pk_mul_f32 {vr(b+r,2)}, {vr(b+r,2)}, {vr(b+8+r,2)}")
            for r in range(4):
                a(f"v_cvt_pk_bf16_f32 {vr(b+16+r)}, {vr(b+2*r)}, {vr(b+2*r+1)}")
            a(f"buffer_store_dwordx4 {vr(b+16,4)}, {vr(V_EP)}, {sr(S_WS,4)}, s6 offen offset:{i*256}{SSC1()}")

    pad_ops(a, NEP - 16)

def ep_down1(a):
    c = fbits(-1.4426950408889634)
    a(f"""
    s_and_b32 s5, {sr(S_W)}, 1
    s_lshl_b32 s5, s5, 15
    s_add_u32 s7, {sr(S_COFF)}, s5
    s_mov_b32 s4, {c:#x}
    s_nop 4
    """)
    tmp = 160; n = 0
    for p in range(4):
        a(f"s_add_u32 s6, s7, {(16*(p>>1) + 4*(p&1))*4096}")
        for i in range(8):
            b = tmp + (n % 2)*20; n += 1
            for tt in range(2):
                for r in range(4):
                    a(f"v_accvgpr_read_b32 {vr(b+4*tt+r)}, {ar(ACC16(2*p+tt,i)+r)}")
            for r in range(8): a(f"v_mul_f32 {vr(b+8+r)}, s4, {vr(b+r)}")
            for r in range(8): a(f"v_exp_f32 {vr(b+8+r)}, {vr(b+8+r)}")
            for r in range(8): a(f"v_add_f32 {vr(b+8+r)}, 1.0, {vr(b+8+r)}")
            for r in range(8): a(f"v_rcp_f32 {vr(b+8+r)}, {vr(b+8+r)}")
            for r in range(8): a(f"v_mul_f32 {vr(b+r)}, {vr(b+r)}, {vr(b+8+r)}")
            for r in range(4): a(f"v_cvt_pk_bf16_f32 {vr(b+16+r)}, {vr(b+2*r)}, {vr(b+2*r+1)}")
            a(f"buffer_store_dwordx4 {vr(b+16,4)}, {vr(V_EP)}, {sr(S_WS,4)}, s6 offen offset:{i*256} sc1")

def load_srd(a, srd, ka, nbytes):
    a(f"""
    s_load_dwordx2 {sr(srd,2)}, s[0:1], {ka}
    s_mov_b32 {sr(srd+2)}, {nbytes}
    s_mov_b32 {sr(srd+3)}, 0x20000
    """)

def X2(r, i): return 32 + 32*r + 4*i
def W2(p, t): return 160 + 16*p + 4*t
def ACC2(t, i): return (i*4 + t)*4
def e2_tr(p, slot):
    return [f"ds_read_b64_tr_b16 {vr(W2(p,t) + 2*sec, 2)}, {vr(V2_WA + t)} offset:{slot*4096 + sec*2048}" for t in range(4) for sec in range(2)]
PITCH2 = 8192
def e2_wdma(slot, bd=V2_BD):
    g = [[f"s_add_u32 m0, {sr(S_M2)}, {slot*4096}", "s_nop 0",
          f"buffer_load_dwordx4 {vr(bd)}, {sr(S_B,4)}, {sr(S_BOFF)} offen lds"]]
    for j in range(1, 4):
        g.append([f"buffer_load_dwordx4 {vr(bd+j)}, {sr(S_B,4)}, {sr(S_BOFF)} offen offset:{j*1024} lds"])
    g[-1].append(f"s_add_u32 {sr(S_BOFF)}, {sr(S_BOFF)}, {32*PITCH2}")
    return g
def e2_xload(r, i):
    return f"buffer_load_dwordx4 {vr(X2(r,i),4)}, {vr(V2_XD + (i >> 1))}, {sr(S_WS,4)}, {sr(S_AOFF)} offen offset:{(i & 1)*256}{LSC1()}"
def e2_stage(a, r, swap, first=False, issue=True, vm=32, nxt=True):
    p = r & 1
    a(f"s_waitcnt vmcnt({vm}) lgkmcnt(0)")
    main = []
    for i in range(8):
        for t in range(4):
            x, y = (X2(r,i), W2(p,t)) if swap else (W2(p,t), X2(r,i))
            main.append(f"v_mfma_f32_16x16x32_bf16 {ar(ACC2(t,i),4)}, {vr(x,4)}, {vr(y,4)}, {'0' if first else ar(ACC2(t,i),4)}")
    sl = {}
    if issue: place(sl, e2_wdma(r), [0, 1, 2, 3])
    if nxt: place(sl, e2_tr(p ^ 1, (r+1) & 3), [4, 5, 6, 8, 9, 10, 12, 13])
    if issue:
        for i in range(8): place(sl, [e2_xload(r, i)], [4*i + 3])
        place(sl, [f"s_add_u32 {sr(S_AOFF)}, {sr(S_AOFF)}, 16384"], [31])
    for ln in weave(main, sl): a(ln)

def E2N(): return 8 if CFG.get('e2v', 2) == 2 else 4
def X2R(s, i, n=4):
    return vr(X2(s, i), n) if s < 4 else ar(128 + 32*(s-4) + 4*i, n)
def e2_main8b(a, swap):
    def xl(s, i):
        return f"buffer_load_dwordx4 {X2R(s,i)}, {vr(V2_XD + (i >> 1))}, {sr(S_WS,4)}, {sr(S_AOFF)} offen offset:{(i & 1)*256}{LSC1()}"
    for s in range(3):
        for i in range(8): a(xl(s, i))
        a(f"s_add_u32 {sr(S_AOFF)}, {sr(S_AOFF)}, 16384")
    a("s_waitcnt vmcnt(56)")
    a("s_barrier")
    a(signal_op(sr(S_PDONE)))
    tl_fine2(a, 1)
    a("s_waitcnt vmcnt(17)")
    tl_fine2(a, 2)
    for ln in e2_tr(0, 0): a(ln)
    for s in range(8):
        p = s & 1
        vm = 17 if s < 3 else 16 if s < 6 else 8 if s == 6 else 0
        a(f"s_waitcnt vmcnt({vm}) lgkmcnt(0)")
        main = []
        for i in range(8):
            for t in range(4):
                x, y = (X2R(s,i), vr(W2(p,t),4)) if swap else (vr(W2(p,t),4), X2R(s,i))
                main.append(f"v_mfma_f32_16x16x32_bf16 {ar(ACC2(t,i),4)}, {x}, {y}, {'0' if s == 0 else ar(ACC2(t,i),4)}")
        sl = {}
        if s < 7: place(sl, e2_tr(p ^ 1, s + 1), [4, 5, 6, 8, 9, 10, 12, 13])
        if s < 5:
            for i in range(8): place(sl, [xl(s + 3, i)], [4*i + 3])
            place(sl, [f"s_add_u32 {sr(S_AOFF)}, {sr(S_AOFF)}, 16384"], [31])
        for ln in weave(main, sl): a(ln)
        tl_fine2(a, 3 + s)

def e2_wpro(a, s0=0, s1=None):
    for s in range(s0, E2N() if s1 is None else s1):
        for g in e2_wdma(s):
            for ln in g: a(ln)

def e2_main8(a, swap):
    if E2N() == 8: return e2_main8b(a, swap)
    for s in range(4):
        for i in range(8): a(e2_xload(s, i))
        a(f"s_add_u32 {sr(S_AOFF)}, {sr(S_AOFF)}, 16384")
    if CFG.get('kvchain', 1):
        a("s_waitcnt vmcnt(48)")
        a("s_barrier")
        a(signal_op(sr(S_PDONE)))
    tl_fine2(a, 1)
    a("s_waitcnt vmcnt(44)")
    tl_fine2(a, 2)
    for ln in e2_tr(0, 0): a(ln)
    for r, vm in enumerate((24, 28, 32, 32)):
        e2_stage(a, r, swap, first=(r == 0), vm=vm)
        tl_fine2(a, 3 + r)
    e2_stage(a, 0, swap, issue=False, vm=32)
    tl_fine2(a, 7)
    e2_stage(a, 1, swap, issue=False, vm=20)
    tl_fine2(a, 8)
    e2_stage(a, 2, swap, issue=False, vm=8)
    tl_fine2(a, 9)
    e2_stage(a, 3, swap, issue=False, vm=0, nxt=False)
    tl_fine2(a, 10)

R2 = 32
def e2_reduce(a):
    a("s_nop 7")
    for dd in range(1, 4):
        for ii in range(2):
            for t in range(4):
                a(f"ds_write_b128 {vr(V2_RW + dd-1)}, {ar(ACC2(t, 2*dd+ii), 4)} offset:{(ii*4+t)*1024}")
    for k in range(8):
        for r in range(4): a(f"v_accvgpr_read_b32 {vr(R2 + 4*k + r)}, {ar(ACC2(k & 3, k >> 2) + r)}")
    a("s_waitcnt lgkmcnt(0)")
    a("s_barrier")
    P = 64
    for dd in range(3):
        for k in range(8):
            a(f"ds_read_b128 {vr(P + 32*dd + 4*k, 4)}, {vr(V2_RR + dd)} offset:{k*1024}")
        a(f"s_waitcnt lgkmcnt({8 if dd > 0 else 15})") if dd > 0 else None
        if dd > 0:
            for k in range(16):
                a(f"v_pk_add_f32 {vr(R2 + 2*k, 2)}, {vr(R2 + 2*k, 2)}, {vr(P + 32*(dd-1) + 2*k, 2)}")
    a("s_waitcnt lgkmcnt(0)")
    for k in range(16):
        a(f"v_pk_add_f32 {vr(R2 + 2*k, 2)}, {vr(R2 + 2*k, 2)}, {vr(P + 64 + 2*k, 2)}")

def e2_setup_regs(a):
    a(f"""
    v_lshlrev_b32 {vr(V2_L16)}, 4, v0
    """)
    for dd in range(4):
        a(f"""
        s_add_u32 s4, {sr(S_W)}, {dd}
        s_and_b32 s4, s4, 3
        s_lshl_b32 s4, s4, 9
        v_add_u32 {vr(V2_XD+dd)}, s4, {vr(V_AD)}
        """)
    a(f"""
    v_lshrrev_b32 v1, 3, v0
    v_lshlrev_b32 v1, 13, v1
    v_bfe_u32 v2, v0, 1, 2
    v_lshrrev_b32 v3, 4, v0
    v_xor_b32 v2, v2, v3
    v_lshlrev_b32 v2, 5, v2
    v_add_u32 v1, v1, v2
    v_and_b32 v2, 1, v0
    v_lshlrev_b32 v2, 4, v2
    v_add_u32 {vr(V2_BD)}, v1, v2
    """)
    for j in range(1, 4): a(f"v_add_u32 {vr(V2_BD+j)}, {j*(8*PITCH2-1024)}, {vr(V2_BD)}")
    a(f"""
    v_lshrrev_b32 v1, 4, v0
    v_lshlrev_b32 v1, 2, v1
    v_bfe_u32 v2, v0, 2, 2
    v_add_u32 v1, v1, v2              ; k
    v_bfe_u32 v2, v1, 1, 2            ; (k>>1)&3
    v_lshlrev_b32 v1, 7, v1
    v_and_b32 v3, 3, v0
    v_lshlrev_b32 v3, 3, v3
    v_add_u32 v1, v1, v3
    s_lshl_b32 s4, {sr(S_W)}, {15 if E2N() == 8 else 14}
    v_add_u32 v1, s4, v1
    """)
    for tl in range(4):
        a(f"""
        v_xor_b32 v3, {tl}, v2
        v_lshlrev_b32 v3, 5, v3
        v_add_u32 {vr(V2_WA+tl)}, v1, v3
        """)
    if E2N() == 8:
        a(f"""
        s_lshl_b32 s4, {sr(S_W)}, 15
        v_add_u32 {vr(V2_RW)}, s4, {vr(V2_L16)}
        v_add_u32 {vr(V2_RW+1)}, 8192, {vr(V2_RW)}
        v_add_u32 {vr(V2_RW+2)}, 16384, {vr(V2_RW)}
        """)
        for dd in range(1, 4):
            a(f"""
            s_sub_u32 s4, {sr(S_W)}, {dd}
            s_and_b32 s4, s4, 3
            s_lshl_b32 s4, s4, 15
            s_add_u32 s4, s4, {(dd-1)*8192}
            v_add_u32 {vr(V2_RR+dd-1)}, s4, {vr(V2_L16)}
            """)
        return
    a(f"""
    s_lshl_b32 s4, {sr(S_W)}, 14
    v_add_u32 {vr(V2_RW)}, s4, {vr(V2_L16)}
    v_add_u32 {vr(V2_RW+1)}, 8192, {vr(V2_RW)}
    s_lshl_b32 s4, {sr(S_W)}, 13
    s_add_u32 s4, s4, 65536
    v_add_u32 {vr(V2_RW+2)}, s4, {vr(V2_L16)}
    """)
    for dd in range(1, 4):
        a(f"""
        s_sub_u32 s4, {sr(S_W)}, {dd}
        s_and_b32 s4, s4, 3
        """)
        if dd < 3:
            a(f"""
            s_lshl_b32 s4, s4, 14
            s_add_u32 s4, s4, {(dd-1)*8192}
            """)
        else:
            a(f"""
            s_lshl_b32 s4, s4, 13
            s_add_u32 s4, s4, 65536
            """)
        a(f"v_add_u32 {vr(V2_RR+dd-1)}, s4, {vr(V2_L16)}")

def ep_kv0(a, swap):
    Q = 96
    if not swap:
        for ii in range(2):
            for pr in range(2):
                q = Q + 4*(ii*2+pr); b = R2 + (ii*4 + 2*pr)*4
                for d in range(4): a(f"v_cvt_pk_bf16_f32 {vr(q+d)}, {vr(b+2*d)}, {vr(b+2*d+1)}")
        a(f"s_add_u32 s5, {sr(S_COFF)}, 16384")
        for ii in range(2):
            for pr in range(2):
                so = sr(S_COFF) if pr == 0 else "s5"
                a(f"buffer_store_dwordx4 {vr(Q+4*(ii*2+pr),4)}, {vr(V_AD)}, {sr(S_WS,4)}, {so} offen offset:{ii*256} sc1")
    else:
        for t in range(4):
            q = Q + 4*t
            for ii in range(2):
                b = R2 + (ii*4 + t)*4
                a(f"v_cvt_pk_bf16_f32 {vr(q+2*ii)}, {vr(b)}, {vr(b+1)}")
                a(f"v_cvt_pk_bf16_f32 {vr(q+2*ii+1)}, {vr(b+2)}, {vr(b+3)}")
        for t in range(4):
            a(f"buffer_store_dwordx4 {vr(Q+4*t,4)}, {vr(V_VD)}, {sr(S_WS,4)}, {sr(S_COFF)} offen offset:{t*256} sc1")

def kv0_setup(a):
    l1 = a.label("Lk0"); l2 = a.label("Lk0"); l3 = a.label("Lk0")
    a(f"""
    s_lshl_b32 s4, {sr(S_J)}, 5
    s_add_u32 s5, s4, {sr(S_T)}
    s_mov_b32 {sr(S_MT)}, 0                       ; half
    s_mov_b32 {sr(S_DONE)}, {OFF_CNT + CN_KV0A*256}
    s_cmp_eq_u32 {sr(S_KIND)}, 0
    s_cbranch_scc1 {l1}
    s_add_u32 s5, s5, {sr(S_T)}
    s_add_u32 s5, s5, {sr(S_KIND)}
    s_sub_u32 s5, s5, 1
    s_mov_b32 {sr(S_MT)}, 1
    s_mov_b32 {sr(S_DONE)}, {OFF_CNT + CN_KV*256}
    {l1}:
    s_and_b32 {sr(S_NT)}, s5, 63
    s_lshr_b32 s4, {sr(S_J)}, 1
    s_lshl_b32 s4, s4, 3
    s_add_u32 s4, s4, {KA_WK}
    s_load_dwordx2 {sr(S_B,2)}, s[0:1], s4
    s_mov_b32 {sr(S_B+2)}, {8*MB}
    s_mov_b32 {sr(S_B+3)}, 0x20000
    s_lshl_b32 {sr(S_AOFF)}, {sr(S_W)}, 17
    s_lshl_b32 s4, {sr(S_MT)}, 11
    s_add_u32 {sr(S_AOFF)}, {sr(S_AOFF)}, s4
    s_add_u32 {sr(S_AOFF)}, {sr(S_AOFF)}, {OFF_XN}
    s_lshl_b32 {sr(S_BOFF)}, {sr(S_W)}, 21
    s_lshl_b32 s4, {sr(S_NT)}, 7
    s_add_u32 {sr(S_BOFF)}, {sr(S_BOFF)}, s4
    s_lshl_b32 {sr(S_M2)}, {sr(S_W)}, {15 if E2N() == 8 else 14}
    s_cmp_ge_u32 {sr(S_J)}, 2
    s_cbranch_scc1 {l2}
    s_lshl_b32 s4, {sr(S_NT)}, 15
    s_lshl_b32 s5, {sr(S_MT)}, 11
    s_add_u32 s4, s4, s5
    s_lshl_b32 s5, {sr(S_W)}, 9
    s_add_u32 s4, s4, s5
    s_add_u32 {sr(S_COFF)}, s4, {OFF_KX}
    s_branch {l3}
    {l2}:
    s_lshl_b32 s4, {sr(S_MT)}, 2
    s_add_u32 s4, s4, {sr(S_W)}
    s_lshl_b32 s4, s4, 18
    s_lshl_b32 s5, {sr(S_NT)}, 10
    s_add_u32 s4, s4, s5
    s_add_u32 {sr(S_COFF)}, s4, {OFF_VT}
    {l3}:
    s_waitcnt lgkmcnt(0)
    """)

def ln0_probe(a):
    if CFG.get('ln0a', 1):
        a(f"v_mov_b32 v6, {C_LN0*4}")
        a(f"buffer_load_dword v7, v6, {sr(S_DBG,4)}, 0 offen sc1")

def ln0_check(a):
    if CFG.get('ln0a', 1):
        top = a.label("Ll0"); ok = a.label("Ll0o")
        a(f"""
        {top}:
        s_waitcnt vmcnt(0)
        v_cmp_le_u32 vcc, 16, v7
        s_cbranch_vccnz {ok}
        s_sub_u32 {sr(S_GBUD)}, {sr(S_GBUD)}, 1
        s_cbranch_scc1 L_abort
        s_sleep 2
        buffer_load_dword v7, v6, {sr(S_DBG,4)}, 0 offen sc1
        s_branch {top}
        {ok}:
        """)

def kv0_loop(a):
    a("L_kv0:")
    tl_stamp(a, 1)
    tl_fine2(a, 0)
    a(f"s_cmp_ge_u32 {sr(S_J)}, 2")
    a("s_cbranch_scc1 L_kv0V")
    e2_main8(a, False)
    ln0_probe(a)
    e2_reduce(a)
    tl_fine2(a, 11)
    ln0_check(a)
    ep_kv0(a, False)
    a("s_branch L_kv0done")
    a("L_kv0V:")
    e2_main8(a, True)
    ln0_probe(a)
    e2_reduce(a)
    tl_fine2(a, 11)
    ln0_check(a)
    ep_kv0(a, True)
    a("L_kv0done:")
    tl_fine2(a, 12)
    if CFG.get('kvchain', 1):
        if CFG.get('tl'):
            a(f"s_lshl_b32 s68, {sr(S_KIND)}, 4")
            a("s_or_b32 s68, s68, 8")
            tl_store_nowait(a, "s68")
        a(f"""
        s_add_u32 {sr(S_KIND)}, {sr(S_KIND)}, 1
        s_cmp_ge_u32 {sr(S_T)}, 16
        s_cbranch_scc1 L_kv0last
        s_cmp_ge_u32 {sr(S_KIND)}, 3
        s_cbranch_scc1 L_kv0last
        s_mov_b32 {sr(S_PDONE)}, {sr(S_DONE)}
        s_barrier
        """)
        kv0_setup(a)
        e2_wpro(a)
        a("s_branch L_kv0")
        a("L_kv0last:")
        drain_signal(a)
        a("L_kv0end:")
        return
    drain_signal(a)
    if CFG.get('tl'):
        a(f"s_lshl_b32 s68, {sr(S_KIND)}, 4")
        a("s_or_b32 s68, s68, 8")
        tl_store_nowait(a, "s68")
    a(f"""
    s_add_u32 {sr(S_KIND)}, {sr(S_KIND)}, 1
    s_cmp_ge_u32 {sr(S_T)}, 16
    s_cbranch_scc1 L_kv0end
    s_cmp_ge_u32 {sr(S_KIND)}, 3
    s_cbranch_scc1 L_kv0end
    """)
    kv0_setup(a)
    e2_wpro(a)
    a("s_branch L_kv0")
    a("L_kv0end:")

V3_TR, V3_WD, V3_XO, V3_RW, V3_RR, V_PA, V_PT, V_PV = 208, 210, 211, 212, 213, 214, 215, 216
V3_EX = 204
X3 = lambda p, ii: 32 + (p*2 + ii)*4
W3 = lambda p, t: (p*4 + t)*4
ACC3, XG3, OWN3, PART3, T3 = 160, 192, 196, 200, 218
S_CB, S_SEG, S_NSEG, S_XO, S_GO, S_NAOFF, S_RDY = 30, 31, 32, 33, 34, 35, 36
S_PSEG, S_EXI, S_EXO = 37, 39, 29
S_MSK = 80
CN_PAIR = 128
EXSEG = 32*4096

def e3_setup(a):
    load_srd(a, S_B, KA_WO, 8*MB)
    a(f"""
    v_lshrrev_b32 v1, 2, v0
    v_lshlrev_b32 v1, 11, v1
    v_and_b32 v2, 3, v0
    v_lshlrev_b32 v2, 4, v2
    v_add_u32 {vr(V3_WD)}, v1, v2                 ; (l>>2)*2048 + (l&3)*16
    v_lshrrev_b32 v1, 4, v0
    v_lshlrev_b32 v1, 2, v1
    v_bfe_u32 v2, v0, 2, 2
    v_add_u32 v1, v1, v2                          ; k = 4g + r
    v_lshlrev_b32 v1, 6, v1
    v_and_b32 v2, 3, v0
    v_lshlrev_b32 v2, 3, v2
    v_add_u32 v1, v1, v2
    s_lshl_b32 s4, {sr(S_W)}, 14
    v_add_u32 {vr(V3_TR)}, s4, v1
    v_add_u32 {vr(V3_TR+1)}, 0x10000, {vr(V3_TR)}
    v_and_b32 v1, 15, v0
    v_lshlrev_b32 v1, 11, v1
    v_lshrrev_b32 v2, 4, v0
    v_lshlrev_b32 v2, 3, v2
    v_add_u32 {vr(V3_XO)}, v1, v2                 ; i*2048 + g*8
    v_lshlrev_b32 v1, 4, v0
    s_lshl_b32 s4, {sr(S_W)}, 13
    v_add_u32 {vr(V3_RW)}, s4, v1
    s_lshl_b32 s4, {sr(S_W)}, 10
    v_add_u32 {vr(V3_RR)}, s4, v1
    v_mov_b32 {vr(V3_EX)}, {vr(V3_RR)}
    s_and_b32 s5, {sr(S_CB)}, 1
    s_lshl_b32 s5, s5, 2
    s_add_u32 s5, s5, {sr(S_W)}
    s_lshl_b32 {sr(S_T0+8)}, s5, 20
    s_lshl_b32 {sr(S_M2)}, {sr(S_W)}, 14
    v_mov_b32 {vr(ACC3)}, -1
    v_mov_b32 {vr(ACC3+1)}, -1
    v_mov_b32 {vr(ACC3+2)}, -1
    v_mov_b32 {vr(ACC3+3)}, -1
    s_mov_b64 s[6:7], {sr(S_MSK,2)}
    L_e3arm:
    s_ff1_i32_b64 s4, s[6:7]
    s_bitset0_b64 s[6:7], s4
    s_lshl_b32 s4, s4, 17
    s_lshl_b32 s5, {sr(S_CB)}, 12
    s_add_u32 s4, s4, s5
    s_add_u32 s4, s4, {OFF_EX}
    buffer_store_dwordx4 {vr(ACC3,4)}, {vr(V3_EX)}, {sr(S_WS,4)}, s4 offen
    s_cmp_lg_u64 s[6:7], 0
    s_cbranch_scc1 L_e3arm
    s_waitcnt lgkmcnt(0)
    """)
    def batch(b):
        a(f"""
        s_xor_b32 s4, {sr(S_CB)}, {b >> 1}
        s_lshl_b32 s4, s4, 6
        s_add_u32 {sr(S_BOFF)}, {sr(S_T0+8)}, s4
        s_add_u32 {sr(S_BOFF)}, {sr(S_BOFF)}, {(b & 1)*256*2048}
        """)
        for i in range(16):
            a(f"""
            s_add_u32 m0, {sr(S_M2)}, {(b & 1)*65536 + i*1024}
            s_nop 0
            buffer_load_dwordx4 {vr(V3_WD)}, {sr(S_B,4)}, {sr(S_BOFF)} offen lds
            s_add_u32 {sr(S_BOFF)}, {sr(S_BOFF)}, {16*2048}
            """)
    def reads(b):
        n = 0
        for p in range(8):
            for t in range(2):
                for sec in range(2):
                    a(f"ds_read_b64_tr_b16 {ar(W3(8*(b & 1)+p, 2*(b >> 1)+t) + 2*sec, 2)}, {vr(V3_TR + (b & 1))} offset:{p*2048 + sec*1024 + t*32}")
                    n += 1
                    if n % 8 == 0: a("s_waitcnt lgkmcnt(4)")
        a("s_waitcnt lgkmcnt(0)")
    batch(0); batch(1)
    for b in range(4):
        a(f"s_waitcnt vmcnt({16 if b < 3 else 0})")
        reads(b)
        if b < 2: batch(b + 2)
    a("s_barrier")
    a(f"""
    s_lshr_b32 s4, {sr(S_T)}, 1
    s_lshl_b32 s5, {sr(S_J)}, 4
    s_add_u32 s4, s4, s5
    s_lshl_b32 s4, s4, 8
    s_add_u32 {sr(S_DONE)}, s4, {OFF_CNT + CN_PAIR*256}
    """)
    a(signal_op(sr(S_DONE)))
    load_srd(a, S_B, KA_X, 4*MB)
    load_srd(a, S_OUT, KA_OUT, 4*MB)
    a(f"""
    s_mov_b32 {sr(S_A)}, {sr(S_WS)}
    s_mov_b32 {sr(S_A+1)}, {sr(S_WS+1)}
    s_mov_b32 {sr(S_A+3)}, 0x20000
    s_waitcnt lgkmcnt(0)
    """)
    wait_word(a, S_WS, sr(S_DONE), 2, 2)

V_OD = 205
def OSTEP(): return 2048 if CFG.get('oseg', 1) else 16384
def V_OA(): return V_OD if CFG.get('oseg', 1) else V_AD
def e3_xbase(a, dst, seg):
    if CFG.get('oseg', 1):
        a(f"""
        s_lshl_b32 s4, {sr(seg)}, 18
        s_and_b32 s5, {sr(S_CB)}, 1
        s_lshl_b32 s5, s5, 2
        s_add_u32 s5, s5, {sr(S_W)}
        s_lshl_b32 s5, s5, 15
        s_add_u32 s4, s4, s5
        s_add_u32 {sr(dst)}, s4, {OFF_OX}
        """)
        return
    a(f"""
    s_lshr_b32 s4, {sr(seg)}, 3
    s_lshl_b32 s4, s4, 21
    s_and_b32 s5, {sr(seg)}, 7
    s_lshl_b32 s5, s5, 9
    s_add_u32 s4, s4, s5
    s_and_b32 s5, {sr(S_CB)}, 1
    s_lshl_b32 s5, s5, 2
    s_add_u32 s5, s5, {sr(S_W)}
    s_lshl_b32 s5, s5, 18
    s_add_u32 s4, s4, s5
    s_add_u32 {sr(dst)}, s4, {OFF_OX}
    """)

def e3_polladdr(a, seg):
    a(f"""
    s_lshl_b32 s4, {sr(seg)}, 8
    s_add_u32 s4, s4, {OFF_CNT + CN_AT*256}
    v_mov_b32 {vr(V_PA)}, s4
    s_lshr_b32 s5, {sr(seg)}, 3
    s_lshl_b32 s5, s5, 8
    s_add_u32 s5, s5, {OFF_CNT + CN_DN*256}
    v_writelane_b32 {vr(V_PA)}, s5, 1
    """)

def e3_ld(p, ii, srd, soff):
    return f"buffer_load_dwordx4 {vr(X3(p,ii),4)}, {vr(V_OA())}, {sr(srd,4)}, {sr(soff)} offen offset:{ii*256}{CFG.get('e3mod', ' sc1')}"

def e3_finaddr(a, seg):
    a(f"""
    s_lshl_b32 s4, {sr(seg)}, 16
    s_lshr_b32 s5, {sr(S_W)}, 1
    s_lshl_b32 s6, s5, 15
    s_add_u32 s4, s4, s6
    s_lshl_b32 s6, {sr(S_CB)}, 6
    s_add_u32 s4, s4, s6
    s_and_b32 s7, {sr(S_W)}, 1
    s_lshl_b32 s6, s7, 5
    s_add_u32 {sr(S_XO)}, s4, s6
    s_lshr_b32 s4, {sr(seg)}, 3
    s_lshl_b32 s4, s4, 19
    s_lshl_b32 s6, {sr(S_CB)}, 14
    s_add_u32 s4, s4, s6
    s_and_b32 s6, {sr(seg)}, 7
    s_lshl_b32 s6, s6, 9
    s_add_u32 s4, s4, s6
    s_lshl_b32 s6, s5, 8
    s_add_u32 s4, s4, s6
    s_lshl_b32 s6, s7, 3
    s_add_u32 s4, s4, s6
    s_add_u32 {sr(S_GO)}, s4, {OFF_GS}
    s_lshl_b32 s4, {sr(seg)}, 17
    s_xor_b32 s5, {sr(S_CB)}, 1
    s_lshl_b32 s5, s5, 12
    s_add_u32 s4, s4, s5
    s_add_u32 {sr(S_EXI)}, s4, {OFF_EX}
    """)

def e3_xg(a):
    a(f"""
    buffer_load_dwordx2 {vr(XG3,2)}, {vr(V3_XO)}, {sr(S_B,4)}, {sr(S_XO)} offen
    buffer_load_dwordx2 {vr(XG3+2,2)}, {vr(V_AD)}, {sr(S_WS,4)}, {sr(S_GO)} offen sc1
    """)

def e3_part():
    return f"buffer_load_dwordx4 {vr(PART3,4)}, {vr(V3_EX)}, {sr(S_WS,4)}, {sr(S_EXI)} offen sc1"

def e3_finish(a, vm):
    top = a.label("Le3f"); retry = a.label("Le3r")
    T = T3
    a(f"""
    s_waitcnt vmcnt({vm})
    {top}:
    v_max3_u32 {vr(T)}, {vr(PART3)}, {vr(PART3+1)}, {vr(PART3+2)}
    v_max_u32 {vr(T)}, {vr(T)}, {vr(PART3+3)}
    v_cmp_eq_u32 vcc, -1, {vr(T)}
    s_cbranch_vccnz {retry}
    v_pk_add_f32 {vr(PART3,2)}, {vr(PART3,2)}, {vr(OWN3,2)}
    v_pk_add_f32 {vr(PART3+2,2)}, {vr(PART3+2,2)}, {vr(OWN3+2,2)}
    v_lshlrev_b32 {vr(T)}, 16, {vr(XG3)}
    v_and_b32 {vr(T+1)}, 0xffff0000, {vr(XG3)}
    v_lshlrev_b32 {vr(T+2)}, 16, {vr(XG3+1)}
    v_and_b32 {vr(T+3)}, 0xffff0000, {vr(XG3+1)}
    v_lshlrev_b32 {vr(T+4)}, 16, {vr(XG3+2)}
    v_and_b32 {vr(T+5)}, 0xffff0000, {vr(XG3+2)}
    v_lshlrev_b32 {vr(T+6)}, 16, {vr(XG3+3)}
    v_and_b32 {vr(T+7)}, 0xffff0000, {vr(XG3+3)}
    v_fma_f32 {vr(T)}, {vr(PART3)}, {vr(T+4)}, {vr(T)}
    v_fma_f32 {vr(T+1)}, {vr(PART3+1)}, {vr(T+5)}, {vr(T+1)}
    v_fma_f32 {vr(T+2)}, {vr(PART3+2)}, {vr(T+6)}, {vr(T+2)}
    v_fma_f32 {vr(T+3)}, {vr(PART3+3)}, {vr(T+7)}, {vr(T+3)}
    v_cvt_pk_bf16_f32 {vr(T+8)}, {vr(T)}, {vr(T+1)}
    v_cvt_pk_bf16_f32 {vr(T+9)}, {vr(T+2)}, {vr(T+3)}
    buffer_store_dwordx2 {vr(T+8,2)}, {vr(V3_XO)}, {sr(S_OUT,4)}, {sr(S_XO)} offen{CFG.get('outmod', '')}
    """)
    a.cold3.append(f"""{retry}:
    s_sub_u32 {sr(S_GBUD)}, {sr(S_GBUD)}, 1
    s_cbranch_scc1 L_abort
    {e3_part()}
    s_waitcnt vmcnt(0)
    s_branch {top}""")

def e3_loop(a):
    a.cold3 = []
    a(f"""
    v_mov_b32 {vr(V_PT)}, 8
    s_mov_b32 s4, 4
    v_writelane_b32 {vr(V_PT)}, s4, 1
    s_ff1_i32_b64 {sr(S_SEG)}, {sr(S_MSK,2)}
    s_bitset0_b64 {sr(S_MSK,2)}, {sr(S_SEG)}
    s_mov_b32 {sr(S_PSEG)}, -1
    L_e3cold:
    """)
    tl_stamp(a, 0)
    e3_polladdr(a, S_SEG)
    top = a.label("Le3p"); ok = a.label("Le3o")
    a(f"""
    {top}:
    buffer_load_dword {vr(V_PV)}, {vr(V_PA)}, {sr(S_WS,4)}, 0 offen sc1
    s_waitcnt vmcnt(0)
    v_cmp_ge_u32 vcc, {vr(V_PV)}, {vr(V_PT)}
    s_cmp_eq_u64 vcc, -1
    s_cbranch_scc1 {ok}
    s_sleep {CFG.get('e3sleep', 4)}
    s_sub_u32 {sr(S_GBUD)}, {sr(S_GBUD)}, 1
    s_cbranch_scc0 {top}
    s_branch L_abort
    {ok}:
    """)
    e3_xbase(a, S_AOFF, S_SEG)
    for p in range(8):
        a(e3_ld(p, 0, S_WS, S_AOFF)); a(e3_ld(p, 1, S_WS, S_AOFF))
        a(f"s_add_u32 {sr(S_AOFF)}, {sr(S_AOFF)}, {OSTEP()}")
    pad_ops(a, 2)
    a("L_e3top:")
    tl_stamp(a, 1)
    a(f"""
    s_cmp_lt_i32 {sr(S_PSEG)}, 0
    s_cselect_b32 {sr(S_T0+8)}, {sr(S_SEG)}, {sr(S_PSEG)}
    """)
    e3_finaddr(a, S_T0+8)
    a(f"""
    s_lshl_b32 s4, {sr(S_SEG)}, 17
    s_lshl_b32 s5, {sr(S_CB)}, 12
    s_add_u32 s4, s4, s5
    s_add_u32 {sr(S_EXO)}, s4, {OFF_EX}
    s_ff1_i32_b64 {sr(S_NSEG)}, {sr(S_MSK,2)}
    s_max_i32 s7, {sr(S_NSEG)}, 0
    s_mov_b32 {sr(S_T0+8)}, s7
    """)
    e3_polladdr(a, S_T0+8)
    e3_xg(a)
    a(f"buffer_load_dword {vr(V_PV)}, {vr(V_PA)}, {sr(S_WS,4)}, 0 offen sc1")
    e3_xbase(a, S_NAOFF, S_T0+8)
    for p in range(16):
        a(f"s_waitcnt vmcnt({19 if p < 8 else 14 if p == 8 else 15})")
        if p == 8:
            a(f"""
            v_cmp_ge_u32 vcc, {vr(V_PV)}, {vr(V_PT)}
            s_cmp_eq_u64 vcc, -1
            s_cselect_b32 {sr(S_RDY)}, 1, 0
            s_cmp_lt_i32 {sr(S_NSEG)}, 0
            s_cselect_b32 {sr(S_RDY)}, 0, {sr(S_RDY)}
            s_cmp_eq_u32 {sr(S_RDY)}, 1
            s_cselect_b32 {sr(S_A+2)}, {WS_BYTES}, 0
            {e3_part()}
            """)
        for t in range(4):
            for ii in range(2):
                acc = ACC3 + ((t >> 1)*4 + ii*2 + (t & 1))*4
                a(f"v_mfma_f32_16x16x32_bf16 {vr(acc,4)}, {ar(W3(p,t),4)}, {vr(X3(p,ii),4)}, {'0' if p == 0 else vr(acc,4)}")
        if p < 8:
            a(e3_ld(p + 8, 0, S_WS, S_AOFF)); a(e3_ld(p + 8, 1, S_WS, S_AOFF))
            a(f"s_add_u32 {sr(S_AOFF)}, {sr(S_AOFF)}, {OSTEP()}")
        else:
            a(e3_ld(p - 8, 0, S_A, S_NAOFF)); a(e3_ld(p - 8, 1, S_A, S_NAOFF))
            a(f"s_add_u32 {sr(S_NAOFF)}, {sr(S_NAOFF)}, {OSTEP()}")
    a("s_nop 7")
    for q in range(8): a(f"ds_write_b128 {vr(V3_RW)}, {vr(ACC3+4*q,4)} offset:{q*1024}")
    a("s_waitcnt lgkmcnt(0)")
    a("s_barrier")
    for hb in (1, 0):
        for src in range(4): a(f"ds_read_b128 {vr(ACC3+16*hb+4*src,4)}, {vr(V3_RR)} offset:{src*8192 + hb*4096}")
    a(f"""
    v_xor_b32 {vr(V3_RW)}, 32768, {vr(V3_RW)}
    v_xor_b32 {vr(V3_RR)}, 32768, {vr(V3_RR)}
    """)
    def sum4(b, d):
        a(f"""
        v_pk_add_f32 {vr(b,2)}, {vr(b,2)}, {vr(b+4,2)}
        v_pk_add_f32 {vr(b+2,2)}, {vr(b+2,2)}, {vr(b+6,2)}
        v_pk_add_f32 {vr(b+8,2)}, {vr(b+8,2)}, {vr(b+12,2)}
        v_pk_add_f32 {vr(b+10,2)}, {vr(b+10,2)}, {vr(b+14,2)}
        v_pk_add_f32 {vr(d,2)}, {vr(b,2)}, {vr(b+8,2)}
        v_pk_add_f32 {vr(d+2,2)}, {vr(b+2,2)}, {vr(b+10,2)}
        """)
    a("s_waitcnt lgkmcnt(4)")
    sum4(ACC3+16, ACC3+16)
    a(f"buffer_store_dwordx4 {vr(ACC3+16,4)}, {vr(V3_EX)}, {sr(S_WS,4)}, {sr(S_EXO)} offen")
    nofin = a.label("Le3n"); fin = a.label("Le3d")
    a(f"""
    s_cmp_lt_i32 {sr(S_PSEG)}, 0
    s_cbranch_scc1 {nofin}
    """)
    e3_finish(a, 17)
    a(f"{fin}:")
    a.cold3.append(f"""{nofin}:
    buffer_store_dword {vr(V_ONE)}, {vr(V_OOB)}, {sr(S_WS,4)}, 0 offen
    s_branch {fin}""")
    a("s_waitcnt lgkmcnt(0)")
    sum4(ACC3, OWN3)
    if CFG.get('tl'):
        a(f"s_lshl_b32 s68, {sr(S_SEG)}, 4")
        a("s_or_b32 s68, s68, 7")
        tl_store_nowait(a, "s68")
    a(f"""
    s_mov_b32 {sr(S_PSEG)}, {sr(S_SEG)}
    s_cmp_lt_i32 {sr(S_NSEG)}, 0
    s_cbranch_scc1 L_e3tail
    s_mov_b32 {sr(S_SEG)}, {sr(S_NSEG)}
    s_bitset0_b64 {sr(S_MSK,2)}, {sr(S_SEG)}
    s_cmp_eq_u32 {sr(S_RDY)}, 0
    s_cbranch_scc1 L_e3cold
    s_mov_b32 {sr(S_AOFF)}, {sr(S_NAOFF)}
    """)
    tl_stamp(a, 0)
    a("""
    s_branch L_e3top
    L_e3tail:
    """)
    e3_finaddr(a, S_PSEG)
    e3_xg(a)
    a(e3_part())
    e3_finish(a, 0)
    a("""
    s_waitcnt vmcnt(0)
    s_branch L_e3end
    """)
    for c in a.cold3: a(c)
    a("L_e3end:")

AQ, AK, AKM, AV, AVM = 32, 64, 96, 112, 144
A_ONE = 156
ASC = 160
APX, APA, APB = 180, 188, 196
def att_setup_regs(a):
    a(f"""
    v_and_b32 v1, 15, v0
    v_lshrrev_b32 v2, 4, v0
    v_lshlrev_b32 v4, 16, v2
    v_lshlrev_b32 v5, 4, v1
    v_add_u32 {vr(V_VD)}, v4, v5                  ; g*65536 + n*16
    v_bfe_u32 v4, v1, 2, 1
    v_lshlrev_b32 v4, 2, v4
    v_lshrrev_b32 v5, 3, v1
    v_lshlrev_b32 v5, 1, v5
    v_add_u32 v4, v4, v5
    v_and_b32 v5, 1, v1
    v_add_u32 v4, v4, v5
    v_lshlrev_b32 v4, 4, v4
    v_lshlrev_b32 v5, 7, v2
    v_add_u32 {vr(V_KMD)}, v4, v5
    v_mov_b32 {vr(V_NB)}, {fbits(-3.0e38):#x}
    v_lshlrev_b32 v4, 2, v2
    """)
    for r in range(4):
        a(f"""
        v_add_u32 v5, {r}, v4
        v_cmp_le_u32 {sr(S_MASK+2*r,2)}, v5, v1
        """)

def att_km_loads(so):
    l = [f"buffer_load_dwordx4 {vr(AKM+4*c,4)}, {vr(V_KMD)}, {sr(S_WS,4)}, {so} offen offset:{c*1024} sc1" for c in range(4)]
    l += [f"buffer_load_dword {vr(AVM+2*c+t)}, {vr(V_L4)}, {sr(S_WS,4)}, {so} offen offset:{c*1024+512+t*256} sc1" for c in range(4) for t in range(2)]
    return l

def xreduce(a, M, T, op):
    a(f"""
    v_mov_b32 {vr(T)}, {vr(M)}
    s_nop 1
    v_permlane32_swap_b32 {vr(T)}, {vr(M)}
    {op} {vr(M)}, {vr(M)}, {vr(T)}
    v_mov_b32 {vr(T)}, {vr(M)}
    s_nop 1
    v_permlane16_swap_b32 {vr(T)}, {vr(M)}
    {op} {vr(M)}, {vr(M)}, {vr(T)}
    """)

def att_task(a):
    sSM, sH, sQ, sK, sV, sKM, sO = [S_T0 + k for k in range(7)]
    a(f"""
    s_and_b32 {sr(sSM)}, {sr(S_NT)}, 7
    s_lshr_b32 {sr(sH)}, {sr(S_NT)}, 3
    s_lshl_b32 {sr(sH)}, {sr(sH)}, 2
    s_add_u32 {sr(sH)}, {sr(sH)}, {sr(S_W)}
    s_lshl_b32 s4, {sr(S_MT)}, 21
    s_lshl_b32 s5, {sr(sH)}, 16
    s_add_u32 s4, s4, s5
    s_lshl_b32 s5, {sr(sSM)}, 9
    s_add_u32 s4, s4, s5
    s_add_u32 {sr(sQ)}, s4, {OFF_QX}
    s_add_u32 {sr(sK)}, s4, {OFF_KX}
    s_add_u32 {sr(sO)}, s4, {OFF_OX}
    s_lshl_b32 s4, {sr(S_MT)}, 3
    s_add_u32 s4, s4, {sr(sSM)}                ; segment
    {f'''s_lshl_b32 s5, s4, 18
    s_lshl_b32 s6, {sr(sH)}, 13
    s_add_u32 s5, s5, s6
    s_add_u32 {sr(sO)}, s5, {OFF_OX}''' if CFG.get('oseg', 1) else ''}
    s_lshl_b32 s5, s4, 18
    s_lshl_b32 s6, {sr(sH)}, 11
    s_add_u32 s5, s5, s6
    s_add_u32 {sr(sV)}, s5, {OFF_VT}
    s_lshl_b32 s5, s4, 17
    s_lshl_b32 s6, {sr(sH)}, 12
    s_add_u32 s5, s5, s6
    s_add_u32 {sr(sKM)}, s5, {OFF_KM}
    """)
    for c in range(4):
        for t in range(2):
            a(f"buffer_load_dwordx4 {vr(AK+16*t+4*c,4)}, {vr(V_AD)}, {sr(S_WS,4)}, {sr(sK)} offen offset:{t*256} sc1")
            a(f"buffer_load_dwordx4 {vr(AQ+16*t+4*c,4)}, {vr(V_AD)}, {sr(S_WS,4)}, {sr(sQ)} offen offset:{t*256} sc1")
        if c < 3:
            a(f"s_add_u32 {sr(sK)}, {sr(sK)}, 16384")
            a(f"s_add_u32 {sr(sQ)}, {sr(sQ)}, 16384")
    for dt in range(8):
        a(f"buffer_load_dwordx4 {vr(AV+4*dt,4)}, {vr(V_VD)}, {sr(S_WS,4)}, {sr(sV)} offen offset:{dt*256} sc1")
    km = att_km_loads(sr(sKM))
    for ln in km: a(ln)
    a(f"v_mov_b32 {vr(AVM+8)}, 0")
    a(f"v_mov_b32 {vr(AVM+9)}, 0")
    for r in range(4): a(f"v_mov_b32 {vr(A_ONE+r)}, 0x3f803f80")
    for k in range(APA, APB + 8): a(f"v_mov_b32 {vr(k)}, 0")
    top = a.label("Latp"); ok = a.label("Lato")
    a(f"{top}:")
    a("s_waitcnt vmcnt(0)")
    t = 1
    regs = [AKM + k for k in range(16)] + [AVM + k for k in range(8)]
    a(f"v_max3_u32 {vr(t)}, {vr(regs[0])}, {vr(regs[1])}, {vr(regs[2])}")
    rr = regs[3:]
    while len(rr) >= 2:
        a(f"v_max3_u32 {vr(t)}, {vr(t)}, {vr(rr[0])}, {vr(rr[1])}"); rr = rr[2:]
    if rr: a(f"v_max_u32 {vr(t)}, {vr(t)}, {vr(rr[0])}")
    a(f"""
    v_cmp_eq_u32 vcc, -1, {vr(t)}
    s_cbranch_vccz {ok}
    s_sleep {CFG.get('atsleep', 16)}
    s_sub_u32 {sr(S_GBUD)}, {sr(S_GBUD)}, 1
    s_cbranch_scc1 L_abort
    """)
    for ln in km: a(ln)
    a(f"s_branch {top}")
    a(f"{ok}:")
    Dm = [ASC, ASC + 8]; D0 = [ASC + 4, ASC + 12]; D1 = ASC + 16
    def sc(d, kreg, qt, c):
        a(f"v_mfma_f32_16x16x32_bf16 {vr(d,4)}, {vr(kreg,4)}, {vr(AQ+16*qt+4*c,4)}, {'0' if c == 0 else vr(d,4)}")
    for c in range(4):
        sc(Dm[0], AKM+4*c, 0, c); sc(D0[0], AK+4*c, 0, c)
        sc(Dm[1], AKM+4*c, 1, c); sc(D0[1], AK+4*c, 1, c); sc(D1, AK+16+4*c, 1, c)
    a("s_nop 7")
    csc = fbits(128**-0.5 * 1.4426950408889634)
    a(f"s_mov_b32 s4, {csc:#x}")
    M, T = 2, 3
    for qt in range(2):
        dm = Dm[qt]; d0 = D0[qt]
        masked = d0 if qt == 0 else D1
        for r in range(4):
            a(f"v_cndmask_b32 {vr(masked+r)}, {vr(V_NB)}, {vr(masked+r)}, {sr(S_MASK+2*r,2)}")
        a(f"v_max3_f32 {vr(M)}, {vr(dm)}, {vr(dm+1)}, {vr(d0)}")
        a(f"v_max3_f32 {vr(M)}, {vr(M)}, {vr(d0+1)}, {vr(d0+2)}")
        a(f"v_max_f32 {vr(M)}, {vr(M)}, {vr(d0+3)}")
        if qt == 1:
            a(f"v_max3_f32 {vr(M)}, {vr(M)}, {vr(D1)}, {vr(D1+1)}")
            a(f"v_max3_f32 {vr(M)}, {vr(M)}, {vr(D1+2)}, {vr(D1+3)}")
        xreduce(a, M, T, "v_max_f32")
        a(f"v_mul_f32 {vr(M)}, s4, {vr(M)}")
        vals = [dm, dm+1] + [d0+r for r in range(4)] + ([D1+r for r in range(4)] if qt == 1 else [])
        for v in vals: a(f"v_fma_f32 {vr(v)}, {vr(v)}, s4, -{vr(M)}")
        for v in vals: a(f"v_exp_f32 {vr(v)}, {vr(v)}")
        px = APX + 4*qt
        a(f"v_cvt_pk_bf16_f32 {vr(APA+4*qt)}, {vr(dm)}, {vr(dm+1)}")
        a(f"v_cvt_pk_bf16_f32 {vr(px)}, {vr(d0)}, {vr(d0+1)}")
        a(f"v_cvt_pk_bf16_f32 {vr(px+1)}, {vr(d0+2)}, {vr(d0+3)}")
        if qt == 1:
            a(f"v_cvt_pk_bf16_f32 {vr(px+2)}, {vr(D1)}, {vr(D1+1)}")
            a(f"v_cvt_pk_bf16_f32 {vr(px+3)}, {vr(D1+2)}, {vr(D1+3)}")
        else:
            a(f"v_mov_b32 {vr(px+2)}, 0")
            a(f"v_mov_b32 {vr(px+3)}, 0")
        a(f"v_mov_b32 {vr(APB+4*qt+1)}, {vr(APA+4*qt)}")
    a("s_nop 1")
    for qt in range(2):
        a(f"v_mfma_f32_16x16x32_bf16 {ar(64+4*qt,4)}, {vr(A_ONE,4)}, {vr(APX+4*qt,4)}, 0")
        for dt in range(8):
            a(f"v_mfma_f32_16x16x32_bf16 {ar(32*qt+4*dt,4)}, {vr(AV+4*dt,4)}, {vr(APX+4*qt,4)}, 0")
    for qt in range(2):
        a(f"v_mfma_f32_16x16x32_bf16 {ar(64+4*qt,4)}, {vr(A_ONE,4)}, {vr(APA+4*qt,4)}, {ar(64+4*qt,4)}")
        for dt in range(8):
            pm = (APA if dt % 2 == 0 else APB) + 4*qt
            a(f"v_mfma_f32_16x16x32_bf16 {ar(32*qt+4*dt,4)}, {vr(AVM+(dt & ~1),4)}, {vr(pm,4)}, {ar(32*qt+4*dt,4)}")
    a("s_nop 7")
    for qt in range(2):
        L = 2 + qt
        a(f"v_accvgpr_read_b32 {vr(L)}, {ar(64+4*qt)}")
        a("s_nop 0")
        a(f"v_rcp_f32 {vr(L)}, {vr(L)}")
    n = 0
    for qt in range(2):
        L = 2 + qt
        for c in range(4):
            b = 32 + 12*(n % 4); n += 1
            for k in range(8): a(f"v_accvgpr_read_b32 {vr(b+k)}, {ar(32*qt+8*c+k)}")
            for k in range(8): a(f"v_mul_f32 {vr(b+k)}, {vr(b+k)}, {vr(L)}")
            for k in range(4): a(f"v_cvt_pk_bf16_f32 {vr(b+8+k)}, {vr(b+2*k)}, {vr(b+2*k+1)}")
            a(f"s_add_u32 s5, {sr(sO)}, {c*OSTEP()}")
            a(f"buffer_store_dwordx4 {vr(b+8,4)}, {vr(V_OA())}, {sr(S_WS,4)}, s5 offen offset:{qt*256} sc1")

def ln_task(a, s_rank):
    load_srd(a, S_OUT, KA_X, 4*MB)
    F = 64
    a(f"""
    v_and_b32 v1, 15, v0
    v_lshrrev_b32 v2, 4, v0
    v_lshlrev_b32 v4, 11, v1
    v_lshlrev_b32 v5, 3, v2
    v_add_u32 v4, v4, v5
    s_lshl_b32 s4, {sr(s_rank)}, 15
    s_lshl_b32 s5, {sr(S_W)}, 9
    s_add_u32 s4, s4, s5
    s_waitcnt lgkmcnt(0)
    """)
    for p in range(8):
        a(f"buffer_load_dwordx2 {vr(32+4*p,2)}, v4, {sr(S_OUT,4)}, s4 offen offset:{p*64}")
        a(f"buffer_load_dwordx2 {vr(32+4*p+2,2)}, v4, {sr(S_OUT,4)}, s4 offen offset:{p*64+32}")
    a(f"""
    s_lshl_b32 s5, {sr(S_W)}, 6
    v_lshlrev_b32 v5, 2, v1
    v_add_u32 v6, s5, v5
    v_add_u32 v6, {LSC}, v6
    v_add_u32 v7, {LSC}, v5
    """)
    tl_fine(a, 2)
    nw = CFG.get('lnw', 4) if CFG.get('lnfirst') == 2 else 0
    e2_wpro(a, 0, nw)
    nv = CFG.get('lnw2', 0) if CFG.get('lnfirst') == 2 else 0
    groups = []
    if nv:
        for j in range(4): a(f"v_mov_b32 {vr(232+j)}, {vr(V2_BD+j)}")
        for st in range(nw, nw + nv): groups += e2_wdma(st, 232)
    a(f"s_waitcnt vmcnt({4*nw})")
    tl_fine(a, 3)
    a0 = a; cnt = [0]; every = CFG.get('lnwe', 24)
    def a(txt):
        for ln in txt.split("\n"):
            a0(ln)
            if ln.strip().startswith("v_") and "permlane" not in ln:
                cnt[0] += 1
                if groups and cnt[0] % every == 0:
                    for g in groups.pop(0): a0(g)
    for d in range(32):
        a(f"v_lshlrev_b32 {vr(F+2*d)}, 16, {vr(32+d)}")
        a(f"v_and_b32 {vr(F+2*d+1)}, 0xffff0000, {vr(32+d)}")
    def total(src, region):
        for k in range(16): a(f"v_pk_add_f32 {vr(128+2*k,2)}, {vr(src+4*k,2)}, {vr(src+4*k+2,2)}")
        n = 16
        while n > 1:
            n //= 2
            for k in range(n): a(f"v_pk_add_f32 {vr(128+2*k,2)}, {vr(128+2*k,2)}, {vr(128+2*(k+n),2)}")
        a("v_add_f32 v2, v128, v129")
        xreduce(a, 2, 3, "v_add_f32")
        a(f"""
        ds_write_b32 v6, v2 offset:{region}
        s_waitcnt lgkmcnt(0)
        s_barrier
        ds_read_b32 v128, v7 offset:{region}
        ds_read_b32 v129, v7 offset:{region+64}
        ds_read_b32 v130, v7 offset:{region+128}
        ds_read_b32 v131, v7 offset:{region+192}
        s_waitcnt lgkmcnt(0)
        v_add_f32 v128, v128, v129
        v_add_f32 v130, v130, v131
        v_add_f32 v2, v128, v130
        v_mul_f32 v2, {fbits(1/1024):#x}, v2
        """)
    total(F, 0)
    a("v_mov_b32 v5, v2")
    D = 160
    for k in range(64): a(f"v_sub_f32 {vr(D+k)}, {vr(F+k)}, v5")
    for k in range(0, 64, 2): a(f"v_pk_mul_f32 {vr(D+k,2)}, {vr(D+k,2)}, {vr(D+k,2)}")
    total(D, 256)
    a(f"""
    v_cvt_pk_bf16_f32 v5, v5, v5
    v_cvt_pk_bf16_f32 v2, v2, v2
    v_lshlrev_b32 v5, 16, v5
    v_lshlrev_b32 v2, 16, v2
    v_add_f32 v2, {fbits(1e-5):#x}, v2
    v_cvt_pk_bf16_f32 v2, v2, v2
    v_lshlrev_b32 v2, 16, v2
    v_sqrt_f32 v2, v2
    s_nop 0
    v_cvt_pk_bf16_f32 v2, v2, v2
    v_lshlrev_b32 v2, 16, v2
    v_rcp_f32 v2, v2
    """)
    for k in range(64): a(f"v_sub_f32 {vr(F+k)}, {vr(F+k)}, v5")
    for d in range(32): a(f"v_cvt_pk_bf16_f32 {vr(32+d)}, {vr(F+2*d)}, {vr(F+2*d+1)}")
    for d in range(32):
        a(f"v_lshlrev_b32 {vr(F+2*d)}, 16, {vr(32+d)}")
        a(f"v_and_b32 {vr(F+2*d+1)}, 0xffff0000, {vr(32+d)}")
    for k in range(64): a(f"v_mul_f32 {vr(F+k)}, {vr(F+k)}, v2")
    for d in range(32): a(f"v_cvt_pk_bf16_f32 {vr(32+d)}, {vr(F+2*d)}, {vr(F+2*d+1)}")
    for g0 in groups:
        for g in g0: a0(g)
    a(f"""
    s_lshr_b32 s4, {sr(s_rank)}, 4
    s_lshl_b32 s4, s4, 19
    s_and_b32 s5, {sr(s_rank)}, 15
    s_lshl_b32 s5, s5, 8
    s_add_u32 s4, s4, s5
    s_lshl_b32 s5, {sr(S_W)}, 17
    s_add_u32 s4, s4, s5
    s_add_u32 s4, s4, {OFF_XN}
    """)
    for p in range(8):
        a(f"buffer_store_dwordx4 {vr(32+4*p,4)}, {vr(V_AD)}, {sr(S_WS,4)}, s4 offen sc1")
        if p < 7: a("s_add_u32 s4, s4, 16384")

S_PID, S_PCNT = 92, 93
def tl_stamp(a, i):
    if CFG.get('tl'):
        a(f"s_memrealtime s[{70+2*i}:{71+2*i}]")
        a("s_waitcnt lgkmcnt(0)")
def tl_fine(a, k):
    if CFG.get('tl') == 3:
        a("s_memrealtime s[76:77]")
        a("s_waitcnt lgkmcnt(0)")
        a(f"v_writelane_b32 v248, s76, {k}")
def tl_fine2(a, k):
    if CFG.get('tl') == 3:
        a("s_memrealtime s[76:77]")
        a(f"s_lshl_b32 s78, {sr(S_KIND)}, 4")
        a(f"s_add_u32 s78, s78, {8 + k}")
        a("s_mov_b32 s79, m0")
        a("s_mov_b32 m0, s78")
        a("s_waitcnt lgkmcnt(0)")
        a("v_writelane_b32 v248, s76, m0")
        a("s_mov_b32 m0, s79")
def tl_task_start(a):
    if CFG.get('tl'):
        tl_stamp(a, 1)
def tl_store(a, tk):
    if CFG.get('tl'):
        lab = a.label("Ltl")
        tl_stamp(a, 2)
        if not isinstance(tk, str):
            a(f"s_mov_b32 s68, {tk}"); tk = "s68"
        a(f"""
        s_cmp_lg_u32 {sr(S_W)}, 0
        s_cbranch_scc1 {lab}
        v_mov_b32 v4, 0
        v_writelane_b32 v4, {tk}, 0
        v_writelane_b32 v4, s70, 1
        v_writelane_b32 v4, s72, 2
        v_writelane_b32 v4, s74, 3
        s_lshl_b32 s4, {sr(S_PID)}, 11
        s_lshl_b32 s5, {sr(S_PCNT)}, 4
        s_add_u32 s4, s4, s5
        s_add_u32 s4, s4, {OFF_DBG}
        v_mov_b32 v5, 0x80000000
        v_cmp_gt_u32 vcc, 4, v0
        s_nop 1
        v_cndmask_b32 v5, v5, {vr(V_L4)}, vcc
        buffer_store_dword v4, v5, {sr(S_WS,4)}, s4 offen
        s_waitcnt vmcnt(0)
        {lab}:
        s_add_u32 {sr(S_PCNT)}, {sr(S_PCNT)}, 1
        s_min_u32 {sr(S_PCNT)}, {sr(S_PCNT)}, 127
        s_mov_b32 s70, s74
        """)

def wait_word(a, srd, s_off, target, sleep=8):
    top = a.label("Lww"); ok = a.label("Lwwo")
    a(f"""
    s_cmp_lg_u32 {sr(S_W)}, 0
    s_cbranch_scc1 {ok}
    v_mov_b32 v1, {s_off}
    {top}:
    buffer_load_dword v2, v1, {sr(srd,4)}, 0 offen sc1
    s_waitcnt vmcnt(0)
    v_cmp_le_u32 vcc, {target}, v2
    s_cbranch_vccnz {ok}
    s_sleep {sleep}
    s_sub_u32 {sr(S_GBUD)}, {sr(S_GBUD)}, 1
    s_cbranch_scc0 {top}
    s_branch L_abort
    {ok}:
    s_barrier
    """)

def wait_cnt(a, base, s_idx, target, scale=1, sleep=8):
    if s_idx is None:
        wait_word(a, S_WS, OFF_CNT + base*256, target, sleep)
    else:
        a(f"s_mul_i32 s4, {sr(s_idx)}, {256*scale}")
        a(f"s_add_u32 s4, s4, {OFF_CNT + base*256}")
        wait_word(a, S_WS, "s4", target, sleep)

def drain_signal(a):
    a("s_waitcnt vmcnt(0) lgkmcnt(0)")
    a("s_barrier")
    a(signal_op(sr(S_DONE)))

G_END, G_KV, G_GU, G_Q, G_DN = 0, 1, 2, 3, 4
K_K, K_V, K_Q, K_GU, K_DN = 1, 2, 3, 4, 5
SCHED = [
    [(0, G_GU, 8), (8, G_KV, 8), (16, G_KV, -8), (24, G_GU, -24)],
    [(0, G_GU, 32), (8, G_GU, 32), (16, G_GU, 0), (24, G_GU, 0)],
    [(0, G_Q, 0), (8, G_KV, 24), (16, G_KV, 8), (24, G_DN, -24), (28, G_Q, 0)],
    [(0, G_Q, 8), (8, G_Q, 8), (16, G_GU, 32), (24, G_Q, 2), (26, G_END, 0), (28, G_DN, -24), (30, G_Q, -6)],
    [(0, G_END, 0), (8, G_KV, 40), (16, G_KV, 24), (24, G_END, 0), (30, G_DN, -24)],
    [(0, G_END, 0), (16, G_KV, 40), (24, G_END, 0)],
    [(0, G_END, 0)],
]
def sched_setup(a):
    sched = CFG.get('sched', SCHED)
    for k in range(8):
        rows = sched[k] if k < len(sched) else [(0, G_END, 0)]
        d = S_SCH + k
        for n, (t0, g, off) in enumerate(rows):
            val = f"s_add_u32 s4, {sr(S_T)}, {(g << 8) + off}" if g != G_END else "s_mov_b32 s4, 0"
            a(val)
            if n == 0: a(f"s_mov_b32 {sr(d)}, s4")
            else:
                a(f"s_cmp_ge_u32 {sr(S_T)}, {t0}")
                a(f"s_cselect_b32 {sr(d)}, s4, {sr(d)}")

def sched_pop(a):
    for k in range(7): a(f"s_mov_b32 {sr(S_SCH+k)}, {sr(S_SCH+k+1)}")
    a(f"s_mov_b32 {sr(S_SCH+7)}, 0")

def e1_decode(a, dn):
    lq = a.label("Ldq"); lg = a.label("Ldg"); lv = a.label("Ldv"); lb = a.label("Ldb"); le = a.label("Lde"); ld = a.label("Ldd")
    a(f"""
    s_lshr_b32 s6, {sr(S_SCH)}, 8             ; group
    s_and_b32 s7, {sr(S_SCH)}, 0xff           ; index
    s_mov_b32 {sr(S_A+2)}, {WS_BYTES}
    s_mov_b32 {sr(S_NCNT)}, 7
    s_cmp_eq_u32 s6, {G_GU}
    s_cbranch_scc1 {lg}
    """)
    if dn:
        a(f"""
        s_cmp_eq_u32 s6, {G_DN}
        s_cbranch_scc1 {ld}
        """)
    a(f"""
    s_cmp_eq_u32 s6, {G_Q}
    s_cbranch_scc1 {lq}
    s_lshr_b32 {sr(S_T0)}, s7, 3
    s_and_b32 {sr(S_T0+1)}, s7, 3
    s_lshl_b32 s4, {sr(S_J)}, 2
    s_add_u32 {sr(S_T0+1)}, {sr(S_T0+1)}, s4      ; nt
    s_add_u32 s4, {sr(S_T0)}, {CN_KV}
    s_lshl_b32 s4, s4, 8
    s_add_u32 {sr(S_NDONE)}, s4, {OFF_CNT}
    s_bitcmp1_b32 s7, 2
    s_cbranch_scc1 {lv}
    s_load_dwordx2 {sr(S_B,2)}, s[0:1], {KA_WK}
    s_mov_b32 {sr(S_NKIND)}, {K_K}
    s_lshl_b32 s4, {sr(S_T0)}, 21
    s_lshl_b32 s5, {sr(S_T0+1)}, 17
    s_add_u32 s4, s4, s5
    s_add_u32 {sr(S_NCOFF)}, s4, {OFF_KX}
    s_branch {lb}
    {lv}:
    s_load_dwordx2 {sr(S_B,2)}, s[0:1], {KA_WV}
    s_mov_b32 {sr(S_NKIND)}, {K_V}
    s_lshl_b32 s4, {sr(S_T0)}, 21
    s_lshl_b32 s5, {sr(S_T0+1)}, 12
    s_add_u32 s4, s4, s5
    s_add_u32 {sr(S_NCOFF)}, s4, {OFF_VT}
    s_branch {lb}
    {lq}:
    s_lshr_b32 {sr(S_T0)}, s7, 2
    s_and_b32 {sr(S_T0+1)}, s7, 3
    s_lshl_b32 s4, {sr(S_J)}, 2
    s_add_u32 {sr(S_T0+1)}, {sr(S_T0+1)}, s4
    s_add_u32 s4, {sr(S_T0)}, {CN_Q}
    s_lshl_b32 s4, s4, 8
    s_add_u32 {sr(S_NDONE)}, s4, {OFF_CNT}
    s_load_dwordx2 {sr(S_B,2)}, s[0:1], {KA_WQ}
    s_mov_b32 {sr(S_NKIND)}, {K_Q}
    s_lshl_b32 s4, {sr(S_T0)}, 21
    s_lshl_b32 s5, {sr(S_T0+1)}, 17
    s_add_u32 s4, s4, s5
    s_add_u32 {sr(S_NCOFF)}, s4, {OFF_QX}
    {lb}:
    s_mov_b32 {sr(S_B+2)}, {8*MB}
    s_mov_b32 {sr(S_T0+2)}, 8192
    s_lshl_b32 {sr(S_BOFF)}, {sr(S_T0+1)}, 9
    s_and_b32 s4, {sr(S_W)}, 1
    s_lshl_b32 s4, s4, 8
    s_add_u32 {sr(S_BOFF)}, {sr(S_BOFF)}, s4
    s_lshl_b32 {sr(S_AOFF)}, {sr(S_T0)}, 19
    s_add_u32 {sr(S_AOFF)}, {sr(S_AOFF)}, {OFF_XN}
    s_branch {le}
    """)
    if dn:
        a(f"""
        {ld}:
        s_load_dwordx2 {sr(S_B,2)}, s[0:1], {KA_WD}
        s_mov_b32 {sr(S_B+2)}, {3584*2048}
        s_mov_b32 {sr(S_NKIND)}, {K_DN}
        s_mov_b32 {sr(S_NCNT)}, 27
        s_add_u32 s4, s7, {CN_DN}
        s_lshl_b32 s4, s4, 8
        s_add_u32 {sr(S_NDONE)}, s4, {OFF_CNT}
        s_mov_b32 {sr(S_T0+2)}, 2048
        s_lshl_b32 {sr(S_BOFF)}, {sr(S_J)}, 9
        s_and_b32 s4, {sr(S_W)}, 1
        s_lshl_b32 s4, s4, 8
        s_add_u32 {sr(S_BOFF)}, {sr(S_BOFF)}, s4
        s_mul_i32 {sr(S_AOFF)}, s7, {448*4096}
        s_add_u32 {sr(S_AOFF)}, {sr(S_AOFF)}, {OFF_H}
        s_lshl_b32 s4, s7, 19
        s_lshl_b32 s5, {sr(S_J)}, 17
        s_add_u32 s4, s4, s5
        s_add_u32 {sr(S_NCOFF)}, s4, {OFF_GS}
        s_branch {le}
        """)
    a(f"""
    {lg}:
    s_mul_i32 s5, s7, 9363
    s_lshr_b32 {sr(S_T0)}, s5, 16
    s_mul_i32 s5, {sr(S_T0)}, 7
    s_sub_u32 s4, s7, s5
    s_mul_i32 {sr(S_T0+1)}, {sr(S_J)}, 7
    s_add_u32 {sr(S_T0+1)}, {sr(S_T0+1)}, s4   ; nt
    s_add_u32 s4, {sr(S_T0)}, {CN_GU}
    s_lshl_b32 s4, s4, 8
    s_add_u32 {sr(S_NDONE)}, s4, {OFF_CNT}
    s_and_b32 s4, {sr(S_W)}, 1
    s_lshl_b32 s4, s4, 3
    s_add_u32 s4, s4, {KA_WG}
    s_load_dwordx2 {sr(S_B,2)}, s[0:1], s4
    s_mov_b32 {sr(S_B+2)}, {1024*7168}
    s_mov_b32 {sr(S_NKIND)}, {K_GU}
    s_mov_b32 {sr(S_T0+2)}, 7168
    s_lshl_b32 {sr(S_BOFF)}, {sr(S_T0+1)}, 8
    s_mul_i32 s4, {sr(S_T0)}, {448*4096}
    s_lshl_b32 s5, {sr(S_T0+1)}, 16
    s_add_u32 s4, s4, s5
    s_add_u32 {sr(S_NCOFF)}, s4, {OFF_H}
    s_lshl_b32 {sr(S_AOFF)}, {sr(S_T0)}, 19
    s_add_u32 {sr(S_AOFF)}, {sr(S_AOFF)}, {OFF_XN}
    {le}:
    s_mov_b32 {sr(S_B+3)}, 0x20000
    """)
    e1_bvoff(a, S_T0+2)

def e1_next(a, back):
    nul = a.label("Lnul")
    a(f"""
    s_lshr_b32 s6, {sr(S_SCH)}, 8
    s_cmp_eq_u32 s6, {G_END}
    s_cbranch_scc1 {nul}
    s_cmp_eq_u32 s6, {G_DN}
    s_cbranch_scc1 {nul}
    """)
    e1_decode(a, False)
    sched_pop(a)
    a(f"s_branch {back}")
    a(f"""
    {nul}:
    s_mov_b32 {sr(S_NKIND)}, 0
    s_mov_b32 {sr(S_A+2)}, 0
    s_mov_b32 {sr(S_B+2)}, 0
    s_branch {back}
    """)

def promote(a):
    a(f"""
    s_mov_b32 {sr(S_COFF)}, {sr(S_NCOFF)}
    s_mov_b32 {sr(S_DONE)}, {sr(S_NDONE)}
    s_mov_b32 {sr(S_KIND)}, {sr(S_NKIND)}
    s_mov_b32 {sr(S_CNT)}, {sr(S_NCNT)}
    s_cmp_eq_u32 {sr(S_KIND)}, {K_V}
    s_cbranch_scc1 L_f4S
    s_branch L_f4N
    """)

def g_setup(a):
    a(f"""
    v_lshlrev_b32 {vr(V_L4)}, 2, v0
    v_mov_b32 {vr(V_ONE)}, 1
    v_mov_b32 {vr(V_OOB)}, 0x80000000
    s_cmp_eq_u32 {sr(S_W)}, 0
    s_cselect_b32 s5, 0, 0x80000000
    v_mov_b32 v1, s5
    v_mov_b32 v2, 0x80000000
    v_cmp_eq_u32 vcc, 0, v0
    s_nop 1
    v_cndmask_b32 {vr(V_SIG)}, v2, v1, vcc
    s_mov_b32 {sr(S_GBUD)}, {CFG.get('budget', 400000)}
    """)
    e1_setup_regs(a)
    att_setup_regs(a)

def g_start(a, s_rank):
    lab = a.label("Lini"); l2 = a.label("Lln0")
    e2_setup_regs(a)
    a(f"s_mov_b32 {sr(S_KIND)}, 0")
    tl_fine(a, 0)
    kv0_setup(a)
    tl_fine(a, 1)
    if not CFG.get('lnfirst'): e2_wpro(a)
    a(f"""
    s_cmp_lg_u32 {sr(s_rank)}, 0
    s_cbranch_scc1 {lab}
    v_lshlrev_b32 v1, 8, v0
    v_mov_b32 v2, 0
    s_mov_b32 s4, {OFF_CNT}
    buffer_store_dword v2, v1, {sr(S_WS,4)}, s4 offen sc1
    s_add_u32 s4, s4, {64*256}
    buffer_store_dword v2, v1, {sr(S_WS,4)}, s4 offen sc1
    s_add_u32 s4, s4, {64*256}
    buffer_store_dword v2, v1, {sr(S_WS,4)}, s4 offen sc1
    {lab}:
    s_lshl_b32 {sr(S_PDONE)}, {sr(S_T)}, 2
    s_add_u32 {sr(S_PDONE)}, {sr(S_PDONE)}, {sr(S_J)}
    """)
    ln_task(a, S_PDONE)
    tl_fine(a, 4)
    e2_setup_regs(a)
    if CFG.get('lnfirst') == 1: e2_wpro(a)
    sched_setup(a)
    a(f"s_waitcnt vmcnt({4*E2N() if CFG.get('lnfirst') == 1 else 0}) lgkmcnt(0)")
    tl_fine(a, 5)
    a("s_barrier")
    tl_fine(a, 6)
    a(f"buffer_atomic_add {vr(V_ONE)}, {vr(V_SIG)}, {sr(S_DBG,4)}, 0 offen offset:{C_LN*4} sc1")
    a(f"""
    s_cmp_ge_u32 {sr(S_PDONE)}, 16
    s_cbranch_scc1 {l2}
    buffer_atomic_add {vr(V_ONE)}, {vr(V_SIG)}, {sr(S_DBG,4)}, 0 offen offset:{C_LN0*4} sc1
    s_cmp_ge_u32 {sr(S_PDONE)}, 8
    s_cbranch_scc1 {l2}
    buffer_atomic_add {vr(V_ONE)}, {vr(V_SIG)}, {sr(S_DBG,4)}, 0 offen offset:{C_LN0A*4} sc1
    {l2}:
    """)
    if CFG.get('lnfirst') == 2: e2_wpro(a, CFG.get('lnw', 4) + CFG.get('lnw2', 0))
    if CFG.get('tl'):
        a("s_mov_b32 s72, s70")
        tl_store(a, 0xffff)
    if CFG.get('ln0a', 1): wait_word(a, S_DBG, C_LN0A*4, 8, CFG.get('ln0sleep', 2))
    else: wait_word(a, S_DBG, C_LN0*4, 16, CFG.get('ln0sleep', 8))
    a(f"s_mov_b32 {sr(S_PDONE)}, {OFF_CNT + CN_SPARE*256}")
    tl_fine(a, 7)
    kv0_loop(a)
    if CFG.get('tl') == 3:
        a(f"""
        v_lshlrev_b32 v4, 2, v0
        s_lshl_b32 s4, {sr(S_PID)}, 8
        s_lshl_b32 s4, s4, 2
        s_lshl_b32 s5, {sr(S_W)}, 8
        s_add_u32 s4, s4, s5
        s_add_u32 s4, s4, {OFF_DBG + 768*1024}
        v_mov_b32 v5, 0x80000000
        v_cmp_gt_u32 vcc, 64, v0
        s_nop 1
        v_cndmask_b32 v4, v5, v4, vcc
        buffer_store_dword v248, v4, {sr(S_WS,4)}, s4 offen
        """)
    wait_word(a, S_DBG, C_LN*4, 128)

def g_main(a):
    a("L_e1start:")
    lab = a.label("Lnd")
    a(f"""
    s_lshr_b32 s6, {sr(S_SCH)}, 8
    s_cmp_eq_u32 s6, {G_END}
    s_cbranch_scc1 L_p2
    s_cmp_eq_u32 s6, {G_DN}
    s_cbranch_scc0 {lab}
    s_and_b32 {sr(S_MT)}, {sr(S_SCH)}, 0xff
    """)
    wait_cnt(a, CN_GU, S_MT, 28)
    a(f"{lab}:")
    e1_decode(a, True)
    sched_pop(a)
    a(f"s_mov_b32 {sr(S_DONE)}, {OFF_CNT + CN_SPARE*256}")
    a("s_waitcnt lgkmcnt(0)")
    e1_prologue(a)
    a(f"s_mov_b32 {sr(S_PDONE)}, {OFF_CNT + CN_SPARE*256}")
    promote(a)
    e1_body(a, False, "N")
    e1_body(a, True, "S")
    a("L_e1ep:")
    a(f"""
    s_cmp_eq_u32 {sr(S_KIND)}, {K_V}
    s_cbranch_scc1 L_epV
    s_cmp_eq_u32 {sr(S_KIND)}, {K_GU}
    s_cbranch_scc1 L_epGU
    s_cmp_eq_u32 {sr(S_KIND)}, {K_DN}
    s_cbranch_scc1 L_epDN
    """)
    ep_chunks(a)
    a("s_branch L_e1done")
    a("L_epV:")
    ep_vt(a)
    a("s_branch L_e1done")
    a("L_epGU:")
    ep_gu(a)
    a("s_branch L_e1done")
    a("L_epDN:")
    ep_down1(a)
    a("L_e1done:")
    if CFG.get('tl'):
        a(f"s_lshr_b32 s5, {sr(S_COFF)}, 12")
        a(f"s_lshl_b32 s5, s5, 4")
        a(f"s_or_b32 s5, s5, {sr(S_KIND)}")
        a(f"s_mov_b32 s68, s5")
        tl_store_nowait(a, "s68")
    a(f"""
    s_cmp_eq_u32 {sr(S_NKIND)}, 0
    s_cbranch_scc1 L_e1drain
    s_mov_b32 {sr(S_PDONE)}, {sr(S_DONE)}
    """)
    promote(a)
    a("L_e1drain:")
    drain_signal(a)
    a("s_branch L_e1start")

def tl_store_nowait(a, tk):
    lab = a.label("Ltw")
    tl_stamp(a, 2)
    a(f"""
    s_and_b32 s4, {sr(S_PCNT)}, 63
    s_mov_b32 s5, m0
    s_mov_b32 m0, s4
    s_nop 0
    v_writelane_b32 v252, {tk}, m0
    v_writelane_b32 v253, s70, m0
    v_writelane_b32 v254, s72, m0
    v_writelane_b32 v255, s74, m0
    s_mov_b32 m0, s5
    s_add_u32 {sr(S_PCNT)}, {sr(S_PCNT)}, 1
    s_mov_b32 s70, s74
    """)

def tl_dump(a):
    if CFG.get('tl'):
        lab = a.label("Ltd")
        a(f"""
        s_cmp_lg_u32 {sr(S_W)}, 0
        s_cbranch_scc1 {lab}
        s_lshl_b32 s4, {sr(S_PID)}, 11
        s_add_u32 s4, s4, {OFF_DBG}
        v_lshlrev_b32 v4, 4, v0
        v_mov_b32 v5, 0x80000000
        v_cmp_lt_u32 vcc, 0, v0
        v_cmp_gt_u32 s[6:7], {sr(S_PCNT)}, v0
        s_and_b64 vcc, vcc, s[6:7]
        s_nop 1
        v_cndmask_b32 v4, v5, v4, vcc
        buffer_store_dword v252, v4, {sr(S_WS,4)}, s4 offen
        buffer_store_dword v253, v4, {sr(S_WS,4)}, s4 offen offset:4
        buffer_store_dword v254, v4, {sr(S_WS,4)}, s4 offen offset:8
        buffer_store_dword v255, v4, {sr(S_WS,4)}, s4 offen offset:12
        s_waitcnt vmcnt(0)
        {lab}:
        """)

def wait_multi(a, sleep=8):
    top = a.label("Lwm"); ok = a.label("Lwmo")
    a(f"""
    s_cmp_lg_u32 {sr(S_W)}, 0
    s_cbranch_scc1 {ok}
    {top}:
    buffer_load_dword {vr(V_PV)}, {vr(V_PA)}, {sr(S_WS,4)}, 0 offen sc1
    s_waitcnt vmcnt(0)
    v_cmp_ge_u32 vcc, {vr(V_PV)}, {vr(V_PT)}
    s_cmp_eq_u64 vcc, -1
    s_cbranch_scc1 {ok}
    s_sleep {sleep}
    s_sub_u32 {sr(S_GBUD)}, {sr(S_GBUD)}, 1
    s_cbranch_scc0 {top}
    s_branch L_abort
    {ok}:
    s_barrier
    """)

def phase2(a):
    mk = CFG.get('wo_masks') or [0x2492492492555555, 0x4924924924aaaaaa, 0x9249249249000000]
    a("L_p2:")
    a(f"""
    v_lshrrev_b32 v4, 4, v0
    v_lshlrev_b32 v4, 9, v4
    v_and_b32 v5, 15, v0
    v_lshlrev_b32 v5, 4, v5
    v_add_u32 {vr(V_OD)}, v4, v5
    """)
    tl_dump(a)
    if CFG.get('nop2'): a("s_branch L_exit")
    a(f"""
    s_cmp_ge_u32 {sr(S_T)}, 8
    s_cbranch_scc1 L_WO
    """)
    wait_word(a, S_DBG, C_RBAR*4, 128)
    a(f"s_lshr_b32 {sr(S_KIND)}, {sr(S_T)}, 1             ; segment")
    a("L_AT:")
    a(f"""
    s_lshr_b32 {sr(S_MT)}, {sr(S_KIND)}, 3
    s_lshl_b32 s5, {sr(S_J)}, 1
    s_and_b32 s4, {sr(S_T)}, 1
    s_add_u32 s4, s4, s5
    s_lshl_b32 s4, s4, 3
    s_and_b32 s6, {sr(S_KIND)}, 7
    s_add_u32 {sr(S_NT)}, s4, s6
    s_lshl_b32 s5, {sr(S_KIND)}, 8
    s_add_u32 {sr(S_DONE)}, s5, {OFF_CNT + CN_AT*256}
    ; keys / values and queries of the tile ; the recurrence has passed the segment (step s+1 reports s+2, the last two segments are watched directly)
    s_lshl_b32 s4, {sr(S_MT)}, 8
    s_add_u32 s5, s4, {OFF_CNT + CN_KV*256}
    v_mov_b32 {vr(V_PA)}, s5
    s_add_u32 s5, s4, {OFF_CNT + CN_Q*256}
    v_writelane_b32 {vr(V_PA)}, s5, 1
    s_mov_b32 s5, {OFF_CNT + CN_PROG*256}
    v_writelane_b32 {vr(V_PA)}, s5, 2
    s_cmp_eq_u32 {sr(S_MT)}, 0
    s_cselect_b32 s5, 128, 32
    v_mov_b32 {vr(V_PT)}, s5
    s_mov_b32 s5, 16
    v_writelane_b32 {vr(V_PT)}, s5, 1
    s_add_u32 s5, {sr(S_KIND)}, 2
    s_min_u32 s5, s5, 63
    v_writelane_b32 {vr(V_PT)}, s5, 2
    """)
    tl_stamp(a, 0)
    wait_multi(a)
    tl_stamp(a, 1)
    att_task(a)
    drain_signal(a)
    if CFG.get('tl'):
        a(f"s_lshl_b32 s68, {sr(S_KIND)}, 4")
        a("s_or_b32 s68, s68, 6")
        tl_store_nowait(a, "s68")
    a(f"""
    s_add_u32 {sr(S_KIND)}, {sr(S_KIND)}, 4
    s_cmp_lt_u32 {sr(S_KIND)}, 64
    s_cbranch_scc1 L_AT
    s_branch L_p2end
    L_WO:
    s_lshl_b32 s4, {sr(S_J)}, 3
    s_and_b32 s5, {sr(S_T)}, 7
    s_add_u32 {sr(S_CB)}, s4, s5
    s_mov_b32 {sr(S_MSK)}, {mk[0] & 0xffffffff:#x}
    s_mov_b32 {sr(S_MSK+1)}, {mk[0] >> 32:#x}
    s_cmp_ge_u32 {sr(S_T)}, 16
    s_cselect_b32 {sr(S_MSK)}, {mk[1] & 0xffffffff:#x}, {sr(S_MSK)}
    s_cselect_b32 {sr(S_MSK+1)}, {mk[1] >> 32:#x}, {sr(S_MSK+1)}
    s_cmp_ge_u32 {sr(S_T)}, 24
    s_cselect_b32 {sr(S_MSK)}, {mk[2] & 0xffffffff:#x}, {sr(S_MSK)}
    s_cselect_b32 {sr(S_MSK+1)}, {mk[2] >> 32:#x}, {sr(S_MSK+1)}
    s_cmp_eq_u64 {sr(S_MSK,2)}, 0
    s_cbranch_scc1 L_p2end
    """)
    tl_stamp(a, 0)
    e3_setup(a)
    if CFG.get('tl'):
        tl_stamp(a, 1)
        a("s_mov_b32 s68, 9")
        tl_store_nowait(a, "s68")
    e3_loop(a)
    a("L_p2end:")
    tl_dump(a)
    a("s_branch L_exit")
```

```python
import sys
from asmlib import *
from layout import *
import gk4 as gk, rk7 as rk

NAME = "recurrent_scan__memory_aug_recurrent_mem_tr__glu_gated_reglu__prompt_kernel"
STUB = open("recurrent_scan__memory_aug_recurrent_mem_tr__glu_gated_reglu__prompt.s.ref").read()

def header(name):
    lines = STUB.split("\n")
    hdr = [l for l in lines if l.startswith(";") and not l.startswith("; @launch")]
    out = []
    for l in lines:
        if l.startswith("; @launch"):
            out.append("; @launch grid=(256,1,1) block=(256,1,1) lds=163840")
            break
        out.append(l)
    out.append(f""".amdgcn_target "amdgcn-amd-amdhsa--gfx950"
.text
.globl {name}
.p2align 8
.type {name},@function
{name}:""")
    return "\n".join(out)

def footer(name):
    return f"""
.section .rodata,"a"
.p2align 6
.amdhsa_kernel {name}
  .amdhsa_next_free_vgpr 512
  .amdhsa_next_free_sgpr 102
  .amdhsa_accum_offset 256
  .amdhsa_group_segment_fixed_size 0
  .amdhsa_kernarg_size 112
  .amdhsa_user_sgpr_count 2
  .amdhsa_user_sgpr_kernarg_segment_ptr 1
  .amdhsa_system_sgpr_workgroup_id_x 1
.end_amdhsa_kernel
"""

S_IDX, S_RANK = 90, 91

def gen(name=NAME, rmask=0xaa, rcfg=None, gcfg=None, noR=False):
    rk.CFG.clear(); rk.CFG.update(dict(local_sc1=False, prof=False, dbg_mem=False, nsteps=64, bar_count=128, kv_flags=True, progress=True, kv0late=1,
                                       earlyb2=1, obar=1, cx4=1, lateshadow=1, pfg2=1, kvahead=1,
                                       delayA=4, delayB=3, ppB=2, delayO=5, delayC=8))
    if rcfg: rk.CFG.update(rcfg)
    if gcfg and gcfg.get('tl'): rk.CFG['tl'] = True
    gk.CFG.clear(); gk.CFG.update(dict(atsleep=2, lnfirst=2, lnw=4))
    if gcfg: gk.CFG.update(gcfg)
    a = Asm()
    S_WS, S_DBG, S_W = gk.S_WS, gk.S_DBG, gk.S_W
    a.lines.append(header(name))
    a(f"""
    s_cmp_ge_u32 s2, 256
    s_cbranch_scc1 L_exit
    s_load_dwordx2 {sr(S_WS,2)}, s[0:1], {KA_WS}
    s_load_dwordx2 {sr(S_DBG,2)}, s[0:1], {KA_DBG}
    s_mov_b32 {sr(S_WS+2)}, {WS_BYTES}
    s_mov_b32 {sr(S_WS+3)}, 0x20000
    s_mov_b32 {sr(S_DBG+2)}, 256
    s_mov_b32 {sr(S_DBG+3)}, 0x20000
    v_lshrrev_b32 v1, 6, v0
    v_and_b32 v0, 63, v0
    s_getreg_b32 s4, hwreg(HW_REG_XCC_ID, 0, 4)
    v_readfirstlane_b32 {sr(S_W)}, v1
    s_and_b32 s4, s4, 7
    s_and_b32 s5, s4, 3
    s_lshr_b32 s6, s4, 2
    s_lshl_b32 s6, s6, 5
    s_add_u32 s5, s5, s6
    s_lshl_b32 s5, s5, 2
    v_mov_b32 v1, s5
    v_mov_b32 v2, 1
    v_mov_b32 v3, {gk.LMB + 8}
    s_cmp_lg_u32 {sr(S_W)}, 0
    s_waitcnt lgkmcnt(0)
    s_cbranch_scc1 L_notk
    v_cmp_eq_u32 vcc, 0, v0
    s_and_saveexec_b64 s[6:7], vcc
    buffer_atomic_add v2, v1, {sr(S_DBG,4)}, 0 offen sc0 sc1
    s_waitcnt vmcnt(0)
    ds_write_b32 v3, v2
    s_mov_b64 exec, s[6:7]
    L_notk:
    s_waitcnt lgkmcnt(0)
    s_barrier
    ds_read_b32 v2, v3
    s_lshl_b32 s6, 1, s4
    s_sub_u32 s6, s6, 1
    s_lshr_b32 s7, {rmask}, s4
    s_and_b32 s7, s7, 1
    s_mov_b32 s5, {rmask}
    s_cmp_eq_u32 s7, 1
    s_cselect_b32 s5, s5, {(~rmask) & 0xff}
    s_and_b32 s6, s6, s5
    s_bcnt1_i32_b32 {sr(S_IDX)}, s6
    s_and_b32 {sr(S_IDX)}, {sr(S_IDX)}, 3
    s_waitcnt lgkmcnt(0)
    v_readfirstlane_b32 s5, v2
    s_cmp_ge_u32 s5, 32
    s_cbranch_scc1 L_exit
    s_lshl_b32 {sr(S_RANK)}, {sr(S_IDX)}, 5
    s_add_u32 {sr(S_RANK)}, {sr(S_RANK)}, s5
    s_lshl_b32 s6, s7, 7
    s_add_u32 {sr(gk.S_PID)}, {sr(S_RANK)}, s6
    s_mov_b32 {sr(gk.S_PCNT)}, 0
    """)
    gk.tl_stamp(a, 0)
    a(f"""
    s_cmp_eq_u32 s7, 0
    s_cbranch_scc1 L_G
    """)
    if noR:
        a("s_branch L_exit")
    else:
        a(f"""
        s_mov_b32 {sr(rk.S_BUD)}, 400000
        s_lshr_b32 {sr(rk.S_G)}, {sr(S_RANK)}, 4
        s_and_b32 {sr(rk.S_M)}, {sr(S_RANK)}, 15
        """)
        rk.emit_R(a, S_DBG, C_RBAR*4)
        a("L_R_abort:")
        a("s_endpgm")
        a("L_R_done:")
        if gk.CFG.get('tl'):
            a(f"""
            v_lshlrev_b32 v4, 2, v0
            s_lshl_b32 s4, {sr(S_RANK)}, 8
            s_add_u32 s4, s4, {OFF_DBG + 512*1024}
            buffer_store_dword v250, v4, {sr(S_WS,4)}, s4 offen
            s_add_u32 s4, s4, 32768
            buffer_store_dword v251, v4, {sr(S_WS,4)}, s4 offen
            v_lshlrev_b32 {vr(gk.V_L4)}, 2, v0
            s_mov_b32 s72, s70
            """)
            gk.tl_store(a, 0xfffe)
        a("s_branch L_exit")
    a("L_G:")
    a(f"s_mov_b32 {sr(gk.S_J)}, {sr(S_IDX)}")
    a(f"s_and_b32 {sr(gk.S_T)}, {sr(S_RANK)}, 31")
    gk.g_setup(a)
    gk.g_start(a, S_RANK)
    gk.g_main(a)
    gk.phase2(a)
    a("""
    L_abort:
    L_exit:
    s_endpgm
    """)
    a.lines.append(footer(name))
    return a.text()

if __name__ == "__main__":
    s = gen()
    open("recurrent_scan__memory_aug_recurrent_mem_tr__glu_gated_reglu__prompt.s", "w").write(s)
    print(len(s), s.count("\n"))
```

```python
from asmlib import *
from layout import *
import struct

def fbits(x):
    return struct.unpack("<I", struct.pack("<f", x))[0]

V_ALD, V_L16, V_AST, V_BST, V_OST, V_OLD, V_CST, V_CLD, V_PW, V_KXD, V_VTD, V_IDX, V_SEL = range(8, 21)
V_SEL2, V_VMX, V_EXP = 21, 22, 23
V_NEG = 24
V_T = 28
V_R1, V_R2, V_R3, V_EXPK, V_EXPV, V_EXPM = 30, 31, 32, 33, 34, 35
V_ID = 36
DT = 40
D2 = 64
CF = 68
V_EXR = 72
V_W = 76
AF = 96
PR = 112
OF = 128
KXF = 160
XF = 192
PA0 = 208
PA1 = 212
ONES = 216
PB = 220
A_WO = 192
S_W = 3
S_WS = 8
S_T = 12
S_G, S_M, S_H, S_STEP, S_BUD = 16, 17, 18, 19, 20
S_A, S_B, S_O, S_C = 21, 22, 23, 24
S_PAR = 26
S_CRE, S_ORE, S_EXP, S_KXD, S_VTD, S_LRD, S_LWR, S_CSC = 28, 29, 30, 31, 32, 33, 34, 35
S_C4 = 36
S_TMP = 37
S_PROF = 40
S_AB, S_BB, S_OB, S_Q, S_KXB, S_VTB = 72, 73, 74, 75, 76, 77
S_ARE, S_BRE = 78, 79
S_ACC = 80
S_MK = [12, 14, 88, 90]
LA, LO, LV, LEXP, LKX = 0, 16384, 24576, 25600, 26624
KXSLOT = 10240
LVP = LKX + 2*KXSLOT
CSLOT = 131072

CFG = dict(local_sc1=False, prof=False, dbg_mem=False, nsteps=64)

def st_local():
    return " sc1" if CFG['local_sc1'] else ""

def stamp(a, i):
    if CFG['prof']:
        a(f"s_memtime {sr(S_PROF + 2*i, 2)}")

def check(a, regs, retry):
    t = V_T
    rr = list(regs)
    if len(rr) >= 3:
        a(f"v_max3_u32 {vr(t)}, {vr(rr[0])}, {vr(rr[1])}, {vr(rr[2])}")
        rr = rr[3:]
    else:
        a(f"v_max_u32 {vr(t)}, {vr(rr[0])}, {vr(rr[1])}")
        rr = rr[2:]
    while len(rr) >= 2:
        a(f"v_max3_u32 {vr(t)}, {vr(t)}, {vr(rr[0])}, {vr(rr[1])}"); rr = rr[2:]
    if rr:
        a(f"v_max_u32 {vr(t)}, {vr(t)}, {vr(rr[0])}")
    a(f"v_cmp_eq_u32 vcc, -1, {vr(t)}")
    a(f"s_cbranch_vccnz {retry}")

def retry_code(a, name, retry, loads, back):
    cnt = ""
    if CFG.get('proto'):
        ci = 68 + "ABOC".index(name)
        cnt = f"s_add_u32 s{ci}, s{ci}, 1"
    rd = CFG.get('rdelay' + name, 0)
    sl = f"s_sleep {rd}\n" if rd else ""
    lds = "\n".join(loads)
    a.cold.append(f"""{retry}:
    {cnt}
    s_sub_u32 {sr(S_BUD)}, {sr(S_BUD)}, 1
    s_cbranch_scc1 L_R_abort
    {sl}{lds}
    s_branch {back}""")

def lane_mask(regs, dst):
    t = V_T
    return [f"v_max3_u32 {vr(t)}, {vr(regs[0])}, {vr(regs[1])}, {vr(regs[2])}",
            f"v_max_u32 {vr(t)}, {vr(t)}, {vr(regs[3])}",
            f"v_cmp_eq_u32 {dst}, -1, {vr(t)}"]

def retry_masked(a, name, retry, loads, regs, back, inflight=False):
    cnt = ""
    if CFG.get('proto'):
        ci = 68 + "ABOC".index(name)
        cnt = f"s_add_u32 s{ci}, s{ci}, 1"
    rd = CFG.get('rdelay' + name, 0)
    out = [f"{retry}:", cnt, f"s_sub_u32 {sr(S_BUD)}, {sr(S_BUD)}, 1", "s_cbranch_scc1 L_R_abort"]
    if rd: out.append(f"s_sleep {rd}")
    dbl = CFG.get('dbl' + name, 0)
    for j, (ld, rg) in enumerate(zip(loads, regs)):
        mk = "vcc" if not dbl else sr(S_MK[j], 2)
        out += lane_mask(rg, mk)
        out += [f"s_mov_b64 exec, {mk}", ld, "s_mov_b64 exec, -1"]
        if j == 0 and inflight and len(loads) > 1: out.append("s_waitcnt vmcnt(1)")
    if dbl:
        lab = a.label("Ldb")
        out.append(f"s_sleep {dbl}" if dbl < 16 else f"s_nop {dbl - 16}")
        for j, (ld, rg) in enumerate(zip(loads, regs)):
            out += [f"s_mov_b64 exec, {sr(S_MK[j], 2)}", ld]
        out.append("s_mov_b64 exec, -1")
        out.append(f"s_waitcnt vmcnt({len(loads)})")
        allr = [r for rg in regs for r in rg]
        chk = Asm(); chk.cold = []
        check(chk, allr, lab)
        out += [x.strip() for x in chk.lines]
        out += [f"s_branch {back}_go", f"{lab}:", "s_waitcnt vmcnt(0)", f"s_branch {back}"]
    else:
        out += ["s_waitcnt vmcnt(0)", f"s_branch {back}"]
    a.cold.append("\n".join(x for x in out if x))

def poll_issue(a, name, loads, mid=None):
    d = CFG.get('delay' + name, 0)
    if d: a(f"s_sleep {d}")
    for ln in loads: a(ln)
    pp = CFG.get('pp' + name, 0)
    if pp:
        for k in range(CFG.get('np' + name, 2) - 1):
            if mid and k == 0:
                mid()
            a(f"s_sleep {pp}")
            for ln in loads: a(ln)

def poll_wait(a, name, loads, regs):
    top = a.label("Lp" + name); retry = a.label("Lr" + name)
    if CFG.get('pp' + name, 0):
        a(f"{top}:")
        a(f"s_waitcnt vmcnt({len(loads) * (CFG.get('np' + name, 2) - 1)})")
        check(a, regs, retry)
        retry_code(a, name, retry, loads, top)
        return
    if name in str(CFG.get('mretry', '')):
        a("s_waitcnt vmcnt(0)")
        a(f"{top}:")
        check(a, regs, retry)
        a(f"{top}_go:")
        retry_masked(a, name, retry, loads, [regs[4*j:4*j+4] for j in range(len(loads))], top)
        return
    a(f"{top}:")
    a("s_waitcnt vmcnt(0)")
    check(a, regs, retry)
    retry_code(a, name, retry, loads, top)

def calib(a, dst):
    lab = a.label("Lcal")
    a(f"""
    s_memrealtime s[88:89]
    s_waitcnt lgkmcnt(0)
    s_mov_b32 s92, 200
    {lab}:
    s_memrealtime s[90:91]
    s_waitcnt lgkmcnt(0)
    s_sub_u32 s92, s92, 1
    s_cbranch_scc1 {lab}_x
    s_cmp_eq_u32 s90, s88
    s_cbranch_scc1 {lab}
    {lab}_x:
    s_memtime s[88:89]
    s_waitcnt lgkmcnt(0)
    s_mov_b32 s{dst}, s90
    s_mov_b32 s{dst+1}, s88
    """)

def halves_sum(a, d, o0, o1):
    a(f"""
    v_permlane32_swap_b32 {vr(d)}, {vr(d+2)}
    v_permlane32_swap_b32 {vr(d+1)}, {vr(d+3)}
    v_add_f32 {vr(o0)}, {vr(d)}, {vr(d+2)}
    v_add_f32 {vr(o1)}, {vr(d+1)}, {vr(d+3)}
    """)

def pack_pairs(a, o0, o1, out, tmp):
    a(f"""
    v_cvt_pk_bf16_f32 {vr(out)}, {vr(o0)}, {vr(o1)}
    s_nop 1
    v_mov_b32_dpp {vr(tmp)}, {vr(out)} quad_perm:[1,0,3,2] row_mask:0xf bank_mask:0xf
    v_perm_b32 {vr(out)}, {vr(out)}, {vr(tmp)}, {vr(V_SEL)}
    """)

def oob_hi(dst, src, n=32):
    return f"""v_mov_b32 v5, 0x80000000
    v_cmp_gt_u32 vcc, {n}, v0
    s_nop 1
    v_cndmask_b32 {vr(dst)}, v5, {vr(src)}, vcc"""

def setup(a):
    a(f"""
    s_lshr_b32 s4, {sr(S_M)}, 2
    s_lshl_b32 {sr(S_H)}, {sr(S_G)}, 2
    s_add_u32 {sr(S_H)}, {sr(S_H)}, s4          ; head
    s_and_b32 {sr(S_C4)}, {sr(S_M)}, 3
    s_and_b32 {sr(S_Q)}, {sr(S_G)}, 1
    v_and_b32 v1, 15, v0                        ; n / j
    v_lshrrev_b32 v2, 4, v0                     ; g
    v_lshlrev_b32 {vr(V_L16)}, 4, v0
    s_lshl_b32 s4, {sr(S_W)}, 12
    v_add_u32 {vr(V_ALD)}, s4, {vr(V_L16)}
    s_lshl_b32 s4, {sr(S_W)}, 11
    v_add_u32 {vr(V_OLD)}, s4, {vr(V_L16)}
    s_lshl_b32 s4, {sr(S_W)}, 10
    v_add_u32 {vr(V_PW)}, s4, {vr(V_L16)}
    v_lshlrev_b32 v3, 2, v2
    v_and_b32 v4, 1, v1
    v_lshlrev_b32 v4, 1, v4
    v_add_u32 v3, v3, v4
    v_lshrrev_b32 v4, 3, v1
    v_add_u32 v6, v3, v4
    v_lshlrev_b32 v4, 4, v6
    v_bfe_u32 v5, v1, 1, 2
    v_lshlrev_b32 v5, 2, v5
    v_add_u32 v4, v4, v5
    s_lshl_b32 s4, {sr(S_M)}, 10
    s_lshl_b32 s5, {sr(S_Q)}, 9
    s_add_u32 s4, s4, s5
    s_lshl_b32 s5, {sr(S_W)}, 7
    s_add_u32 s4, s4, s5
    v_add_u32 v4, s4, v4
    {oob_hi(V_AST, 4)}
    v_and_b32 v3, 1, v2
    v_lshlrev_b32 v3, 2, v3
    v_lshrrev_b32 v4, 1, v2
    v_lshlrev_b32 v4, 1, v4
    v_add_u32 v3, v3, v4
    v_and_b32 v4, 1, v1
    v_add_u32 v3, v3, v4                        ; row
    v_lshrrev_b32 v4, 2, v1
    v_lshlrev_b32 v4, 8, v4
    v_lshlrev_b32 v5, 4, v3
    v_add_u32 v4, v4, v5
    v_bfe_u32 v5, v1, 1, 1
    v_lshlrev_b32 v5, 2, v5
    v_add_u32 v4, v4, v5                        ; (n>>2)*256 + row*16 + ((n>>1)&1)*4
    s_lshl_b32 s4, {sr(S_C4)}, 10
    s_lshr_b32 s5, {sr(S_W)}, 1
    s_xor_b32 s5, s5, 1
    s_lshl_b32 s5, s5, 7
    s_add_u32 s4, s4, s5
    s_and_b32 s5, {sr(S_W)}, 1
    s_lshl_b32 s5, s5, 3
    s_add_u32 s4, s4, s5
    v_add_u32 {vr(V_BST)}, s4, v4
    v_lshrrev_b32 v4, 2, v1
    v_lshlrev_b32 v4, 7, v4
    v_lshlrev_b32 v5, 4, v3
    v_add_u32 v4, v4, v5
    v_bfe_u32 v5, v1, 1, 1
    v_lshlrev_b32 v5, 2, v5
    v_add_u32 v4, v4, v5
    s_and_b32 s5, {sr(S_W)}, 1
    s_lshl_b32 s4, s5, 3
    v_add_u32 v4, s4, v4
    v_lshlrev_b32 v5, 2, v0
    s_lshl_b32 s4, s5, 8
    v_add_u32 v5, s4, v5
    v_add_u32 {vr(V_EXPK)}, {LEXP}, v4
    v_add_u32 {vr(V_EXPV)}, {LEXP + 512}, v5
    s_lshl_b32 s4, {sr(S_H)}, 12
    s_lshl_b32 s5, {sr(S_C4)}, 10
    s_add_u32 s4, s4, s5
    s_add_u32 s4, s4, {OFF_KM}
    v_add_u32 {vr(V_EXPM)}, s4, {vr(V_L16)}
    v_mov_b32 {vr(V_NEG)}, -1
    v_mov_b32 {vr(V_NEG+1)}, -1
    v_mov_b32 {vr(V_NEG+2)}, -1
    v_mov_b32 {vr(V_NEG+3)}, -1
    s_lshl_b32 s4, {sr(S_M)}, 10
    s_lshl_b32 s5, {sr(S_Q)}, 9
    s_add_u32 s4, s4, s5
    v_add_u32 v4, s4, {vr(V_L16)}
    {oob_hi(7, 4)}
    v_lshrrev_b32 v4, 3, v0
    v_lshlrev_b32 v4, 10, v4
    v_and_b32 v5, 7, v0
    v_lshlrev_b32 v5, 4, v5
    v_add_u32 v4, v4, v5
    s_lshl_b32 s4, {sr(S_M)}, 13
    s_lshl_b32 s5, {sr(S_G)}, 7
    s_add_u32 s4, s4, s5
    v_add_u32 v4, s4, v4
    s_cmp_eq_u32 {sr(S_W)}, 0
    s_cselect_b64 vcc, -1, 0
    v_cndmask_b32 {vr(V_R1)}, v4, v7, vcc
    s_lshl_b32 s4, {sr(S_C4)}, 10
    v_add_u32 {vr(V_R2)}, s4, {vr(V_L16)}
    s_lshr_b32 s4, {sr(S_M)}, 2
    s_lshl_b32 s4, s4, 1
    s_lshr_b32 s5, {sr(S_C4)}, 1
    s_add_u32 s4, s4, s5
    s_lshl_b32 s4, s4, 10
    s_and_b32 s5, {sr(S_C4)}, 1
    s_lshl_b32 s5, s5, 7
    s_add_u32 s4, s4, s5
    v_lshrrev_b32 v4, 3, v0
    v_lshlrev_b32 v4, 8, v4
    v_and_b32 v5, 7, v0
    v_lshlrev_b32 v5, 4, v5
    v_add_u32 v4, v4, v5
    v_add_u32 v4, s4, v4
    {oob_hi(V_R3, 4)}
    s_lshr_b32 s4, {sr(S_M)}, 2
    s_lshl_b32 s4, s4, 1
    s_lshr_b32 s5, {sr(S_C4)}, 1
    s_add_u32 s4, s4, s5
    s_lshl_b32 s4, s4, 10
    s_and_b32 s5, {sr(S_C4)}, 1
    s_lshl_b32 s5, s5, 7
    s_add_u32 s4, s4, s5
    s_and_b32 s5, {sr(S_W)}, 1
    s_lshl_b32 s5, s5, 3
    s_add_u32 s4, s4, s5
    v_lshlrev_b32 v4, 8, v2
    v_lshlrev_b32 v5, 4, v1
    v_add_u32 v4, v4, v5
    v_add_u32 v4, s4, v4
    v_mov_b32 v5, 0x80000000
    v_cmp_gt_u32 vcc, 8, v1
    s_nop 1
    v_cndmask_b32 {vr(V_OST)}, v5, v4, vcc
    v_lshrrev_b32 v4, 3, v1
    v_lshlrev_b32 v4, 10, v4
    v_and_b32 v5, 7, v1
    v_lshlrev_b32 v5, 4, v5
    v_add_u32 v4, v4, v5
    v_lshlrev_b32 v5, 3, v2
    v_add_u32 v4, v4, v5
    s_lshl_b32 s4, {sr(S_M)}, 13
    s_lshl_b32 s5, {sr(S_W)}, 11
    s_add_u32 s4, s4, s5
    s_lshl_b32 s5, {sr(S_G)}, 7
    s_add_u32 s4, s4, s5
    v_add_u32 v4, s4, v4
    {oob_hi(V_CST, 4, 16 if CFG.get('cx4') else 32)}
    s_lshl_b32 s4, {sr(S_M)}, 13
    s_lshl_b32 s5, {sr(S_Q)}, 12
    s_add_u32 s4, s4, s5
    s_lshl_b32 s5, {sr(S_W)}, 10
    s_add_u32 s4, s4, s5
    v_add_u32 {vr(V_CLD)}, s4, {vr(V_L16)}
    v_lshlrev_b32 v4, 12, v2
    v_lshlrev_b32 v5, 4, v1
    v_add_u32 {vr(V_KXD)}, v4, v5
    v_lshlrev_b32 v4, 16, v2
    v_add_u32 {vr(V_VTD)}, v4, v5
    v_mov_b32 v4, 0x44444444
    v_mov_b32 v5, 0xeeeeeeee
    v_cmp_gt_u32 vcc, 8, v1
    s_nop 1
    v_cndmask_b32 {vr(V_IDX)}, v5, v4, vcc
    v_and_b32 v4, 1, v1
    v_cmp_eq_u32 vcc, 0, v4
    v_mov_b32 v4, 0x01000504
    v_mov_b32 v5, 0x07060302
    v_cndmask_b32 {vr(V_SEL)}, v5, v4, vcc
    v_mov_b32 v4, 0x01000504
    v_mov_b32 v5, 0x05040100
    v_cndmask_b32 v4, v5, v4, vcc
    v_lshrrev_b32 v5, 3, v1
    v_mul_u32_u24 v5, 0x020202, v5
    v_lshrrev_b32 v7, 3, v1
    v_lshlrev_b32 v7, 25, v7
    v_add_u32 v5, v5, v7
    v_add_u32 {vr(V_SEL2)}, v4, v5
    s_mov_b32 {sr(S_PAR)}, 0xaaaaaaaa
    s_mov_b32 {sr(S_PAR+1)}, 0xaaaaaaaa
    """)
    for r in range(4):
        a(f"""
        v_mov_b32 v4, 0
        v_mov_b32 v5, 0x3f80
        v_cmp_eq_u32 vcc, {2*r}, v1
        s_nop 1
        v_cndmask_b32 v4, v4, v5, vcc
        v_mov_b32 v5, 0x3f800000
        v_cmp_eq_u32 vcc, {2*r+1}, v1
        s_nop 1
        v_cndmask_b32 {vr(V_ID+r)}, v4, v5, vcc
        """)
    a(f"""
    v_lshlrev_b32 v4, 3, v0
    s_and_b32 s5, {sr(S_W)}, 1
    s_lshl_b32 s5, s5, 9
    s_add_u32 s5, s5, {LV}
    v_add_u32 {vr(V_VMX)}, s5, v4
    s_mov_b32 {sr(S_CSC)}, {fbits(128**-0.5 * 1.4426950408889634)}
    s_lshr_b32 s4, {sr(S_G)}, 1
    s_lshl_b32 s4, s4, 16
    s_add_u32 {sr(S_AB)}, s4, {OFF_RA}
    s_lshl_b32 s4, {sr(S_H)}, 14
    s_add_u32 {sr(S_BB)}, s4, {OFF_RB}
    s_lshl_b32 s4, {sr(S_G)}, 15
    s_add_u32 {sr(S_OB)}, s4, {OFF_RO}
    s_lshl_b32 s4, {sr(S_H)}, 16
    s_lshl_b32 s5, {sr(S_W)}, 14
    s_add_u32 s4, s4, s5
    s_add_u32 {sr(S_KXB)}, s4, {OFF_KX}
    s_lshl_b32 s4, {sr(S_H)}, 11
    s_lshl_b32 s5, {sr(S_C4)}, 9
    s_add_u32 s4, s4, s5
    s_lshl_b32 s5, {sr(S_W)}, 8
    s_add_u32 s4, s4, s5
    s_add_u32 {sr(S_VTB)}, s4, {OFF_VT}
    """)

def arm_and_mem0(a):
    a(f"""
    s_load_dwordx2 {sr(S_T,2)}, s[0:1], {KA_MEM0}
    s_mov_b32 {sr(S_T+2)}, 16384
    s_mov_b32 {sr(S_T+3)}, 0x20000
    v_lshlrev_b32 v4, 11, v6
    v_and_b32 v5, 6, v1
    v_lshlrev_b32 v5, 1, v5
    v_add_u32 v4, v4, v5
    {oob_hi(4, 4)}
    s_lshl_b32 s4, {sr(S_M)}, 7
    s_lshl_b32 s5, {sr(S_Q)}, 6
    s_add_u32 s4, s4, s5
    s_lshl_b32 s5, {sr(S_W)}, 4
    s_add_u32 s4, s4, s5
    s_waitcnt lgkmcnt(0)
    buffer_load_dword v6, v4, {sr(S_T,4)}, s4 offen
    s_mov_b32 s4, {sr(S_AB)}
    s_waitcnt vmcnt(0)
    buffer_store_dword v6, {vr(V_AST)}, {sr(S_WS,4)}, s4 offen{st_local()}
    """)
    for sl in range(1, 4):
        a(f"""
        s_add_u32 s4, s4, 16384
        buffer_store_dword {vr(V_NEG)}, {vr(V_AST)}, {sr(S_WS,4)}, s4 offen{st_local()}
        """)
    a(f"""
    s_mov_b32 s4, {sr(S_BB)}
    s_mov_b32 s5, {sr(S_OB)}
    s_mov_b32 s6, {OFF_RC}
    """)
    for sl in range(4):
        a(f"""
        buffer_store_dword {vr(V_NEG)}, {vr(V_BST)}, {sr(S_WS,4)}, s4 offen{st_local()}
        buffer_store_dwordx{4 if CFG.get('cx4') else 2} {vr(V_NEG,4 if CFG.get('cx4') else 2)}, {vr(V_CST)}, {sr(S_WS,4)}, s6 offen sc1
        s_add_u32 s4, s4, 4096
        s_add_u32 s6, s6, {CSLOT}
        """)
    if CFG.get('arm_export', True):
        a(f"s_lshl_b32 s4, {sr(S_W)}, 21")
        for k in range(16):
            a(f"buffer_store_dwordx4 {vr(V_NEG,4)}, {vr(V_EXPM)}, {sr(S_WS,4)}, s4 offen sc1")
            a(f"s_add_u32 s4, s4, 131072")
    lab = a.label("Lnoo")
    a(f"""
    s_cmp_lt_u32 {sr(S_W)}, 2
    s_cbranch_scc1 {lab}
    """)
    for sl in range(4):
        a(f"""
        buffer_store_dwordx2 {vr(V_NEG,2)}, {vr(V_OST)}, {sr(S_WS,4)}, s5 offen{st_local()}
        s_add_u32 s5, s5, 8192
        """)
    a(f"{lab}:")

def load_srd(a, ka, nbytes):
    a(f"""
    s_load_dwordx2 {sr(S_T,2)}, s[0:1], {ka}
    s_mov_b32 {sr(S_T+2)}, {nbytes}
    s_mov_b32 {sr(S_T+3)}, 0x20000
    s_waitcnt lgkmcnt(0)
    """)

def load_weights(a):
    VQ, VO, VT0, VT1, VWO = 76, 77, 78, 79, 80
    a(f"""
    v_lshrrev_b32 v4, 2, v0
    v_lshlrev_b32 v4, 13, v4
    v_and_b32 v5, 3, v0
    v_lshlrev_b32 v5, 4, v5
    v_add_u32 v{VQ}, v4, v5
    v_lshrrev_b32 v4, 3, v0
    v_lshlrev_b32 v4, 11, v4
    v_and_b32 v5, 7, v0
    v_lshlrev_b32 v5, 4, v5
    v_add_u32 v{VO}, v4, v5
    s_lshl_b32 s4, {sr(S_H)}, 8
    s_lshl_b32 s5, {sr(S_C4)}, 6
    s_add_u32 {sr(S_TMP)}, s4, s5
    s_lshl_b32 s4, {sr(S_W)}, 21
    s_add_u32 {sr(S_TMP)}, {sr(S_TMP)}, s4  ; + 256w rows * 8192
    v_lshrrev_b32 v4, 5, v0                 ; gb>>1
    v_lshlrev_b32 v4, 4, v4
    v_bfe_u32 v5, v0, 4, 1                  ; gb&1
    v_lshlrev_b32 v6, 2, v5
    v_add_u32 v4, v4, v6
    v_bfe_u32 v6, v0, 3, 1                  ; r>>1
    v_lshlrev_b32 v7, 3, v6
    v_add_u32 v4, v4, v7
    v_bfe_u32 v7, v0, 2, 1                  ; r&1
    v_add_u32 v4, v4, v7
    v_lshlrev_b32 v4, 6, v4
    v_and_b32 v7, 3, v0
    v_lshlrev_b32 v7, 3, v7                 ; c4*8
    v_add_u32 v4, v4, v7
    s_lshl_b32 s4, {sr(S_W)}, 14
    v_add_u32 v{VT0}, s4, v4
    s_add_u32 s4, s4, 65536
    v_add_u32 v{VT1}, s4, v4
    v_lshlrev_b32 v4, 5, v6
    v_lshlrev_b32 v5, 4, v5
    v_add_u32 v4, v4, v5
    v_lshrrev_b32 v5, 5, v0
    v_lshlrev_b32 v5, 2, v5
    v_add_u32 v4, v4, v5
    v_bfe_u32 v5, v0, 2, 1
    v_add_u32 v4, v4, v5
    v_lshlrev_b32 v4, 7, v4
    v_add_u32 v4, v4, v7
    s_lshl_b32 s4, {sr(S_W)}, 5
    s_add_u32 s4, s4, 65536
    v_add_u32 v{VWO}, s4, v4
    """)
    def dma_qkv(ka, ldsbase):
        load_srd(a, ka, 8*MB)
        a(f"""
        s_mov_b32 s4, {sr(S_TMP)}
        s_lshl_b32 s5, {sr(S_W)}, 14
        s_add_u32 s5, s5, {ldsbase}
        """)
        for i in range(16):
            a(f"""
            s_mov_b32 m0, s5
            s_add_u32 s5, s5, 1024
            buffer_load_dwordx4 v{VQ}, {sr(S_T,4)}, s4 offen lds
            s_add_u32 s4, s4, 131072
            """)
    def tr_tiles(vaddr, tile0):
        n = 0
        for t in range(2):
            for i in range(4):
                for hb in range(2):
                    for pr in range(2):
                        a(f"ds_read_b64_tr_b16 {ar(((tile0+t)*4 + i)*8 + 4*hb + 2*pr, 2)}, v{vaddr} offset:{i*4096 + hb*2048 + pr*128 + t*32}")
                        n += 1
                        if n % 8 == 0: a("s_waitcnt lgkmcnt(4)")
        a("s_waitcnt lgkmcnt(0)")
    dma_qkv(KA_WQ, 0)
    dma_qkv(KA_WK, 65536)
    a("s_waitcnt vmcnt(16)")
    tr_tiles(VT0, 2)
    dma_qkv(KA_WV, 0)
    a("s_waitcnt vmcnt(16)")
    tr_tiles(VT1, 0)
    load_srd(a, KA_WO, 8*MB)
    a(f"""
    s_lshl_b32 s4, {sr(S_G)}, 9
    s_lshl_b32 s5, {sr(S_W)}, 7
    s_add_u32 s4, s4, s5
    s_lshl_b32 s4, s4, 11                   ; row*2048
    s_lshl_b32 s5, {sr(S_M)}, 7
    s_add_u32 s4, s4, s5
    s_lshl_b32 s5, {sr(S_W)}, 14
    s_add_u32 s5, s5, 65536
    """)
    for i in range(16):
        a(f"""
        s_mov_b32 m0, s5
        s_add_u32 s5, s5, 1024
        buffer_load_dwordx4 v{VO}, {sr(S_T,4)}, s4 offen lds
        s_add_u32 s4, s4, 16384
        """)
    a("s_waitcnt vmcnt(16)")
    tr_tiles(VT0, 4)
    a("""
    s_waitcnt vmcnt(0)
    s_barrier
    """)
    for ks in range(8):
        for hb in range(2):
            for pr in range(2):
                a(f"ds_read_b64_tr_b16 {ar(A_WO + 8*ks + 4*hb + 2*pr, 2)}, v{VWO} offset:{ks*8192 + hb*1024 + pr*256}")
        if ks % 2 == 1: a("s_waitcnt lgkmcnt(4)")
    a("""
    s_waitcnt lgkmcnt(0)
    s_barrier
    """)

def seg_offsets_l(seg):
    return [x.strip() for x in f"""s_lshr_b32 s4, {sr(seg)}, 3
    s_lshl_b32 s4, s4, 21
    s_and_b32 s5, {sr(seg)}, 7
    s_lshl_b32 s5, s5, 9
    s_add_u32 s4, s4, s5
    s_add_u32 {sr(S_KXD)}, s4, {sr(S_KXB)}
    s_lshl_b32 s4, {sr(seg)}, 18
    s_add_u32 {sr(S_VTD)}, s4, {sr(S_VTB)}
    s_and_b32 s4, {sr(seg)}, 1
    s_mul_i32 s4, s4, {KXSLOT}
    s_add_u32 {sr(S_LWR)}, s4, {LKX}""".split("\n")]

def prefetch_l(vwave, part=0):
    if CFG.get('nopf'): return []
    if CFG.get('pf01') and not vwave: return []
    if part == 1:
        if not CFG.get('pf01'): return []
        return [[f"s_lshl_b32 s6, {sr(S_W)}, 10", f"s_add_u32 s6, s6, {sr(S_LWR)}", f"s_add_u32 s6, s6, 2048", f"s_add_u32 s7, {sr(S_KXD)}, 32768"],
           ["s_mov_b32 m0, s6", f"s_add_u32 s6, s6, {4096 - 256}",
            f"buffer_load_dwordx4 {vr(V_KXD)}, {sr(S_WS,4)}, s7 offen sc1 lds"],
           ["s_mov_b32 m0, s6", "s_nop 0",
            f"buffer_load_dwordx4 {vr(V_KXD)}, {sr(S_WS,4)}, s7 offen offset:256 sc1 lds"]]
    out = [[f"s_lshl_b32 s6, {sr(S_W)}, 10", f"s_add_u32 s6, s6, {sr(S_LWR)}"],
           ["s_mov_b32 m0, s6", f"s_add_u32 s6, s6, {4096 - 256}",
            f"buffer_load_dwordx4 {vr(V_KXD)}, {sr(S_WS,4)}, {sr(S_KXD)} offen sc1 lds"],
           ["s_mov_b32 m0, s6", f"s_add_u32 s6, s6, {4096 + 256}",
            f"buffer_load_dwordx4 {vr(V_KXD)}, {sr(S_WS,4)}, {sr(S_KXD)} offen offset:256 sc1 lds"]]
    if vwave:
        out.append(["s_mov_b32 m0, s6", "s_nop 0",
                    f"buffer_load_dwordx4 {vr(V_VTD)}, {sr(S_WS,4)}, {sr(S_VTD)} offen sc1 lds"])
    return out

def flat(groups):
    out = []
    for g in groups:
        if isinstance(g, str): out.append(g)
        else: out.extend(g)
    return out

def front_offsets_l():
    return [x.strip() for x in f"""s_and_b32 s4, {sr(S_STEP)}, 3
    s_lshl_b32 s5, s4, 17
    s_add_u32 {sr(S_C)}, s5, {OFF_RC}
    s_add_u32 s5, s4, 2
    s_and_b32 s5, s5, 3
    s_lshl_b32 s5, s5, 17
    s_add_u32 {sr(S_CRE)}, s5, {OFF_RC}
    s_add_u32 s4, s4, 3
    s_and_b32 s4, s4, 3
    s_lshl_b32 s5, s4, 14
    s_add_u32 {sr(S_ARE)}, s5, {sr(S_AB)}
    s_lshl_b32 s5, s4, 12
    s_add_u32 {sr(S_BRE)}, s5, {sr(S_BB)}
    s_lshl_b32 s5, s4, 13
    s_add_u32 {sr(S_ORE)}, s5, {sr(S_OB)}
    s_lshl_b32 {sr(S_EXP)}, {sr(S_STEP)}, 17""".split("\n")]

def next_offsets_l():
    return [x.strip() for x in f"""s_add_u32 {sr(S_STEP)}, {sr(S_STEP)}, 1
    s_and_b32 s4, {sr(S_STEP)}, 3
    s_lshl_b32 s5, s4, 14
    s_add_u32 {sr(S_A)}, s5, {sr(S_AB)}
    s_lshl_b32 s5, s4, 12
    s_add_u32 {sr(S_B)}, s5, {sr(S_BB)}
    s_lshl_b32 s5, s4, 13
    s_add_u32 {sr(S_O)}, s5, {sr(S_OB)}
    s_and_b32 s4, {sr(S_STEP)}, 1
    s_mul_i32 s4, s4, {KXSLOT}
    s_add_u32 {sr(S_LRD)}, s4, {LKX}
    s_add_u32 {sr(S_TMP)}, {sr(S_STEP)}, 1
    s_min_u32 {sr(S_TMP)}, {sr(S_TMP)}, 63""".split("\n")] + seg_offsets_l(S_TMP)

def smf(d, af, b_reg):
    return f"v_smfmac_f32_16x16x64_bf16 {vr(d,4)}, {vr(af,4)}, {b_reg}, {vr(V_IDX)}"

def tile_smf(tile, i):
    return smf(DT + 4*tile, AF + 4*i, ar((tile*4 + i)*8, 8))

def sum4(a, base):
    a(f"""
    v_pk_add_f32 {vr(base,2)}, {vr(base,2)}, {vr(base+4,2)}
    v_pk_add_f32 {vr(base+2,2)}, {vr(base+2,2)}, {vr(base+6,2)}
    v_pk_add_f32 {vr(base+8,2)}, {vr(base+8,2)}, {vr(base+12,2)}
    v_pk_add_f32 {vr(base+10,2)}, {vr(base+10,2)}, {vr(base+14,2)}
    v_pk_add_f32 {vr(base,2)}, {vr(base,2)}, {vr(base+8,2)}
    v_pk_add_f32 {vr(base+2,2)}, {vr(base+2,2)}, {vr(base+10,2)}
    s_nop 1
    """)

def gemm1(a, w, last=False):
    loads = [f"buffer_load_dwordx4 {vr(AF + 4*i, 4)}, {vr(V_ALD)}, {sr(S_WS,4)}, {sr(S_A)} offen offset:{i*1024} sc1" for i in range(4)]
    poll_issue(a, "A", loads)
    for r in range(24): a(f"v_mov_b32 {vr(DT+r)}, 0")
    for ln in front_offsets_l(): a(ln)
    if CFG['prof']:
        a("s_waitcnt lgkmcnt(0)")
        for i in range(1, 8):
            a(f"s_sub_u32 s4, {sr(S_PROF + 2*i)}, {sr(S_PROF)}")
            a(f"s_add_u32 {sr(S_ACC + i)}, {sr(S_ACC + i)}, s4")
        if CFG.get('trace'):
            a(f"s_mov_b32 m0, {sr(S_STEP)}")
            a("s_nop 0")
            for i in range(8):
                a(f"v_writelane_b32 v{232+i}, {sr(S_PROF + 2*i)}, m0")
            a("v_writelane_b32 v240, s88, m0")
    for i in range(4):
        top = a.label("LpA"); retry = a.label("LrA")
        a(f"s_waitcnt vmcnt({3-i})")
        a(f"{top}:")
        check(a, [AF + 4*i + r for r in range(4)], retry)
        back = a.label("LbA")
        if "A" in str(CFG.get('mretry', '')):
            a(f"{top}_go:")
            retry_masked(a, "A", retry, loads[i:], [[AF + 4*k + r for r in range(4)] for k in range(i, 4)], top, inflight=True)
        else:
            retry_code(a, "A", retry, loads[i:] + [f"s_waitcnt vmcnt({3-i})"], top)
        if i == 3:
            stamp(a, 0)
            if CFG['prof'] and CFG.get('trace'): a("s_memrealtime s[88:89]")
        for tile in range(4): a(tile_smf(tile, i))
    vs = [tile_smf(4 + t, i) for i in range(4) for t in range(2)]
    a(vs[0]); a(vs[1])
    for tile in range(4):
        a(f"ds_write_b128 {vr(V_PW)}, {vr(DT + 4*tile, 4)} offset:{LA + tile*4096}")
        a(vs[2 + tile])
    a(vs[6]); a(vs[7])
    a("s_waitcnt lgkmcnt(0)")
    a("s_barrier")
    for src in range(4):
        a(f"ds_read_b128 {vr(PR + 4*src, 4)}, {vr(V_ALD)} offset:{LA + src*1024}")
    for t in range(2):
        a(f"ds_write_b128 {vr(V_PW)}, {vr(DT + 16 + 4*t, 4)} offset:{LVP + t*4096}")
    if not last and not CFG.get('pfafter') and not CFG.get('pflate') and not CFG.get('pfg2'):
        for ln in flat(prefetch_l(w < 2)): a(ln)
    a("s_waitcnt lgkmcnt(2)")
    sum4(a, PR)
    halves_sum(a, PR, V_W, V_W+1)
    pack_pairs(a, V_W, V_W+1, V_W+2, V_W+3)
    if not last:
        a(f"buffer_store_dword {vr(V_W+2)}, {vr(V_BST)}, {sr(S_WS,4)}, {sr(S_B)} offen{st_local()}")
        stamp(a, 1)
        if CFG.get('pfafter'):
            for ln in flat(prefetch_l(w < 2)): a(ln)
        if not CFG.get('pflate'):
            for ln in flat(prefetch_l(w < 2, 1)): a(ln)
    else:
        stamp(a, 1)

def v_reduce(a):
    for src in range(4):
        a(f"ds_read_b128 {vr(PR + 4*src, 4)}, {vr(V_ALD)} offset:{LVP + src*1024}")
    a(f"ds_write_b32 {vr(V_EXPK)}, {vr(V_W+2)}")
    a("s_waitcnt lgkmcnt(1)")
    sum4(a, PR)
    halves_sum(a, PR, V_W+4, V_W+5)
    a(f"""
    v_cvt_pk_bf16_f32 {vr(V_W+6)}, {vr(V_W+4)}, 0
    v_cvt_pk_bf16_f32 {vr(V_W+7)}, {vr(V_W+5)}, 0
    v_cvt_pk_bf16_f32 {vr(V_EXP)}, {vr(V_W+4)}, {vr(V_W+5)}
    ds_write_b64 {vr(V_VMX)}, {vr(V_W+6,2)}
    ds_write_b32 {vr(V_EXPV)}, {vr(V_EXP)}
    """)

def export_read(a):
    a(f"ds_read_b128 {vr(V_EXR,4)}, {vr(V_L16)} offset:{LEXP}")

def export_store(a):
    a(f"buffer_store_dwordx4 {vr(V_EXR,4)}, {vr(V_EXPM)}, {sr(S_WS,4)}, {sr(S_EXP)} offen sc1")

def shadow(a, w):
    if w == 0:
        a(f"buffer_store_dwordx4 {vr(V_NEG,4)}, {vr(V_R1)}, {sr(S_WS,4)}, {sr(S_ARE)} offen{st_local()}")
        a(f"buffer_store_dwordx4 {vr(V_NEG,4)}, {vr(V_R2)}, {sr(S_WS,4)}, {sr(S_BRE)} offen{st_local()}")
        a(f"buffer_store_dwordx4 {vr(V_NEG,4)}, {vr(V_R3)}, {sr(S_WS,4)}, {sr(S_ORE)} offen{st_local()}")
    if w == 1 and CFG.get('progress'):
        lab = a.label("Lprg")
        a(f"""
        s_or_b32 s4, {sr(S_G)}, {sr(S_M)}
        s_cmp_lg_u32 s4, 0
        s_cbranch_scc1 {lab}
        s_add_u32 s4, {sr(S_STEP)}, 1
        v_mov_b32 {vr(V_T)}, {OFF_CNT + CN_PROG*256}
        v_mov_b32 {vr(V_T+1)}, s4
        s_mov_b64 exec, 1
        buffer_store_dword {vr(V_T+1)}, {vr(V_T)}, {sr(S_WS,4)}, 0 offen sc1
        s_mov_b64 exec, -1
        {lab}:
        """)

def kv_check(a, dbg_srd):
    if not CFG.get('kv_flags'): return
    lab = a.label("Lkv")
    a(f"""
    s_add_u32 s4, {sr(S_STEP)}, {CFG.get('kvahead', 2)}
    s_mov_b32 s6, 128
    s_cmp_eq_u32 s4, 4
    s_cselect_b32 s4, 64, s4
    s_cselect_b32 s7, 0, 1
    s_and_b32 s5, s4, 7
    s_cmp_lg_u32 s5, 0
    s_cbranch_scc1 {lab}_ok
    s_lshr_b32 s4, s4, 3
    s_mul_i32 s4, s4, s7
    s_cmp_eq_u32 s7, 1
    s_cselect_b32 s6, 32, s6
    s_cmp_ge_u32 s4, 8
    s_cbranch_scc1 {lab}_ok
    s_add_u32 s4, s4, {CN_KV}
    s_lshl_b32 s4, s4, 8
    s_add_u32 s4, s4, {OFF_CNT}
    s_branch {lab}_cold
    {lab}_ok:
    """)
    a.cold.append(f"""{lab}_cold:
    v_mov_b32 v4, s4
    {lab}_l:
    buffer_load_dword v5, v4, {sr(S_WS,4)}, 0 offen sc1
    s_waitcnt vmcnt(0)
    v_cmp_le_u32 vcc, s6, v5
    s_cbranch_vccnz {lab}_ok
    s_sleep 4
    s_sub_u32 {sr(S_BUD)}, {sr(S_BUD)}, 1
    s_cbranch_scc0 {lab}_l
    s_branch L_R_abort""")

def after_c_store(a, w):
    if w == 0:
        export_store(a)
    if w == 1:
        a(f"buffer_store_dwordx4 {vr(V_NEG,4)}, {vr(V_R1)}, {sr(S_WS,4)}, {sr(S_CRE)} offen sc1")

def kv0_hook(a, w):
    if not CFG.get('kv0late'): return
    hook = a.label("Lk0h"); back = a.label("Lk0b")
    a(f"s_cmp_eq_u32 {sr(S_STEP)}, 0")
    a(f"s_cbranch_scc1 {hook}")
    a(f"{back}:")
    c = Asm(); c.n = 0
    pre = a.label("K0")
    c.label = lambda p: a.label(p)
    c(f"{hook}:")
    wait_barrier(c, S_WS, OFF_CNT + CN_KV0A*256, 128, CFG.get('kv0sleep', 2))
    for ln in seg_offsets_l(S_STEP): c(ln)
    for ln in flat(prefetch_l(w < 2)): c(ln)
    c(f"s_mov_b32 {sr(S_TMP)}, 1")
    for ln in seg_offsets_l(S_TMP): c(ln)
    c("s_waitcnt vmcnt(0)")
    c("s_barrier")
    c(f"s_branch {back}")
    a.cold.append("\n".join(c.lines))

def attention(a, w):
    t = w & 1
    loads = [f"buffer_load_dwordx4 {vr(XF + 4*c, 4)}, {vr(V_L16)}, {sr(S_WS,4)}, {sr(S_B)} offen offset:{c*1024} sc1" for c in range(4)]
    def early():
        kv0_hook(a, w)
        a("s_waitcnt lgkmcnt(0)")
        a("s_barrier")
        a(f"v_add_u32 {vr(V_T+1)}, {sr(S_LRD)}, {vr(V_L16)}")
        for tau in range(2):
            for c in range(4):
                a(f"ds_read_b128 {vr(KXF + 16*tau + 4*c, 4)}, {vr(V_T+1)} offset:{(tau*4 + c)*1024}")
        a(f"ds_read_b64 {vr(PA0,2)}, {vr(V_T+1)} offset:{8192 + t*1024}")
        a(f"ds_read_b64 {vr(PA1,2)}, {vr(V_T+1)} offset:{8192 + t*1024 + 8}")
    if CFG.get('earlyb2'):
        early()
        poll_issue(a, "B", loads)
    else:
        poll_issue(a, "B", loads)
        early()
    a("s_barrier")
    a(f"ds_read_b32 {vr(PA0+2)}, {vr(V_VMX)}")
    a(f"ds_read_b32 {vr(PA1+2)}, {vr(V_VMX)} offset:4")
    poll_wait(a, "B", loads, [XF + r for r in range(16)])
    stamp(a, 2)
    a("s_waitcnt lgkmcnt(0)")
    Dm, D0, D1 = V_W, V_W+4, V_W+8
    for c in range(4):
        cm = "0" if c == 0 else vr(Dm,4); c0 = "0" if c == 0 else vr(D0,4); c1 = "0" if c == 0 else vr(D1,4)
        a(f"v_mfma_f32_16x16x32_bf16 {vr(Dm,4)}, {vr(XF+4*c,4)}, {vr(XF+4*c,4)}, {cm}")
        a(f"v_mfma_f32_16x16x32_bf16 {vr(D0,4)}, {vr(KXF+4*c,4)}, {vr(XF+4*c,4)}, {c0}")
        a(f"v_mfma_f32_16x16x32_bf16 {vr(D1,4)}, {vr(KXF+16+4*c,4)}, {vr(XF+4*c,4)}, {c1}")
    a("s_nop 0")
    a(f"v_mov_b32_dpp {vr(Dm)}, {vr(Dm+1)} row_shr:8 row_mask:0xf bank_mask:0xc")
    a(f"v_mov_b32_dpp {vr(Dm+2)}, {vr(Dm+3)} row_shr:8 row_mask:0xf bank_mask:0xc")
    a("s_nop 4")
    for r in range(4):
        a(f"v_mov_b32_dpp {vr(D0+r)}, {vr(D1+r)} row_shr:8 row_mask:0xf bank_mask:0xc")
    a(f"v_permlane32_swap_b32 {vr(Dm)}, {vr(Dm+2)}")
    pm = Dm+2; M = V_W+12; T2 = V_W+13
    a(f"""
    v_max3_f32 {vr(M)}, {vr(D0)}, {vr(D0+1)}, {vr(D0+2)}
    v_max3_f32 {vr(M)}, {vr(M)}, {vr(D0+3)}, {vr(pm)}
    s_nop 1
    v_max_f32_dpp {vr(T2)}, {vr(M)}, {vr(M)} row_ror:8 row_mask:0xf bank_mask:0xf
    v_max_f32_dpp {vr(M)}, {vr(M)}, {vr(M)} row_ror:8 row_mask:0xf bank_mask:0xf
    s_nop 1
    v_permlane16_swap_b32 {vr(M)}, {vr(T2)}
    v_max_f32 {vr(M)}, {vr(M)}, {vr(T2)}
    v_max_f32 {vr(T2)}, {vr(M)}, {vr(M)}
    s_nop 1
    v_permlane32_swap_b32 {vr(M)}, {vr(T2)}
    v_max_f32 {vr(M)}, {vr(M)}, {vr(T2)}
    v_mul_f32 {vr(M)}, {sr(S_CSC)}, {vr(M)}
    """)
    for r in range(4):
        a(f"v_fma_f32 {vr(D0+r)}, {vr(D0+r)}, {sr(S_CSC)}, -{vr(M)}")
    a(f"v_fma_f32 {vr(pm)}, {vr(pm)}, {sr(S_CSC)}, -{vr(M)}")
    for r in range(4):
        a(f"v_exp_f32 {vr(D0+r)}, {vr(D0+r)}")
    a(f"v_exp_f32 {vr(pm)}, {vr(pm)}")
    a(f"""
    v_cvt_pk_bf16_f32 {vr(PB)}, {vr(D0)}, {vr(D0+1)}
    v_cvt_pk_bf16_f32 {vr(PB+1)}, {vr(D0+2)}, {vr(D0+3)}
    v_cvt_pk_bf16_f32 {vr(PB+2)}, {vr(pm)}, 0
    s_nop 1
    """)
    DA, DB, DS = V_W, V_W+4, V_W+8
    a(f"v_mfma_f32_16x16x32_bf16 {vr(DS,4)}, {vr(ONES,4)}, {vr(PB,4)}, 0")
    a(f"v_mfma_f32_16x16x32_bf16 {vr(DA,4)}, {vr(PA0,4)}, {vr(PB,4)}, 0")
    a(f"v_mfma_f32_16x16x32_bf16 {vr(DB,4)}, {vr(PA1,4)}, {vr(PB,4)}, 0")
    L = V_W+12
    a("s_nop 3")
    a(f"v_add_f32_dpp {vr(L)}, {vr(DS)}, {vr(DS)} row_ror:8 row_mask:0xf bank_mask:0xf")
    a(f"v_rcp_f32 {vr(L)}, {vr(L)}")
    a("s_nop 2")
    for r in range(4):
        a(f"v_add_f32_dpp {vr(DA+r)}, {vr(DB+r)}, {vr(DA+r)} row_ror:8 row_mask:0xf bank_mask:0xf")
    for r in range(4):
        a(f"v_mul_f32 {vr(DA+r)}, {vr(DA+r)}, {vr(L)}")
    a(f"""
    v_cvt_pk_bf16_f32 {vr(DB)}, {vr(DA)}, {vr(DA+1)}
    v_cvt_pk_bf16_f32 {vr(DB+1)}, {vr(DA+2)}, {vr(DA+3)}
    buffer_store_dwordx2 {vr(DB,2)}, {vr(V_OST)}, {sr(S_WS,4)}, {sr(S_O)} offen{st_local()}
    """)
    stamp(a, 3)

def gemm2(a, w):
    own = [2*w, 2*w+1]
    loads = [f"buffer_load_dwordx4 {vr(OF + 4*(2*w+i), 4)}, {vr(V_OLD)}, {sr(S_WS,4)}, {sr(S_O)} offen offset:{i*1024} sc1" for i in range(2)]
    if CFG.get('obar'): a("s_barrier")
    poll_issue(a, "O", loads)
    for r in range(4): a(f"v_mov_b32 {vr(D2+r)}, 0")
    poll_wait(a, "O", loads, [OF + 8*w + r for r in range(8)])
    stamp(a, 4)
    for i in range(2):
        a(f"ds_write_b128 {vr(V_OLD)}, {vr(OF + 4*(2*w+i), 4)} offset:{LO + i*1024}")
    a(smf(D2, OF + 4*own[0], ar(A_WO + 8*own[0], 8)))
    a("s_waitcnt lgkmcnt(0)")
    a("s_barrier")
    others = [k for k in range(8) if k not in own]
    for k in others:
        a(f"ds_read_b128 {vr(OF + 4*k, 4)}, {vr(V_L16)} offset:{LO + k*1024}")
    a(smf(D2, OF + 4*own[1], ar(A_WO + 8*own[1], 8)))
    if CFG.get('pfg2') == 1:
        for ln in flat(prefetch_l(w < 2)): a(ln)
    for n, k in enumerate(others):
        a(f"s_waitcnt lgkmcnt({5-n})")
        a(smf(D2, OF + 4*k, ar(A_WO + 8*k, 8)))
    a("s_nop 7")
    for r in range(4): a(f"v_permlane32_swap_b32 {vr(D2+r)}, {vr(V_W+r)}")
    a(f"""
    v_pk_add_f32 {vr(D2,2)}, {vr(D2,2)}, {vr(V_W,2)}
    v_pk_add_f32 {vr(D2+2,2)}, {vr(D2+2,2)}, {vr(V_W+2,2)}
    v_cvt_pk_bf16_f32 {vr(V_W+4)}, {vr(D2)}, {vr(D2+1)}
    v_cvt_pk_bf16_f32 {vr(V_W+5)}, {vr(D2+2)}, {vr(D2+3)}
    """)
    if CFG.get('cx4'):
        a(f"""
        s_nop 0
        v_permlane16_swap_b32 {vr(V_W+4)}, {vr(V_W+6)}
        v_permlane16_swap_b32 {vr(V_W+5)}, {vr(V_W+7)}
        buffer_store_dwordx4 {vr(V_W+4,4)}, {vr(V_CST)}, {sr(S_WS,4)}, {sr(S_C)} offen {CFG.get('cst_mod', 'sc1')}
        """)
    else:
        a(f"buffer_store_dwordx2 {vr(V_W+4,2)}, {vr(V_CST)}, {sr(S_WS,4)}, {sr(S_C)} offen {CFG.get('cst_mod', 'sc1')}")
    stamp(a, 5)
    if CFG.get('pfg2') == 2:
        for ln in flat(prefetch_l(w < 2)): a(ln)

def reduce_c(a, w):
    loads = [f"buffer_load_dwordx4 {vr(CF,4)}, {vr(V_CLD)}, {sr(S_WS,4)}, {sr(S_C)} offen {CFG.get('cld_mod', 'sc1')}"]
    poll_issue(a, "C", loads)
    for ln in next_offsets_l(): a(ln)
    poll_wait(a, "C", loads, [CF + r for r in range(4)])
    stamp(a, 6)
    D = V_W
    a(f"v_mfma_f32_16x16x32_bf16 {vr(D,4)}, {vr(V_ID,4)}, {vr(CF,4)}, 0")
    a("s_nop 7")
    for r in range(4):
        a(f"v_add_f32_dpp {vr(D+r)}, {vr(D+r)}, {vr(D+r)} row_ror:8 row_mask:0xf bank_mask:0xf")
    a(f"""
    v_cvt_pk_bf16_f32 {vr(D+4)}, {vr(D)}, {vr(D+1)}
    v_cvt_pk_bf16_f32 {vr(D+5)}, {vr(D+2)}, {vr(D+3)}
    v_cndmask_b32 {vr(D+6)}, {vr(D+5)}, {vr(D+4)}, {sr(S_PAR,2)}
    v_cndmask_b32 {vr(D+7)}, {vr(D+4)}, {vr(D+5)}, {sr(S_PAR,2)}
    s_nop 0
    v_mov_b32_dpp {vr(D+8)}, {vr(D+6)} quad_perm:[1,0,3,2] row_mask:0xf bank_mask:0xf
    v_perm_b32 {vr(D+9)}, {vr(D+7)}, {vr(D+8)}, {vr(V_SEL2)}
    buffer_store_dword {vr(D+9)}, {vr(V_AST)}, {sr(S_WS,4)}, {sr(S_A)} offen{st_local()}
    """)
    if CFG['dbg_mem']:
        lab = a.label("Lnd")
        a(f"""
        s_cmp_gt_u32 {sr(S_G)}, 1
        s_cbranch_scc1 {lab}
        s_lshl_b32 s4, {sr(S_STEP)}, 14
        s_add_u32 s4, s4, {OFF_MEMDBG}
        buffer_store_dword {vr(D+9)}, {vr(V_AST)}, {sr(S_WS,4)}, s4 offen sc1
        {lab}:
        """)
    stamp(a, 7)

def wave_loop(a, w):
    ns = CFG['nsteps']
    top = a.label("Lstep")
    if w >= 2:
        for r in range(4): a(f"v_mov_b32 {vr(ONES+r)}, 0x3f803f80")
        a(f"v_mov_b32 {vr(PA0+3)}, 0")
        a(f"v_mov_b32 {vr(PA1+3)}, 0")
        a(f"v_mov_b32 {vr(PB+3)}, 0")
    last = a.label("Llast")
    a(f"{top}:")
    if CFG.get('tl') and w == 0:
        a("s_memrealtime s[94:95]")
        a("s_waitcnt lgkmcnt(0)")
        a(f"s_mov_b32 m0, {sr(S_STEP)}")
        a("s_nop 0")
        a("v_writelane_b32 v250, s94, m0")
        a("s_memtime s[94:95]")
        a("s_waitcnt lgkmcnt(0)")
        a("v_writelane_b32 v251, s94, m0")
    a(f"s_cmp_eq_u32 {sr(S_STEP)}, {ns-1}")
    a(f"s_cbranch_scc1 {last}")
    gemm1(a, w)
    if w < 2:
        kv0_hook(a, w)
        a("s_waitcnt lgkmcnt(0)")
        a("s_barrier")
        if CFG.get('crep'): stamp(a, 2)
        v_reduce(a)
        if not CFG.get('lateshadow'): shadow(a, w)
        a("s_waitcnt lgkmcnt(0)")
        a("s_barrier")
        if CFG.get('crep'): stamp(a, 3)
        if CFG.get('lateshadow'): shadow(a, w)
        if CFG.get('pflate'):
            a(f"s_sleep {CFG['pflate']}")
            for ln in flat(prefetch_l(True)): a(ln)
            for ln in flat(prefetch_l(True, 1)): a(ln)
        if w == 0:
            export_read(a)
            if CFG.get('early_wt'):
                a("s_waitcnt lgkmcnt(0)")
                after_c_store(a, w)
            kv_check(a, a.dbg_srd)
        elif CFG.get('early_wt'):
            after_c_store(a, w)
    else:
        attention(a, w)
    gemm2(a, w)
    if not CFG.get('early_wt'): after_c_store(a, w)
    reduce_c(a, w)
    a(f"s_branch {top}")
    a(f"{last}:")
    sv = CFG['prof']; CFG['prof'] = False
    gemm1(a, w, last=True)
    CFG['prof'] = sv
    a("s_waitcnt lgkmcnt(0)")
    a("s_barrier")
    if w < 2:
        v_reduce(a)
    a("s_waitcnt lgkmcnt(0)")
    a("s_barrier")
    if w == 0:
        export_read(a)
        a("s_waitcnt lgkmcnt(0)")
        export_store(a)
    a("s_waitcnt vmcnt(0)")
    a("s_branch L_R_done")

def start_barrier(a, dbg_srd, off):
    ok = a.label("Lsbo")
    a(f"""
    s_waitcnt vmcnt(0)
    s_barrier
    s_cmp_lg_u32 {sr(S_W)}, 0
    s_cbranch_scc1 {ok}
    v_mov_b32 v4, {off}
    v_mov_b32 v5, 1
    v_cmp_eq_u32 vcc, 0, v0
    s_and_saveexec_b64 s[6:7], vcc
    buffer_atomic_add v5, v4, {sr(dbg_srd,4)}, 0 offen sc1
    s_mov_b64 exec, s[6:7]
    {ok}:
    """)

def wait_barrier(a, srd, off, count, sleep=8):
    lab = a.label("Lwb")
    a(f"""
    s_cmp_lg_u32 {sr(S_W)}, 0
    s_cbranch_scc1 {lab}_ok
    v_mov_b32 v4, {off}
    {lab}:
    buffer_load_dword v5, v4, {sr(srd,4)}, 0 offen sc1
    s_waitcnt vmcnt(0)
    v_cmp_le_u32 vcc, {count}, v5
    s_cbranch_vccnz {lab}_ok
    s_sleep {sleep}
    s_sub_u32 {sr(S_BUD)}, {sr(S_BUD)}, 1
    s_cbranch_scc0 {lab}
    s_branch L_R_abort
    {lab}_ok:
    s_barrier
    """)

def emit_R(a, dbg_srd, bar_off):
    a.cold = []
    a.dbg_srd = dbg_srd
    setup(a)
    arm_and_mem0(a)
    start_barrier(a, dbg_srd, bar_off)
    if CFG.get('proto'): a(f"s_memtime {sr(S_PROF + 16, 2)}")
    load_weights(a)
    if CFG.get('proto'): a(f"s_memtime {sr(S_PROF + 18, 2)}")
    wait_barrier(a, dbg_srd, bar_off, CFG.get('bar_count', 128))
    if CFG.get('kv_flags'):
        wait_barrier(a, dbg_srd, C_LN0A*4, 8, 2)
        if not CFG.get('kv0late'): wait_barrier(a, S_WS, OFF_CNT + CN_KV0A*256, 128)
    if not CFG.get('kv0late'):
        a(f"s_mov_b32 {sr(S_STEP)}, 0")
        for ln in seg_offsets_l(S_STEP): a(ln)
        l0 = a.label("Lpf"); l1 = a.label("Lpf")
        a(f"s_cmp_lt_u32 {sr(S_W)}, 2")
        a(f"s_cbranch_scc1 {l0}")
        for ln in flat(prefetch_l(False)): a(ln)
        a(f"s_branch {l1}")
        a(f"{l0}:")
        for ln in flat(prefetch_l(True)): a(ln)
        for ln in flat(prefetch_l(True, 1)): a(ln)
        a(f"{l1}:")
    a(f"s_mov_b32 {sr(S_STEP)}, -1")
    for ln in next_offsets_l(): a(ln)
    a("s_waitcnt vmcnt(0)")
    a("s_barrier")
    if CFG['prof']:
        for i in range(8):
            a(f"s_mov_b32 {sr(S_PROF + 2*i)}, 0")
            a(f"s_mov_b32 {sr(S_ACC + i)}, 0")
    if CFG.get('proto'):
        for ci in range(68, 72): a(f"s_mov_b32 s{ci}, 0")
        calib(a, 96)
        a(f"s_memtime {sr(S_PROF + 20, 2)}")
    labs = [a.label("Lwave") for _ in range(4)]
    for w in range(1, 4):
        a(f"s_cmp_eq_u32 {sr(S_W)}, {w}")
        a(f"s_cbranch_scc1 {labs[w]}")
    for w in range(4):
        a(f"{labs[w]}:")
        wave_loop(a, w)
    for c in a.cold: a(c)
```

```python
from asmlib import *
from layout import *
import struct

def fbits(x):
    return struct.unpack("<I", struct.pack("<f", x))[0]

CFG = dict()
def LSC1(): return "" if CFG.get('nolsc1') else " sc1"
def SSC1(): return CFG.get('sflag', "" if CFG.get('nossc1') else " sc1")
def EPST(x): return "s_nop 0" if CFG.get('noepst') else x

S_W = 3
S_WS = 8
S_B = 12
S_AOFF, S_BOFF, S_BSTEP, S_M0A, S_M0B, S_CNT = 16, 17, 18, 19, 20, 21
S_GBUD, S_J, S_TK, S_T, S_MT, S_NT = 22, 23, 24, 25, 26, 27
S_COFF, S_DONE, S_M2 = 29, 40, 41
S_NCOFF, S_NDONE = 42, 43
S_A = 48
S_KIND, S_NKIND, S_PDONE, S_NCNT = 60, 61, 62, 63
S_SCH = 80
S_T0 = 30
S_OUT = 44
S_MASK = 52
S_DBG = 64
V_XA, V_WA, V_AOFF = 8, 10, 18
V_ROW0, V_SWZ = 19, 20
V_SIG, V_ONE, V_L4, V_OOB = 23, 24, 25, 26
V_EP = 30
V_FRAG = 32
V2_XD, V2_BD, V2_WA, V2_RW, V2_RR = 208, 212, 216, 220, 223
V2_XO, V2_L16 = 226, 227
V_AD, V_KMD, V_VD, V_NB = 228, 229, 230, 231
STAGE = 32768
LMB = 131072
LSC = LMB + 64

def XF16(p, i): return V_FRAG + 64*p + 4*i
def WF16(p, t): return V_FRAG + 64*p + 32 + 4*t
def ACC16(t, i): return (t*8 + i)*4
def frag_reads16(p, ring):
    hi = ring >> 1; base = (ring & 1)*STAGE
    xs = [f"ds_read_b128 {vr(XF16(p,i),4)}, {vr(V_XA + hi)} offset:{base + i*256}" for i in range(8)]
    ws = []
    for t in range(8):
        for sec in range(2):
            off = base + 16384 + (t >> 2)*8192 + (16*sec)*256
            ws.append(f"ds_read_b64_tr_b16 {vr(WF16(p,t) + 2*sec, 2)}, {vr(V_WA + 4*hi + (t & 3))} offset:{off}")
    return [ws[0], ws[1]] + xs + ws[2:]
def mfmas16(p, first, swap):
    out = []
    for t in range(8):
        for i in range(8):
            x, y = (XF16(p,i), WF16(p,t)) if swap else (WF16(p,t), XF16(p,i))
            out.append(f"v_mfma_f32_16x16x32_bf16 {ar(ACC16(t,i),4)}, {vr(x,4)}, {vr(y,4)}, {'0' if first else ar(ACC16(t,i),4)}")
    return out

def dma_ops(ring, vb):
    g = []
    base = ring*STAGE
    g.append([f"s_add_u32 m0, {sr(S_M0A)}, {base}", "s_nop 0",
              f"buffer_load_dwordx4 {vr(V_AOFF)}, {sr(S_A,4)}, {sr(S_AOFF)} offen{LSC1()} lds"])
    for j in range(1, 4):
        g.append([f"buffer_load_dwordx4 {vr(V_AOFF)}, {sr(S_A,4)}, {sr(S_AOFF)} offen offset:{j*1024}{LSC1()} lds"])
    g[-1].append(f"s_add_u32 {sr(S_AOFF)}, {sr(S_AOFF)}, 16384")
    g.append([f"s_add_u32 m0, {sr(S_M0B)}, {base}", "s_nop 0",
              f"buffer_load_dwordx4 {vr(vb)}, {sr(S_B,4)}, {sr(S_BOFF)} offen lds"])
    for j in range(1, 4):
        g.append([f"buffer_load_dwordx4 {vr(vb+j)}, {sr(S_B,4)}, {sr(S_BOFF)} offen offset:{j*1024} lds"])
    g[-1].append(f"s_add_u32 {sr(S_BOFF)}, {sr(S_BOFF)}, {sr(S_BSTEP)}")
    return g

def weave(main, slots):
    out = []
    for i, m in enumerate(main):
        out.append(m)
        if i in slots: out.extend(slots[i])
    return out

def place(slots, items, positions):
    for it, p in zip(items, positions):
        slots.setdefault(p, [])
        if isinstance(it, str): slots[p].append(it)
        else: slots[p].extend(it)

VB = 32 + 128 + 48
V_BW = 204

def stage16(a, ring, p, swap, first=False, dma=True, vm=16, next_reads=True):
    a("s_waitcnt lgkmcnt(0)" if vm is None else f"s_waitcnt vmcnt({vm}) lgkmcnt(0)")
    a("s_barrier")
    sl = {}
    if next_reads: place(sl, frag_reads16(p ^ 1, (ring+1) & 3), range(0, 48, 2))
    if dma: place(sl, dma_ops(ring, V_BW), range(3, 64, 8))
    for ln in weave(mfmas16(p, first, swap), sl): a(ln)

def signal_op(soff):
    return f"buffer_atomic_add {vr(V_ONE)}, {vr(V_SIG)}, {sr(S_WS,4)}, {soff} offen sc1"

NEP = 32
def e1_prologue(a):
    for ring in range(4):
        for g in dma_ops(ring, V_BW):
            for ln in g: a(ln)
    a("s_waitcnt vmcnt(24)")
    a("s_barrier")
    for ln in frag_reads16(0, 0): a(ln)
    pad_ops(a, NEP)

def pad_ops(a, n):
    for _ in range(n): a(f"buffer_store_dword {vr(V_ONE)}, {vr(V_OOB)}, {sr(S_WS,4)}, 0 offen")

def e1_body(a, swap, tag):
    a(f"L_f4{tag}:")
    tl_task_start(a)
    for r in range(4):
        a(f"s_waitcnt vmcnt({16 + NEP if r < 3 else 16}) lgkmcnt(0)")
        a("s_barrier")
        sl = {}
        place(sl, frag_reads16((r & 1) ^ 1, (r+1) & 3), range(0, 48, 2))
        place(sl, dma_ops(r, V_BW), range(3, 64, 8))
        if r == 3: place(sl, [signal_op(sr(S_PDONE))], [1])
        for ln in weave(mfmas16(r & 1, r == 0, swap), sl): a(ln)
    top = a.label("Lmid"); sw = a.label("Lsw"); back = a.label("Lswb")
    a(f"{top}:")
    a(f"s_cmp_eq_u32 {sr(S_CNT)}, 1")
    a(f"s_cbranch_scc1 {sw}")
    a(f"{back}:")
    for r in range(4): stage16(a, r, r & 1, swap)
    a(f"s_sub_u32 {sr(S_CNT)}, {sr(S_CNT)}, 1")
    a(f"s_cmp_lg_u32 {sr(S_CNT)}, 0")
    a(f"s_cbranch_scc1 {top}")
    a("s_branch L_e1ep")
    a(f"{sw}:")
    e1_next(a, back)

def e1_setup_regs(a):
    a(f"""
    v_and_b32 v1, 15, v0
    v_lshrrev_b32 v2, 4, v0         ; g
    v_lshlrev_b32 v4, 4, v1
    v_lshlrev_b32 v5, 12, v2
    v_add_u32 {vr(V_AD)}, v4, v5    ; g*4096 + i*16
    s_lshr_b32 s4, {sr(S_W)}, 1
    s_lshl_b32 s5, s4, 11
    v_add_u32 {vr(V_XA)}, s5, {vr(V_AD)}
    v_add_u32 {vr(V_XA+1)}, 0x10000, {vr(V_XA)}
    v_mov_b32 {vr(V_EP)}, {vr(V_XA)}
    v_bfe_u32 v3, v0, 2, 2          ; r
    v_lshlrev_b32 v4, 2, v2         ; 4g
    v_add_u32 v4, v4, v3            ; k
    v_and_b32 v6, 7, v4             ; k&7
    v_lshlrev_b32 v4, 8, v4         ; k*256
    v_and_b32 v5, 3, v0
    v_lshlrev_b32 v5, 3, v5         ; c*8
    v_add_u32 v4, v4, v5
    s_and_b32 s5, {sr(S_W)}, 1
    s_lshl_b32 s5, s5, 2            ; 4wn
    """)
    for tl in range(4):
        a(f"""
        s_add_u32 s6, s5, {tl}
        v_xor_b32 v5, s6, v6
        v_lshlrev_b32 v5, 5, v5
        v_add_u32 {vr(V_WA+tl)}, v4, v5
        v_add_u32 {vr(V_WA+4+tl)}, 0x10000, {vr(V_WA+tl)}
        """)
    a(f"""
    v_lshlrev_b32 v4, 4, v0
    s_lshl_b32 s5, {sr(S_W)}, 12
    v_add_u32 {vr(V_AOFF)}, s5, v4
    v_lshrrev_b32 v1, 4, v0
    v_and_b32 v2, 15, v0
    """)
    for j in range(2):
        a(f"""
        v_add_u32 v3, {4*j}, v1
        v_lshlrev_b32 v3, 1, v3
        v_xor_b32 v3, v2, v3
        v_lshlrev_b32 {vr(V_SWZ+j)}, 4, v3
        """)
    a(f"""
    s_lshr_b32 s5, {sr(S_W)}, 1
    s_lshl_b32 s5, s5, 4
    v_add_u32 {vr(V_ROW0)}, s5, v1
    s_lshl_b32 {sr(S_M0A)}, {sr(S_W)}, 12
    s_and_b32 s6, {sr(S_W)}, 1
    s_lshl_b32 s6, s6, 13
    s_lshr_b32 s7, {sr(S_W)}, 1
    s_lshl_b32 s7, s7, 12
    s_add_u32 s6, s6, s7
    s_add_u32 {sr(S_M0B)}, s6, 16384
    s_mov_b32 {sr(S_A)}, {sr(S_WS)}
    s_mov_b32 {sr(S_A+1)}, {sr(S_WS+1)}
    s_mov_b32 {sr(S_A+2)}, 0
    s_mov_b32 {sr(S_A+3)}, 0x20000
    """)

def e1_bvoff(a, s_ldb):
    a(f"""
    v_mul_u32_u24 v1, {sr(s_ldb)}, {vr(V_ROW0)}
    s_lshl_b32 s4, {sr(s_ldb)}, 2
    s_sub_u32 s4, s4, 1024
    v_add_u32 {vr(V_BW)}, v1, {vr(V_SWZ)}
    v_add3_u32 {vr(V_BW+1)}, v1, {vr(V_SWZ+1)}, s4
    s_lshl_b32 s5, s4, 1
    v_add3_u32 {vr(V_BW+2)}, v1, {vr(V_SWZ)}, s5
    s_add_u32 s5, s5, s4
    v_add3_u32 {vr(V_BW+3)}, v1, {vr(V_SWZ+1)}, s5
    s_lshl_b32 {sr(S_BSTEP)}, {sr(s_ldb)}, 5
    """)

def ep_chunks(a):
    a(f"""
    s_and_b32 s5, {sr(S_W)}, 1
    s_lshl_b32 s5, s5, 15
    s_add_u32 s7, {sr(S_COFF)}, s5
    s_nop 4
    """)
    tmp = 160; n = 0
    for p in range(4):
        a(f"s_add_u32 s6, s7, {(16*(p>>1) + 4*(p&1))*4096}")
        for i in range(8):
            b = tmp + (n % 3)*12; n += 1
            for tt in range(2):
                for r in range(4):
                    a(f"v_accvgpr_read_b32 {vr(b+4*tt+r)}, {ar(ACC16(2*p+tt,i)+r)}")
            for r in range(4):
                a(f"v_cvt_pk_bf16_f32 {vr(b+8+r)}, {vr(b+2*r)}, {vr(b+2*r+1)}")
            a(EPST(f"buffer_store_dwordx4 {vr(b+8,4)}, {vr(V_EP)}, {sr(S_WS,4)}, s6 offen offset:{i*256}{SSC1()}"))

def ep_vt(a):
    a(f"""
    s_lshr_b32 s5, {sr(S_W)}, 1
    s_lshl_b32 s5, s5, 20             ; wm*16*65536
    s_add_u32 s7, {sr(S_COFF)}, s5
    s_and_b32 s5, {sr(S_W)}, 1
    s_lshl_b32 s5, s5, 10             ; 64 wn * 16
    s_add_u32 s7, s7, s5
    s_nop 4
    """)
    tmp = 160; n = 0
    for P in range(4):
        a(f"s_add_u32 s6, s7, {4*P*65536}")
        for t in range(8):
            b = tmp + (n % 3)*12; n += 1
            for ii in range(2):
                for r in range(4):
                    a(f"v_accvgpr_read_b32 {vr(b+4*ii+r)}, {ar(ACC16(t,2*P+ii)+r)}")
            for r in range(4):
                a(f"v_cvt_pk_bf16_f32 {vr(b+8+r)}, {vr(b+2*r)}, {vr(b+2*r+1)}")
            a(EPST(f"buffer_store_dwordx4 {vr(b+8,4)}, {vr(V_VD)}, {sr(S_WS,4)}, s6 offen offset:{(t>>2)*2048 + (t&3)*256}{SSC1()}"))

def ep_gu(a):
    a(f"""
    s_and_b32 s5, {sr(S_W)}, 1
    s_lshl_b32 s5, s5, 15
    s_add_u32 s7, {sr(S_COFF)}, s5
    s_nop 4
    """)
    tmp = 160; n = 0
    for p in range(2):
        a(f"s_add_u32 s6, s7, {4*p*4096}")
        for i in range(8):
            b = tmp + (n % 2)*20; n += 1
            for tt in range(2):
                for r in range(4):
                    a(f"v_accvgpr_read_b32 {vr(b+4*tt+r)}, {ar(ACC16(2*p+tt,i)+r)}")
                    a(f"v_accvgpr_read_b32 {vr(b+8+4*tt+r)}, {ar(ACC16(4+2*p+tt,i)+r)}")
            for r in range(8):
                a(f"v_max_f32 {vr(b+r)}, 0, {vr(b+r)}")
            for r in range(0, 8, 2):
                a(f"v_pk_mul_f32 {vr(b+r,2)}, {vr(b+r,2)}, {vr(b+8+r,2)}")
            for r in range(4):
                a(f"v_cvt_pk_bf16_f32 {vr(b+16+r)}, {vr(b+2*r)}, {vr(b+2*r+1)}")
            a(f"buffer_store_dwordx4 {vr(b+16,4)}, {vr(V_EP)}, {sr(S_WS,4)}, s6 offen offset:{i*256}{SSC1()}")

    pad_ops(a, NEP - 16)

def ep_down1(a):
    c = fbits(-1.4426950408889634)
    a(f"""
    s_and_b32 s5, {sr(S_W)}, 1
    s_lshl_b32 s5, s5, 15
    s_add_u32 s7, {sr(S_COFF)}, s5
    s_mov_b32 s4, {c:#x}
    s_nop 4
    """)
    tmp = 160; n = 0
    for p in range(4):
        a(f"s_add_u32 s6, s7, {(16*(p>>1) + 4*(p&1))*4096}")
        for i in range(8):
            b = tmp + (n % 2)*20; n += 1
            for tt in range(2):
                for r in range(4):
                    a(f"v_accvgpr_read_b32 {vr(b+4*tt+r)}, {ar(ACC16(2*p+tt,i)+r)}")
            for r in range(8): a(f"v_mul_f32 {vr(b+8+r)}, s4, {vr(b+r)}")
            for r in range(8): a(f"v_exp_f32 {vr(b+8+r)}, {vr(b+8+r)}")
            for r in range(8): a(f"v_add_f32 {vr(b+8+r)}, 1.0, {vr(b+8+r)}")
            for r in range(8): a(f"v_rcp_f32 {vr(b+8+r)}, {vr(b+8+r)}")
            for r in range(8): a(f"v_mul_f32 {vr(b+r)}, {vr(b+r)}, {vr(b+8+r)}")
            for r in range(4): a(f"v_cvt_pk_bf16_f32 {vr(b+16+r)}, {vr(b+2*r)}, {vr(b+2*r+1)}")
            a(f"buffer_store_dwordx4 {vr(b+16,4)}, {vr(V_EP)}, {sr(S_WS,4)}, s6 offen offset:{i*256} sc1")

def load_srd(a, srd, ka, nbytes):
    a(f"""
    s_load_dwordx2 {sr(srd,2)}, s[0:1], {ka}
    s_mov_b32 {sr(srd+2)}, {nbytes}
    s_mov_b32 {sr(srd+3)}, 0x20000
    """)

def X2(r, i): return 32 + 32*r + 4*i
def W2(p, t): return 160 + 16*p + 4*t
def ACC2(t, i): return (i*4 + t)*4
def e2_tr(p, slot):
    return [f"ds_read_b64_tr_b16 {vr(W2(p,t) + 2*sec, 2)}, {vr(V2_WA + t)} offset:{slot*4096 + sec*2048}" for t in range(4) for sec in range(2)]
PITCH2 = 8192
def e2_wdma(slot, bd=V2_BD):
    g = [[f"s_add_u32 m0, {sr(S_M2)}, {slot*4096}", "s_nop 0",
          f"buffer_load_dwordx4 {vr(bd)}, {sr(S_B,4)}, {sr(S_BOFF)} offen lds"]]
    for j in range(1, 4):
        g.append([f"buffer_load_dwordx4 {vr(bd+j)}, {sr(S_B,4)}, {sr(S_BOFF)} offen offset:{j*1024} lds"])
    g[-1].append(f"s_add_u32 {sr(S_BOFF)}, {sr(S_BOFF)}, {32*PITCH2}")
    return g
def e2_xload(r, i):
    return f"buffer_load_dwordx4 {vr(X2(r,i),4)}, {vr(V2_XD + (i >> 1))}, {sr(S_WS,4)}, {sr(S_AOFF)} offen offset:{(i & 1)*256}{LSC1()}"
def e2_stage(a, r, swap, first=False, issue=True, vm=32, nxt=True):
    p = r & 1
    a(f"s_waitcnt vmcnt({vm}) lgkmcnt(0)")
    main = []
    for i in range(8):
        for t in range(4):
            x, y = (X2(r,i), W2(p,t)) if swap else (W2(p,t), X2(r,i))
            main.append(f"v_mfma_f32_16x16x32_bf16 {ar(ACC2(t,i),4)}, {vr(x,4)}, {vr(y,4)}, {'0' if first else ar(ACC2(t,i),4)}")
    sl = {}
    if issue: place(sl, e2_wdma(r), [0, 1, 2, 3])
    if nxt: place(sl, e2_tr(p ^ 1, (r+1) & 3), [4, 5, 6, 8, 9, 10, 12, 13])
    if issue:
        for i in range(8): place(sl, [e2_xload(r, i)], [4*i + 3])
        place(sl, [f"s_add_u32 {sr(S_AOFF)}, {sr(S_AOFF)}, 16384"], [31])
    for ln in weave(main, sl): a(ln)

def E2N(): return 8 if CFG.get('e2v', 2) == 2 else 4
def X2R(s, i, n=4):
    return vr(X2(s, i), n) if s < 4 else ar(128 + 32*(s-4) + 4*i, n)
def e2_main8b(a, swap):
    def xl(s, i):
        return f"buffer_load_dwordx4 {X2R(s,i)}, {vr(V2_XD + (i >> 1))}, {sr(S_WS,4)}, {sr(S_AOFF)} offen offset:{(i & 1)*256}{LSC1()}"
    for s in range(3):
        for i in range(8): a(xl(s, i))
        a(f"s_add_u32 {sr(S_AOFF)}, {sr(S_AOFF)}, 16384")
    a("s_waitcnt vmcnt(56)")
    a("s_barrier")
    a(signal_op(sr(S_PDONE)))
    tl_fine2(a, 1)
    a("s_waitcnt vmcnt(17)")
    tl_fine2(a, 2)
    for ln in e2_tr(0, 0): a(ln)
    for s in range(8):
        p = s & 1
        vm = 17 if s < 3 else 16 if s < 6 else 8 if s == 6 else 0
        a(f"s_waitcnt vmcnt({vm}) lgkmcnt(0)")
        main = []
        for i in range(8):
            for t in range(4):
                x, y = (X2R(s,i), vr(W2(p,t),4)) if swap else (vr(W2(p,t),4), X2R(s,i))
                main.append(f"v_mfma_f32_16x16x32_bf16 {ar(ACC2(t,i),4)}, {x}, {y}, {'0' if s == 0 else ar(ACC2(t,i),4)}")
        sl = {}
        if s < 7: place(sl, e2_tr(p ^ 1, s + 1), [4, 5, 6, 8, 9, 10, 12, 13])
        if s < 5:
            for i in range(8): place(sl, [xl(s + 3, i)], [4*i + 3])
            place(sl, [f"s_add_u32 {sr(S_AOFF)}, {sr(S_AOFF)}, 16384"], [31])
        for ln in weave(main, sl): a(ln)
        tl_fine2(a, 3 + s)

def e2_wpro(a, s0=0, s1=None):
    for s in range(s0, E2N() if s1 is None else s1):
        for g in e2_wdma(s):
            for ln in g: a(ln)

def e2_main8(a, swap):
    if E2N() == 8: return e2_main8b(a, swap)
    for s in range(4):
        for i in range(8): a(e2_xload(s, i))
        a(f"s_add_u32 {sr(S_AOFF)}, {sr(S_AOFF)}, 16384")
    if CFG.get('kvchain', 1):
        a("s_waitcnt vmcnt(48)")
        a("s_barrier")
        a(signal_op(sr(S_PDONE)))
    tl_fine2(a, 1)
    a("s_waitcnt vmcnt(44)")
    tl_fine2(a, 2)
    for ln in e2_tr(0, 0): a(ln)
    for r, vm in enumerate((24, 28, 32, 32)):
        e2_stage(a, r, swap, first=(r == 0), vm=vm)
        tl_fine2(a, 3 + r)
    e2_stage(a, 0, swap, issue=False, vm=32)
    tl_fine2(a, 7)
    e2_stage(a, 1, swap, issue=False, vm=20)
    tl_fine2(a, 8)
    e2_stage(a, 2, swap, issue=False, vm=8)
    tl_fine2(a, 9)
    e2_stage(a, 3, swap, issue=False, vm=0, nxt=False)
    tl_fine2(a, 10)

R2 = 32
def e2_reduce(a):
    a("s_nop 7")
    for dd in range(1, 4):
        for ii in range(2):
            for t in range(4):
                a(f"ds_write_b128 {vr(V2_RW + dd-1)}, {ar(ACC2(t, 2*dd+ii), 4)} offset:{(ii*4+t)*1024}")
    for k in range(8):
        for r in range(4): a(f"v_accvgpr_read_b32 {vr(R2 + 4*k + r)}, {ar(ACC2(k & 3, k >> 2) + r)}")
    a("s_waitcnt lgkmcnt(0)")
    a("s_barrier")
    P = 64
    for dd in range(3):
        for k in range(8):
            a(f"ds_read_b128 {vr(P + 32*dd + 4*k, 4)}, {vr(V2_RR + dd)} offset:{k*1024}")
        a(f"s_waitcnt lgkmcnt({8 if dd > 0 else 15})") if dd > 0 else None
        if dd > 0:
            for k in range(16):
                a(f"v_pk_add_f32 {vr(R2 + 2*k, 2)}, {vr(R2 + 2*k, 2)}, {vr(P + 32*(dd-1) + 2*k, 2)}")
    a("s_waitcnt lgkmcnt(0)")
    for k in range(16):
        a(f"v_pk_add_f32 {vr(R2 + 2*k, 2)}, {vr(R2 + 2*k, 2)}, {vr(P + 64 + 2*k, 2)}")

def e2_setup_regs(a):
    a(f"""
    v_lshlrev_b32 {vr(V2_L16)}, 4, v0
    """)
    for dd in range(4):
        a(f"""
        s_add_u32 s4, {sr(S_W)}, {dd}
        s_and_b32 s4, s4, 3
        s_lshl_b32 s4, s4, 9
        v_add_u32 {vr(V2_XD+dd)}, s4, {vr(V_AD)}
        """)
    a(f"""
    v_lshrrev_b32 v1, 3, v0
    v_lshlrev_b32 v1, 13, v1
    v_bfe_u32 v2, v0, 1, 2
    v_lshrrev_b32 v3, 4, v0
    v_xor_b32 v2, v2, v3
    v_lshlrev_b32 v2, 5, v2
    v_add_u32 v1, v1, v2
    v_and_b32 v2, 1, v0
    v_lshlrev_b32 v2, 4, v2
    v_add_u32 {vr(V2_BD)}, v1, v2
    """)
    for j in range(1, 4): a(f"v_add_u32 {vr(V2_BD+j)}, {j*(8*PITCH2-1024)}, {vr(V2_BD)}")
    a(f"""
    v_lshrrev_b32 v1, 4, v0
    v_lshlrev_b32 v1, 2, v1
    v_bfe_u32 v2, v0, 2, 2
    v_add_u32 v1, v1, v2              ; k
    v_bfe_u32 v2, v1, 1, 2            ; (k>>1)&3
    v_lshlrev_b32 v1, 7, v1
    v_and_b32 v3, 3, v0
    v_lshlrev_b32 v3, 3, v3
    v_add_u32 v1, v1, v3
    s_lshl_b32 s4, {sr(S_W)}, {15 if E2N() == 8 else 14}
    v_add_u32 v1, s4, v1
    """)
    for tl in range(4):
        a(f"""
        v_xor_b32 v3, {tl}, v2
        v_lshlrev_b32 v3, 5, v3
        v_add_u32 {vr(V2_WA+tl)}, v1, v3
        """)
    if E2N() == 8:
        a(f"""
        s_lshl_b32 s4, {sr(S_W)}, 15
        v_add_u32 {vr(V2_RW)}, s4, {vr(V2_L16)}
        v_add_u32 {vr(V2_RW+1)}, 8192, {vr(V2_RW)}
        v_add_u32 {vr(V2_RW+2)}, 16384, {vr(V2_RW)}
        """)
        for dd in range(1, 4):
            a(f"""
            s_sub_u32 s4, {sr(S_W)}, {dd}
            s_and_b32 s4, s4, 3
            s_lshl_b32 s4, s4, 15
            s_add_u32 s4, s4, {(dd-1)*8192}
            v_add_u32 {vr(V2_RR+dd-1)}, s4, {vr(V2_L16)}
            """)
        return
    a(f"""
    s_lshl_b32 s4, {sr(S_W)}, 14
    v_add_u32 {vr(V2_RW)}, s4, {vr(V2_L16)}
    v_add_u32 {vr(V2_RW+1)}, 8192, {vr(V2_RW)}
    s_lshl_b32 s4, {sr(S_W)}, 13
    s_add_u32 s4, s4, 65536
    v_add_u32 {vr(V2_RW+2)}, s4, {vr(V2_L16)}
    """)
    for dd in range(1, 4):
        a(f"""
        s_sub_u32 s4, {sr(S_W)}, {dd}
        s_and_b32 s4, s4, 3
        """)
        if dd < 3:
            a(f"""
            s_lshl_b32 s4, s4, 14
            s_add_u32 s4, s4, {(dd-1)*8192}
            """)
        else:
            a(f"""
            s_lshl_b32 s4, s4, 13
            s_add_u32 s4, s4, 65536
            """)
        a(f"v_add_u32 {vr(V2_RR+dd-1)}, s4, {vr(V2_L16)}")

def ep_kv0(a, swap):
    Q = 96
    if not swap:
        for ii in range(2):
            for pr in range(2):
                q = Q + 4*(ii*2+pr); b = R2 + (ii*4 + 2*pr)*4
                for d in range(4): a(f"v_cvt_pk_bf16_f32 {vr(q+d)}, {vr(b+2*d)}, {vr(b+2*d+1)}")
        a(f"s_add_u32 s5, {sr(S_COFF)}, 16384")
        for ii in range(2):
            for pr in range(2):
                so = sr(S_COFF) if pr == 0 else "s5"
                a(f"buffer_store_dwordx4 {vr(Q+4*(ii*2+pr),4)}, {vr(V_AD)}, {sr(S_WS,4)}, {so} offen offset:{ii*256} sc1")
    else:
        for t in range(4):
            q = Q + 4*t
            for ii in range(2):
                b = R2 + (ii*4 + t)*4
                a(f"v_cvt_pk_bf16_f32 {vr(q+2*ii)}, {vr(b)}, {vr(b+1)}")
                a(f"v_cvt_pk_bf16_f32 {vr(q+2*ii+1)}, {vr(b+2)}, {vr(b+3)}")
        for t in range(4):
            a(f"buffer_store_dwordx4 {vr(Q+4*t,4)}, {vr(V_VD)}, {sr(S_WS,4)}, {sr(S_COFF)} offen offset:{t*256} sc1")

def kv0_setup(a):
    l1 = a.label("Lk0"); l2 = a.label("Lk0"); l3 = a.label("Lk0")
    a(f"""
    s_lshl_b32 s4, {sr(S_J)}, 5
    s_add_u32 s5, s4, {sr(S_T)}
    s_mov_b32 {sr(S_MT)}, 0                       ; half
    s_mov_b32 {sr(S_DONE)}, {OFF_CNT + CN_KV0A*256}
    s_cmp_eq_u32 {sr(S_KIND)}, 0
    s_cbranch_scc1 {l1}
    s_add_u32 s5, s5, {sr(S_T)}
    s_add_u32 s5, s5, {sr(S_KIND)}
    s_sub_u32 s5, s5, 1
    s_mov_b32 {sr(S_MT)}, 1
    s_mov_b32 {sr(S_DONE)}, {OFF_CNT + CN_KV*256}
    {l1}:
    s_and_b32 {sr(S_NT)}, s5, 63
    s_lshr_b32 s4, {sr(S_J)}, 1
    s_lshl_b32 s4, s4, 3
    s_add_u32 s4, s4, {KA_WK}
    s_load_dwordx2 {sr(S_B,2)}, s[0:1], s4
    s_mov_b32 {sr(S_B+2)}, {8*MB}
    s_mov_b32 {sr(S_B+3)}, 0x20000
    s_lshl_b32 {sr(S_AOFF)}, {sr(S_W)}, 17
    s_lshl_b32 s4, {sr(S_MT)}, 11
    s_add_u32 {sr(S_AOFF)}, {sr(S_AOFF)}, s4
    s_add_u32 {sr(S_AOFF)}, {sr(S_AOFF)}, {OFF_XN}
    s_lshl_b32 {sr(S_BOFF)}, {sr(S_W)}, 21
    s_lshl_b32 s4, {sr(S_NT)}, 7
    s_add_u32 {sr(S_BOFF)}, {sr(S_BOFF)}, s4
    s_lshl_b32 {sr(S_M2)}, {sr(S_W)}, {15 if E2N() == 8 else 14}
    s_cmp_ge_u32 {sr(S_J)}, 2
    s_cbranch_scc1 {l2}
    s_lshl_b32 s4, {sr(S_NT)}, 15
    s_lshl_b32 s5, {sr(S_MT)}, 11
    s_add_u32 s4, s4, s5
    s_lshl_b32 s5, {sr(S_W)}, 9
    s_add_u32 s4, s4, s5
    s_add_u32 {sr(S_COFF)}, s4, {OFF_KX}
    s_branch {l3}
    {l2}:
    s_lshl_b32 s4, {sr(S_MT)}, 2
    s_add_u32 s4, s4, {sr(S_W)}
    s_lshl_b32 s4, s4, 18
    s_lshl_b32 s5, {sr(S_NT)}, 10
    s_add_u32 s4, s4, s5
    s_add_u32 {sr(S_COFF)}, s4, {OFF_VT}
    {l3}:
    s_waitcnt lgkmcnt(0)
    """)

def ln0_probe(a):
    if CFG.get('ln0a', 1):
        a(f"v_mov_b32 v6, {C_LN0*4}")
        a(f"buffer_load_dword v7, v6, {sr(S_DBG,4)}, 0 offen sc1")

def ln0_check(a):
    if CFG.get('ln0a', 1):
        top = a.label("Ll0"); ok = a.label("Ll0o")
        a(f"""
        {top}:
        s_waitcnt vmcnt(0)
        v_cmp_le_u32 vcc, 16, v7
        s_cbranch_vccnz {ok}
        s_sub_u32 {sr(S_GBUD)}, {sr(S_GBUD)}, 1
        s_cbranch_scc1 L_abort
        s_sleep 2
        buffer_load_dword v7, v6, {sr(S_DBG,4)}, 0 offen sc1
        s_branch {top}
        {ok}:
        """)

def kv0_loop(a):
    a("L_kv0:")
    tl_stamp(a, 1)
    tl_fine2(a, 0)
    a(f"s_cmp_ge_u32 {sr(S_J)}, 2")
    a("s_cbranch_scc1 L_kv0V")
    e2_main8(a, False)
    ln0_probe(a)
    e2_reduce(a)
    tl_fine2(a, 11)
    ln0_check(a)
    ep_kv0(a, False)
    a("s_branch L_kv0done")
    a("L_kv0V:")
    e2_main8(a, True)
    ln0_probe(a)
    e2_reduce(a)
    tl_fine2(a, 11)
    ln0_check(a)
    ep_kv0(a, True)
    a("L_kv0done:")
    tl_fine2(a, 12)
    if CFG.get('kvchain', 1):
        if CFG.get('tl'):
            a(f"s_lshl_b32 s68, {sr(S_KIND)}, 4")
            a("s_or_b32 s68, s68, 8")
            tl_store_nowait(a, "s68")
        a(f"""
        s_add_u32 {sr(S_KIND)}, {sr(S_KIND)}, 1
        s_cmp_ge_u32 {sr(S_T)}, 16
        s_cbranch_scc1 L_kv0last
        s_cmp_ge_u32 {sr(S_KIND)}, 3
        s_cbranch_scc1 L_kv0last
        s_mov_b32 {sr(S_PDONE)}, {sr(S_DONE)}
        s_barrier
        """)
        kv0_setup(a)
        e2_wpro(a)
        a("s_branch L_kv0")
        a("L_kv0last:")
        drain_signal(a)
        a("L_kv0end:")
        return
    drain_signal(a)
    if CFG.get('tl'):
        a(f"s_lshl_b32 s68, {sr(S_KIND)}, 4")
        a("s_or_b32 s68, s68, 8")
        tl_store_nowait(a, "s68")
    a(f"""
    s_add_u32 {sr(S_KIND)}, {sr(S_KIND)}, 1
    s_cmp_ge_u32 {sr(S_T)}, 16
    s_cbranch_scc1 L_kv0end
    s_cmp_ge_u32 {sr(S_KIND)}, 3
    s_cbranch_scc1 L_kv0end
    """)
    kv0_setup(a)
    e2_wpro(a)
    a("s_branch L_kv0")
    a("L_kv0end:")

V3_TR, V3_WD, V3_XO, V3_RW, V3_RR, V_PA, V_PT, V_PV = 208, 210, 211, 212, 213, 214, 215, 216
V3_EX = 204
X3 = lambda p, ii: 32 + (p*2 + ii)*4
W3 = lambda p, t: (p*4 + t)*4
ACC3, XG3, OWN3, PART3, T3 = 160, 192, 196, 200, 218
S_CB, S_SEG, S_NSEG, S_XO, S_GO, S_NAOFF, S_RDY = 30, 31, 32, 33, 34, 35, 36
S_PSEG, S_EXI, S_EXO = 37, 39, 29
S_MSK = 80
CN_PAIR = 128
EXSEG = 32*4096

def e3_setup(a):
    load_srd(a, S_B, KA_WO, 8*MB)
    a(f"""
    v_lshrrev_b32 v1, 2, v0
    v_lshlrev_b32 v1, 11, v1
    v_and_b32 v2, 3, v0
    v_lshlrev_b32 v2, 4, v2
    v_add_u32 {vr(V3_WD)}, v1, v2                 ; (l>>2)*2048 + (l&3)*16
    v_lshrrev_b32 v1, 4, v0
    v_lshlrev_b32 v1, 2, v1
    v_bfe_u32 v2, v0, 2, 2
    v_add_u32 v1, v1, v2                          ; k = 4g + r
    v_lshlrev_b32 v1, 6, v1
    v_and_b32 v2, 3, v0
    v_lshlrev_b32 v2, 3, v2
    v_add_u32 v1, v1, v2
    s_lshl_b32 s4, {sr(S_W)}, 14
    v_add_u32 {vr(V3_TR)}, s4, v1
    v_add_u32 {vr(V3_TR+1)}, 0x10000, {vr(V3_TR)}
    v_and_b32 v1, 15, v0
    v_lshlrev_b32 v1, 11, v1
    v_lshrrev_b32 v2, 4, v0
    v_lshlrev_b32 v2, 3, v2
    v_add_u32 {vr(V3_XO)}, v1, v2                 ; i*2048 + g*8
    v_lshlrev_b32 v1, 4, v0
    s_lshl_b32 s4, {sr(S_W)}, 13
    v_add_u32 {vr(V3_RW)}, s4, v1
    s_lshl_b32 s4, {sr(S_W)}, 10
    v_add_u32 {vr(V3_RR)}, s4, v1
    v_mov_b32 {vr(V3_EX)}, {vr(V3_RR)}
    s_and_b32 s5, {sr(S_CB)}, 1
    s_lshl_b32 s5, s5, 2
    s_add_u32 s5, s5, {sr(S_W)}
    s_lshl_b32 {sr(S_T0+8)}, s5, 20
    s_lshl_b32 {sr(S_M2)}, {sr(S_W)}, 14
    v_mov_b32 {vr(ACC3)}, -1
    v_mov_b32 {vr(ACC3+1)}, -1
    v_mov_b32 {vr(ACC3+2)}, -1
    v_mov_b32 {vr(ACC3+3)}, -1
    s_mov_b64 s[6:7], {sr(S_MSK,2)}
    L_e3arm:
    s_ff1_i32_b64 s4, s[6:7]
    s_bitset0_b64 s[6:7], s4
    s_lshl_b32 s4, s4, 17
    s_lshl_b32 s5, {sr(S_CB)}, 12
    s_add_u32 s4, s4, s5
    s_add_u32 s4, s4, {OFF_EX}
    buffer_store_dwordx4 {vr(ACC3,4)}, {vr(V3_EX)}, {sr(S_WS,4)}, s4 offen
    s_cmp_lg_u64 s[6:7], 0
    s_cbranch_scc1 L_e3arm
    s_waitcnt lgkmcnt(0)
    """)
    def batch(b):
        a(f"""
        s_xor_b32 s4, {sr(S_CB)}, {b >> 1}
        s_lshl_b32 s4, s4, 6
        s_add_u32 {sr(S_BOFF)}, {sr(S_T0+8)}, s4
        s_add_u32 {sr(S_BOFF)}, {sr(S_BOFF)}, {(b & 1)*256*2048}
        """)
        for i in range(16):
            a(f"""
            s_add_u32 m0, {sr(S_M2)}, {(b & 1)*65536 + i*1024}
            s_nop 0
            buffer_load_dwordx4 {vr(V3_WD)}, {sr(S_B,4)}, {sr(S_BOFF)} offen lds
            s_add_u32 {sr(S_BOFF)}, {sr(S_BOFF)}, {16*2048}
            """)
    def reads(b):
        n = 0
        for p in range(8):
            for t in range(2):
                for sec in range(2):
                    a(f"ds_read_b64_tr_b16 {ar(W3(8*(b & 1)+p, 2*(b >> 1)+t) + 2*sec, 2)}, {vr(V3_TR + (b & 1))} offset:{p*2048 + sec*1024 + t*32}")
                    n += 1
                    if n % 8 == 0: a("s_waitcnt lgkmcnt(4)")
        a("s_waitcnt lgkmcnt(0)")
    batch(0); batch(1)
    for b in range(4):
        a(f"s_waitcnt vmcnt({16 if b < 3 else 0})")
        reads(b)
        if b < 2: batch(b + 2)
    a("s_barrier")
    a(f"""
    s_lshr_b32 s4, {sr(S_T)}, 1
    s_lshl_b32 s5, {sr(S_J)}, 4
    s_add_u32 s4, s4, s5
    s_lshl_b32 s4, s4, 8
    s_add_u32 {sr(S_DONE)}, s4, {OFF_CNT + CN_PAIR*256}
    """)
    a(signal_op(sr(S_DONE)))
    load_srd(a, S_B, KA_X, 4*MB)
    load_srd(a, S_OUT, KA_OUT, 4*MB)
    a(f"""
    s_mov_b32 {sr(S_A)}, {sr(S_WS)}
    s_mov_b32 {sr(S_A+1)}, {sr(S_WS+1)}
    s_mov_b32 {sr(S_A+3)}, 0x20000
    s_waitcnt lgkmcnt(0)
    """)
    wait_word(a, S_WS, sr(S_DONE), 2, 2)

V_OD = 205
def OSTEP(): return 2048 if CFG.get('oseg', 1) else 16384
def V_OA(): return V_OD if CFG.get('oseg', 1) else V_AD
def e3_xbase(a, dst, seg):
    if CFG.get('oseg', 1):
        a(f"""
        s_lshl_b32 s4, {sr(seg)}, 18
        s_and_b32 s5, {sr(S_CB)}, 1
        s_lshl_b32 s5, s5, 2
        s_add_u32 s5, s5, {sr(S_W)}
        s_lshl_b32 s5, s5, 15
        s_add_u32 s4, s4, s5
        s_add_u32 {sr(dst)}, s4, {OFF_OX}
        """)
        return
    a(f"""
    s_lshr_b32 s4, {sr(seg)}, 3
    s_lshl_b32 s4, s4, 21
    s_and_b32 s5, {sr(seg)}, 7
    s_lshl_b32 s5, s5, 9
    s_add_u32 s4, s4, s5
    s_and_b32 s5, {sr(S_CB)}, 1
    s_lshl_b32 s5, s5, 2
    s_add_u32 s5, s5, {sr(S_W)}
    s_lshl_b32 s5, s5, 18
    s_add_u32 s4, s4, s5
    s_add_u32 {sr(dst)}, s4, {OFF_OX}
    """)

def e3_polladdr(a, seg):
    a(f"""
    s_lshl_b32 s4, {sr(seg)}, 8
    s_add_u32 s4, s4, {OFF_CNT + CN_AT*256}
    v_mov_b32 {vr(V_PA)}, s4
    s_lshr_b32 s5, {sr(seg)}, 3
    s_lshl_b32 s5, s5, 8
    s_add_u32 s5, s5, {OFF_CNT + CN_DN*256}
    v_writelane_b32 {vr(V_PA)}, s5, 1
    """)

def e3_ld(p, ii, srd, soff):
    return f"buffer_load_dwordx4 {vr(X3(p,ii),4)}, {vr(V_OA())}, {sr(srd,4)}, {sr(soff)} offen offset:{ii*256}{CFG.get('e3mod', ' sc1')}"

def e3_finaddr(a, seg):
    a(f"""
    s_lshl_b32 s4, {sr(seg)}, 16
    s_lshr_b32 s5, {sr(S_W)}, 1
    s_lshl_b32 s6, s5, 15
    s_add_u32 s4, s4, s6
    s_lshl_b32 s6, {sr(S_CB)}, 6
    s_add_u32 s4, s4, s6
    s_and_b32 s7, {sr(S_W)}, 1
    s_lshl_b32 s6, s7, 5
    s_add_u32 {sr(S_XO)}, s4, s6
    s_lshr_b32 s4, {sr(seg)}, 3
    s_lshl_b32 s4, s4, 19
    s_lshl_b32 s6, {sr(S_CB)}, 14
    s_add_u32 s4, s4, s6
    s_and_b32 s6, {sr(seg)}, 7
    s_lshl_b32 s6, s6, 9
    s_add_u32 s4, s4, s6
    s_lshl_b32 s6, s5, 8
    s_add_u32 s4, s4, s6
    s_lshl_b32 s6, s7, 3
    s_add_u32 s4, s4, s6
    s_add_u32 {sr(S_GO)}, s4, {OFF_GS}
    s_lshl_b32 s4, {sr(seg)}, 17
    s_xor_b32 s5, {sr(S_CB)}, 1
    s_lshl_b32 s5, s5, 12
    s_add_u32 s4, s4, s5
    s_add_u32 {sr(S_EXI)}, s4, {OFF_EX}
    """)

def e3_xg(a):
    a(f"""
    buffer_load_dwordx2 {vr(XG3,2)}, {vr(V3_XO)}, {sr(S_B,4)}, {sr(S_XO)} offen
    buffer_load_dwordx2 {vr(XG3+2,2)}, {vr(V_AD)}, {sr(S_WS,4)}, {sr(S_GO)} offen sc1
    """)

def e3_part():
    return f"buffer_load_dwordx4 {vr(PART3,4)}, {vr(V3_EX)}, {sr(S_WS,4)}, {sr(S_EXI)} offen sc1"

def e3_finish(a, vm):
    top = a.label("Le3f"); retry = a.label("Le3r")
    T = T3
    a(f"""
    s_waitcnt vmcnt({vm})
    {top}:
    v_max3_u32 {vr(T)}, {vr(PART3)}, {vr(PART3+1)}, {vr(PART3+2)}
    v_max_u32 {vr(T)}, {vr(T)}, {vr(PART3+3)}
    v_cmp_eq_u32 vcc, -1, {vr(T)}
    s_cbranch_vccnz {retry}
    v_pk_add_f32 {vr(PART3,2)}, {vr(PART3,2)}, {vr(OWN3,2)}
    v_pk_add_f32 {vr(PART3+2,2)}, {vr(PART3+2,2)}, {vr(OWN3+2,2)}
    v_lshlrev_b32 {vr(T)}, 16, {vr(XG3)}
    v_and_b32 {vr(T+1)}, 0xffff0000, {vr(XG3)}
    v_lshlrev_b32 {vr(T+2)}, 16, {vr(XG3+1)}
    v_and_b32 {vr(T+3)}, 0xffff0000, {vr(XG3+1)}
    v_lshlrev_b32 {vr(T+4)}, 16, {vr(XG3+2)}
    v_and_b32 {vr(T+5)}, 0xffff0000, {vr(XG3+2)}
    v_lshlrev_b32 {vr(T+6)}, 16, {vr(XG3+3)}
    v_and_b32 {vr(T+7)}, 0xffff0000, {vr(XG3+3)}
    v_fma_f32 {vr(T)}, {vr(PART3)}, {vr(T+4)}, {vr(T)}
    v_fma_f32 {vr(T+1)}, {vr(PART3+1)}, {vr(T+5)}, {vr(T+1)}
    v_fma_f32 {vr(T+2)}, {vr(PART3+2)}, {vr(T+6)}, {vr(T+2)}
    v_fma_f32 {vr(T+3)}, {vr(PART3+3)}, {vr(T+7)}, {vr(T+3)}
    v_cvt_pk_bf16_f32 {vr(T+8)}, {vr(T)}, {vr(T+1)}
    v_cvt_pk_bf16_f32 {vr(T+9)}, {vr(T+2)}, {vr(T+3)}
    buffer_store_dwordx2 {vr(T+8,2)}, {vr(V3_XO)}, {sr(S_OUT,4)}, {sr(S_XO)} offen{CFG.get('outmod', '')}
    """)
    a.cold3.append(f"""{retry}:
    s_sub_u32 {sr(S_GBUD)}, {sr(S_GBUD)}, 1
    s_cbranch_scc1 L_abort
    {e3_part()}
    s_waitcnt vmcnt(0)
    s_branch {top}""")

def e3_data(a):
    XD = lambda p, ii: 32 + (p*2 + ii)*4
    nof = a.label("Le3dn"); top = a.label("Le3dp"); ok = a.label("Le3do"); st = a.label("Le3ds"); sok = a.label("Le3dk"); full = a.label("Le3df")
    a("L_e3data:")
    a(f"""
    s_cmp_lt_i32 {sr(S_PSEG)}, 0
    s_cbranch_scc1 {nof}
    """)
    e3_finaddr(a, S_PSEG)
    e3_xg(a)
    a(e3_part())
    e3_finish(a, 0)
    a(f"""
    s_mov_b32 {sr(S_PSEG)}, -1
    {nof}:
    s_sub_u32 s4, {sr(S_SEG)}, 4
    s_lshl_b32 s4, s4, 8
    s_add_u32 s4, s4, {OFF_CNT + CN_AT*256}
    v_mov_b32 {vr(V_PA)}, s4
    s_lshr_b32 s5, {sr(S_SEG)}, 3
    s_lshl_b32 s5, s5, 8
    s_add_u32 s5, s5, {OFF_CNT + CN_DN*256}
    v_writelane_b32 {vr(V_PA)}, s5, 1
    {top}:
    buffer_load_dword {vr(V_PV)}, {vr(V_PA)}, {sr(S_WS,4)}, 0 offen sc1
    s_waitcnt vmcnt(0)
    v_cmp_ge_u32 vcc, {vr(V_PV)}, {vr(V_PT)}
    s_cmp_eq_u64 vcc, -1
    s_cbranch_scc1 {ok}
    s_sleep {CFG.get('e3sleep', 4)}
    s_sub_u32 {sr(S_GBUD)}, {sr(S_GBUD)}, 1
    s_cbranch_scc0 {top}
    s_branch L_abort
    {ok}:
    """)
    e3_xbase(a, S_AOFF, S_SEG)
    a(f"""
    s_lshl_b32 s4, {sr(S_SEG)}, 17
    s_lshl_b32 s5, {sr(S_CB)}, 12
    s_add_u32 s4, s4, s5
    s_add_u32 {sr(S_EXO)}, s4, {OFF_EX}
    s_ff1_i32_b64 {sr(S_NSEG)}, {sr(S_MSK,2)}
    s_mov_b32 {sr(S_RDY)}, 0
    v_lshrrev_b32 {vr(T3)}, 4, v0
    v_lshlrev_b32 {vr(T3)}, 13, {vr(T3)}
    v_and_b32 {vr(T3+1)}, 15, v0
    v_lshlrev_b32 {vr(T3+1)}, 4, {vr(T3+1)}
    v_add_u32 {vr(T3)}, {vr(T3)}, {vr(T3+1)}
    v_add_u32 {vr(T3)}, {3*2048 + 256 + 3*512}, {vr(T3)}
    {st}:
    buffer_load_dword {vr(T3+1)}, {vr(T3)}, {sr(S_WS,4)}, {sr(S_AOFF)} offen sc1
    s_waitcnt vmcnt(0)
    v_cmp_eq_u32 vcc, -1, {vr(T3+1)}
    s_cbranch_vccz {full}
    s_sleep {CFG.get('odsleep', 2)}
    s_sub_u32 {sr(S_GBUD)}, {sr(S_GBUD)}, 1
    s_cbranch_scc0 {st}
    s_branch L_abort
    {full}:
    s_mov_b32 {sr(S_NAOFF)}, {sr(S_AOFF)}
    """)
    tl_stamp(a, 1)
    for p in range(16):
        for ii in range(2):
            a(f"buffer_load_dwordx4 {vr(XD(p,ii),4)}, {vr(V_OA())}, {sr(S_WS,4)}, {sr(S_NAOFF)} offen offset:{ii*256} sc1")
        if p < 15: a(f"s_add_u32 {sr(S_NAOFF)}, {sr(S_NAOFF)}, {OSTEP()}")
    a(f"v_mov_b32 {vr(T3+1)}, 0")
    for p in range(16):
        a(f"s_waitcnt vmcnt({30 - 2*p})")
        n = 0
        for t in range(4):
            for ii in range(2):
                acc = ACC3 + ((t >> 1)*4 + ii*2 + (t & 1))*4
                a(f"v_mfma_f32_16x16x32_bf16 {vr(acc,4)}, {ar(W3(p,t),4)}, {vr(XD(p,ii),4)}, {'0' if p == 0 else vr(acc,4)}")
                if n < 4: a(f"v_max3_u32 {vr(T3+1)}, {vr(T3+1)}, {vr(XD(p,0)+2*n)}, {vr(XD(p,0)+2*n+1)}")
                n += 1
    a(f"""
    v_cmp_eq_u32 vcc, -1, {vr(T3+1)}
    s_cbranch_vccz L_e3red
    s_sub_u32 {sr(S_GBUD)}, {sr(S_GBUD)}, 1
    s_cbranch_scc0 {full}
    s_branch L_abort
    """)

def e3_loop(a):
    a.cold3 = []
    a(f"""
    v_mov_b32 {vr(V_PT)}, 8
    s_mov_b32 s4, 4
    v_writelane_b32 {vr(V_PT)}, s4, 1
    s_ff1_i32_b64 {sr(S_SEG)}, {sr(S_MSK,2)}
    s_bitset0_b64 {sr(S_MSK,2)}, {sr(S_SEG)}
    s_mov_b32 {sr(S_PSEG)}, -1
    L_e3cold:
    """)
    tl_stamp(a, 0)
    if CFG.get('odata'):
        a(f"s_cmp_ge_u32 {sr(S_SEG)}, {CFG['odata']}")
        a("s_cbranch_scc1 L_e3data")
    e3_polladdr(a, S_SEG)
    top = a.label("Le3p"); ok = a.label("Le3o")
    a(f"""
    {top}:
    buffer_load_dword {vr(V_PV)}, {vr(V_PA)}, {sr(S_WS,4)}, 0 offen sc1
    s_waitcnt vmcnt(0)
    v_cmp_ge_u32 vcc, {vr(V_PV)}, {vr(V_PT)}
    s_cmp_eq_u64 vcc, -1
    s_cbranch_scc1 {ok}
    s_sleep {CFG.get('e3sleep', 4)}
    s_sub_u32 {sr(S_GBUD)}, {sr(S_GBUD)}, 1
    s_cbranch_scc0 {top}
    s_branch L_abort
    {ok}:
    """)
    e3_xbase(a, S_AOFF, S_SEG)
    for p in range(8):
        a(e3_ld(p, 0, S_WS, S_AOFF)); a(e3_ld(p, 1, S_WS, S_AOFF))
        a(f"s_add_u32 {sr(S_AOFF)}, {sr(S_AOFF)}, {OSTEP()}")
    pad_ops(a, 2)
    a("L_e3top:")
    tl_stamp(a, 1)
    a(f"""
    s_cmp_lt_i32 {sr(S_PSEG)}, 0
    s_cselect_b32 {sr(S_T0+8)}, {sr(S_SEG)}, {sr(S_PSEG)}
    """)
    e3_finaddr(a, S_T0+8)
    a(f"""
    s_lshl_b32 s4, {sr(S_SEG)}, 17
    s_lshl_b32 s5, {sr(S_CB)}, 12
    s_add_u32 s4, s4, s5
    s_add_u32 {sr(S_EXO)}, s4, {OFF_EX}
    s_ff1_i32_b64 {sr(S_NSEG)}, {sr(S_MSK,2)}
    s_max_i32 s7, {sr(S_NSEG)}, 0
    s_mov_b32 {sr(S_T0+8)}, s7
    """)
    e3_polladdr(a, S_T0+8)
    e3_xg(a)
    a(f"buffer_load_dword {vr(V_PV)}, {vr(V_PA)}, {sr(S_WS,4)}, 0 offen sc1")
    e3_xbase(a, S_NAOFF, S_T0+8)
    for p in range(16):
        a(f"s_waitcnt vmcnt({19 if p < 8 else 14 if p == 8 else 15})")
        if p == 8:
            a(f"""
            v_cmp_ge_u32 vcc, {vr(V_PV)}, {vr(V_PT)}
            s_cmp_eq_u64 vcc, -1
            s_cselect_b32 {sr(S_RDY)}, 1, 0
            s_cmp_lt_i32 {sr(S_NSEG)}, 0
            s_cselect_b32 {sr(S_RDY)}, 0, {sr(S_RDY)}
            s_cmp_eq_u32 {sr(S_RDY)}, 1
            s_cselect_b32 {sr(S_A+2)}, {WS_BYTES}, 0
            {e3_part()}
            """)
        for t in range(4):
            for ii in range(2):
                acc = ACC3 + ((t >> 1)*4 + ii*2 + (t & 1))*4
                a(f"v_mfma_f32_16x16x32_bf16 {vr(acc,4)}, {ar(W3(p,t),4)}, {vr(X3(p,ii),4)}, {'0' if p == 0 else vr(acc,4)}")
        if p < 8:
            a(e3_ld(p + 8, 0, S_WS, S_AOFF)); a(e3_ld(p + 8, 1, S_WS, S_AOFF))
            a(f"s_add_u32 {sr(S_AOFF)}, {sr(S_AOFF)}, {OSTEP()}")
        else:
            a(e3_ld(p - 8, 0, S_A, S_NAOFF)); a(e3_ld(p - 8, 1, S_A, S_NAOFF))
            a(f"s_add_u32 {sr(S_NAOFF)}, {sr(S_NAOFF)}, {OSTEP()}")
    a("L_e3red:")
    a("s_nop 7")
    for q in range(8): a(f"ds_write_b128 {vr(V3_RW)}, {vr(ACC3+4*q,4)} offset:{q*1024}")
    a("s_waitcnt lgkmcnt(0)")
    a("s_barrier")
    for hb in (1, 0):
        for src in range(4): a(f"ds_read_b128 {vr(ACC3+16*hb+4*src,4)}, {vr(V3_RR)} offset:{src*8192 + hb*4096}")
    a(f"""
    v_xor_b32 {vr(V3_RW)}, 32768, {vr(V3_RW)}
    v_xor_b32 {vr(V3_RR)}, 32768, {vr(V3_RR)}
    """)
    def sum4(b, d):
        a(f"""
        v_pk_add_f32 {vr(b,2)}, {vr(b,2)}, {vr(b+4,2)}
        v_pk_add_f32 {vr(b+2,2)}, {vr(b+2,2)}, {vr(b+6,2)}
        v_pk_add_f32 {vr(b+8,2)}, {vr(b+8,2)}, {vr(b+12,2)}
        v_pk_add_f32 {vr(b+10,2)}, {vr(b+10,2)}, {vr(b+14,2)}
        v_pk_add_f32 {vr(d,2)}, {vr(b,2)}, {vr(b+8,2)}
        v_pk_add_f32 {vr(d+2,2)}, {vr(b+2,2)}, {vr(b+10,2)}
        """)
    a("s_waitcnt lgkmcnt(4)")
    sum4(ACC3+16, ACC3+16)
    a(f"buffer_store_dwordx4 {vr(ACC3+16,4)}, {vr(V3_EX)}, {sr(S_WS,4)}, {sr(S_EXO)} offen")
    nofin = a.label("Le3n"); fin = a.label("Le3d")
    a(f"""
    s_cmp_lt_i32 {sr(S_PSEG)}, 0
    s_cbranch_scc1 {nofin}
    """)
    e3_finish(a, 17)
    a(f"{fin}:")
    a.cold3.append(f"""{nofin}:
    buffer_store_dword {vr(V_ONE)}, {vr(V_OOB)}, {sr(S_WS,4)}, 0 offen
    s_branch {fin}""")
    a("s_waitcnt lgkmcnt(0)")
    sum4(ACC3, OWN3)
    if CFG.get('tl'):
        a(f"s_lshl_b32 s68, {sr(S_SEG)}, 4")
        a("s_or_b32 s68, s68, 7")
        tl_store_nowait(a, "s68")
    a(f"""
    s_mov_b32 {sr(S_PSEG)}, {sr(S_SEG)}
    s_cmp_lt_i32 {sr(S_NSEG)}, 0
    s_cbranch_scc1 L_e3tail
    s_mov_b32 {sr(S_SEG)}, {sr(S_NSEG)}
    s_bitset0_b64 {sr(S_MSK,2)}, {sr(S_SEG)}
    s_cmp_eq_u32 {sr(S_RDY)}, 0
    s_cbranch_scc1 L_e3cold
    s_mov_b32 {sr(S_AOFF)}, {sr(S_NAOFF)}
    """)
    tl_stamp(a, 0)
    a("""
    s_branch L_e3top
    L_e3tail:
    """)
    e3_finaddr(a, S_PSEG)
    e3_xg(a)
    a(e3_part())
    e3_finish(a, 0)
    a("""
    s_waitcnt vmcnt(0)
    s_branch L_e3end
    """)
    if CFG.get('odata'): e3_data(a)
    for c in a.cold3: a(c)
    a("L_e3end:")

AQ, AK, AKM, AV, AVM = 32, 64, 96, 112, 144
A_ONE = 156
ASC = 160
APX, APA, APB = 180, 188, 196
def att_setup_regs(a):
    a(f"""
    v_and_b32 v1, 15, v0
    v_lshrrev_b32 v2, 4, v0
    v_lshlrev_b32 v4, 16, v2
    v_lshlrev_b32 v5, 4, v1
    v_add_u32 {vr(V_VD)}, v4, v5                  ; g*65536 + n*16
    v_bfe_u32 v4, v1, 2, 1
    v_lshlrev_b32 v4, 2, v4
    v_lshrrev_b32 v5, 3, v1
    v_lshlrev_b32 v5, 1, v5
    v_add_u32 v4, v4, v5
    v_and_b32 v5, 1, v1
    v_add_u32 v4, v4, v5
    v_lshlrev_b32 v4, 4, v4
    v_lshlrev_b32 v5, 7, v2
    v_add_u32 {vr(V_KMD)}, v4, v5
    v_mov_b32 {vr(V_NB)}, {fbits(-3.0e38):#x}
    v_lshlrev_b32 v4, 2, v2
    """)
    for r in range(4):
        a(f"""
        v_add_u32 v5, {r}, v4
        v_cmp_le_u32 {sr(S_MASK+2*r,2)}, v5, v1
        """)

def att_km_loads(so):
    l = [f"buffer_load_dwordx4 {vr(AKM+4*c,4)}, {vr(V_KMD)}, {sr(S_WS,4)}, {so} offen offset:{c*1024} sc1" for c in range(4)]
    l += [f"buffer_load_dword {vr(AVM+2*c+t)}, {vr(V_L4)}, {sr(S_WS,4)}, {so} offen offset:{c*1024+512+t*256} sc1" for c in range(4) for t in range(2)]
    return l

def xreduce(a, M, T, op):
    a(f"""
    v_mov_b32 {vr(T)}, {vr(M)}
    s_nop 1
    v_permlane32_swap_b32 {vr(T)}, {vr(M)}
    {op} {vr(M)}, {vr(M)}, {vr(T)}
    v_mov_b32 {vr(T)}, {vr(M)}
    s_nop 1
    v_permlane16_swap_b32 {vr(T)}, {vr(M)}
    {op} {vr(M)}, {vr(M)}, {vr(T)}
    """)

def att_task(a):
    sSM, sH, sQ, sK, sV, sKM, sO = [S_T0 + k for k in range(7)]
    a(f"""
    s_and_b32 {sr(sSM)}, {sr(S_NT)}, 7
    s_lshr_b32 {sr(sH)}, {sr(S_NT)}, 3
    s_lshl_b32 {sr(sH)}, {sr(sH)}, 2
    s_add_u32 {sr(sH)}, {sr(sH)}, {sr(S_W)}
    s_lshl_b32 s4, {sr(S_MT)}, 21
    s_lshl_b32 s5, {sr(sH)}, 16
    s_add_u32 s4, s4, s5
    s_lshl_b32 s5, {sr(sSM)}, 9
    s_add_u32 s4, s4, s5
    s_add_u32 {sr(sQ)}, s4, {OFF_QX}
    s_add_u32 {sr(sK)}, s4, {OFF_KX}
    s_add_u32 {sr(sO)}, s4, {OFF_OX}
    s_lshl_b32 s4, {sr(S_MT)}, 3
    s_add_u32 s4, s4, {sr(sSM)}                ; segment
    {f'''s_lshl_b32 s5, s4, 18
    s_lshl_b32 s6, {sr(sH)}, 13
    s_add_u32 s5, s5, s6
    s_add_u32 {sr(sO)}, s5, {OFF_OX}''' if CFG.get('oseg', 1) else ''}
    s_lshl_b32 s5, s4, 18
    s_lshl_b32 s6, {sr(sH)}, 11
    s_add_u32 s5, s5, s6
    s_add_u32 {sr(sV)}, s5, {OFF_VT}
    s_lshl_b32 s5, s4, 17
    s_lshl_b32 s6, {sr(sH)}, 12
    s_add_u32 s5, s5, s6
    s_add_u32 {sr(sKM)}, s5, {OFF_KM}
    """)
    for c in range(4):
        for t in range(2):
            a(f"buffer_load_dwordx4 {vr(AK+16*t+4*c,4)}, {vr(V_AD)}, {sr(S_WS,4)}, {sr(sK)} offen offset:{t*256} sc1")
            a(f"buffer_load_dwordx4 {vr(AQ+16*t+4*c,4)}, {vr(V_AD)}, {sr(S_WS,4)}, {sr(sQ)} offen offset:{t*256} sc1")
        if c < 3:
            a(f"s_add_u32 {sr(sK)}, {sr(sK)}, 16384")
            a(f"s_add_u32 {sr(sQ)}, {sr(sQ)}, 16384")
    for dt in range(8):
        a(f"buffer_load_dwordx4 {vr(AV+4*dt,4)}, {vr(V_VD)}, {sr(S_WS,4)}, {sr(sV)} offen offset:{dt*256} sc1")
    km = att_km_loads(sr(sKM))
    for ln in km: a(ln)
    a(f"v_mov_b32 {vr(AVM+8)}, 0")
    a(f"v_mov_b32 {vr(AVM+9)}, 0")
    for r in range(4): a(f"v_mov_b32 {vr(A_ONE+r)}, 0x3f803f80")
    for k in range(APA, APB + 8): a(f"v_mov_b32 {vr(k)}, 0")
    top = a.label("Latp"); ok = a.label("Lato")
    a(f"{top}:")
    a("s_waitcnt vmcnt(0)")
    t = 1
    regs = [AKM + k for k in range(16)] + [AVM + k for k in range(8)]
    a(f"v_max3_u32 {vr(t)}, {vr(regs[0])}, {vr(regs[1])}, {vr(regs[2])}")
    rr = regs[3:]
    while len(rr) >= 2:
        a(f"v_max3_u32 {vr(t)}, {vr(t)}, {vr(rr[0])}, {vr(rr[1])}"); rr = rr[2:]
    if rr: a(f"v_max_u32 {vr(t)}, {vr(t)}, {vr(rr[0])}")
    a(f"""
    v_cmp_eq_u32 vcc, -1, {vr(t)}
    s_cbranch_vccz {ok}
    s_sleep {CFG.get('atsleep', 16)}
    s_sub_u32 {sr(S_GBUD)}, {sr(S_GBUD)}, 1
    s_cbranch_scc1 L_abort
    """)
    for ln in km: a(ln)
    a(f"s_branch {top}")
    a(f"{ok}:")
    Dm = [ASC, ASC + 8]; D0 = [ASC + 4, ASC + 12]; D1 = ASC + 16
    def sc(d, kreg, qt, c):
        a(f"v_mfma_f32_16x16x32_bf16 {vr(d,4)}, {vr(kreg,4)}, {vr(AQ+16*qt+4*c,4)}, {'0' if c == 0 else vr(d,4)}")
    for c in range(4):
        sc(Dm[0], AKM+4*c, 0, c); sc(D0[0], AK+4*c, 0, c)
        sc(Dm[1], AKM+4*c, 1, c); sc(D0[1], AK+4*c, 1, c); sc(D1, AK+16+4*c, 1, c)
    a("s_nop 7")
    csc = fbits(128**-0.5 * 1.4426950408889634)
    a(f"s_mov_b32 s4, {csc:#x}")
    M, T = 2, 3
    for qt in range(2):
        dm = Dm[qt]; d0 = D0[qt]
        masked = d0 if qt == 0 else D1
        for r in range(4):
            a(f"v_cndmask_b32 {vr(masked+r)}, {vr(V_NB)}, {vr(masked+r)}, {sr(S_MASK+2*r,2)}")
        a(f"v_max3_f32 {vr(M)}, {vr(dm)}, {vr(dm+1)}, {vr(d0)}")
        a(f"v_max3_f32 {vr(M)}, {vr(M)}, {vr(d0+1)}, {vr(d0+2)}")
        a(f"v_max_f32 {vr(M)}, {vr(M)}, {vr(d0+3)}")
        if qt == 1:
            a(f"v_max3_f32 {vr(M)}, {vr(M)}, {vr(D1)}, {vr(D1+1)}")
            a(f"v_max3_f32 {vr(M)}, {vr(M)}, {vr(D1+2)}, {vr(D1+3)}")
        xreduce(a, M, T, "v_max_f32")
        a(f"v_mul_f32 {vr(M)}, s4, {vr(M)}")
        vals = [dm, dm+1] + [d0+r for r in range(4)] + ([D1+r for r in range(4)] if qt == 1 else [])
        for v in vals: a(f"v_fma_f32 {vr(v)}, {vr(v)}, s4, -{vr(M)}")
        for v in vals: a(f"v_exp_f32 {vr(v)}, {vr(v)}")
        px = APX + 4*qt
        a(f"v_cvt_pk_bf16_f32 {vr(APA+4*qt)}, {vr(dm)}, {vr(dm+1)}")
        a(f"v_cvt_pk_bf16_f32 {vr(px)}, {vr(d0)}, {vr(d0+1)}")
        a(f"v_cvt_pk_bf16_f32 {vr(px+1)}, {vr(d0+2)}, {vr(d0+3)}")
        if qt == 1:
            a(f"v_cvt_pk_bf16_f32 {vr(px+2)}, {vr(D1)}, {vr(D1+1)}")
            a(f"v_cvt_pk_bf16_f32 {vr(px+3)}, {vr(D1+2)}, {vr(D1+3)}")
        else:
            a(f"v_mov_b32 {vr(px+2)}, 0")
            a(f"v_mov_b32 {vr(px+3)}, 0")
        a(f"v_mov_b32 {vr(APB+4*qt+1)}, {vr(APA+4*qt)}")
    a("s_nop 1")
    for qt in range(2):
        a(f"v_mfma_f32_16x16x32_bf16 {ar(64+4*qt,4)}, {vr(A_ONE,4)}, {vr(APX+4*qt,4)}, 0")
        for dt in range(8):
            a(f"v_mfma_f32_16x16x32_bf16 {ar(32*qt+4*dt,4)}, {vr(AV+4*dt,4)}, {vr(APX+4*qt,4)}, 0")
    for qt in range(2):
        a(f"v_mfma_f32_16x16x32_bf16 {ar(64+4*qt,4)}, {vr(A_ONE,4)}, {vr(APA+4*qt,4)}, {ar(64+4*qt,4)}")
        for dt in range(8):
            pm = (APA if dt % 2 == 0 else APB) + 4*qt
            a(f"v_mfma_f32_16x16x32_bf16 {ar(32*qt+4*dt,4)}, {vr(AVM+(dt & ~1),4)}, {vr(pm,4)}, {ar(32*qt+4*dt,4)}")
    a("s_nop 7")
    for qt in range(2):
        L = 2 + qt
        a(f"v_accvgpr_read_b32 {vr(L)}, {ar(64+4*qt)}")
        a("s_nop 0")
        a(f"v_rcp_f32 {vr(L)}, {vr(L)}")
    n = 0
    for qt in range(2):
        L = 2 + qt
        for c in range(4):
            b = 32 + 12*(n % 4); n += 1
            for k in range(8): a(f"v_accvgpr_read_b32 {vr(b+k)}, {ar(32*qt+8*c+k)}")
            for k in range(8): a(f"v_mul_f32 {vr(b+k)}, {vr(b+k)}, {vr(L)}")
            for k in range(4): a(f"v_cvt_pk_bf16_f32 {vr(b+8+k)}, {vr(b+2*k)}, {vr(b+2*k+1)}")
            a(f"s_add_u32 s5, {sr(sO)}, {c*OSTEP()}")
            a(f"buffer_store_dwordx4 {vr(b+8,4)}, {vr(V_OA())}, {sr(S_WS,4)}, s5 offen offset:{qt*256} sc1")

def ln_task(a, s_rank):
    load_srd(a, S_OUT, KA_X, 4*MB)
    F = 64
    a(f"""
    v_and_b32 v1, 15, v0
    v_lshrrev_b32 v2, 4, v0
    v_lshlrev_b32 v4, 11, v1
    v_lshlrev_b32 v5, 3, v2
    v_add_u32 v4, v4, v5
    s_lshl_b32 s4, {sr(s_rank)}, 15
    s_lshl_b32 s5, {sr(S_W)}, 9
    s_add_u32 s4, s4, s5
    s_waitcnt lgkmcnt(0)
    """)
    for p in range(8):
        a(f"buffer_load_dwordx2 {vr(32+4*p,2)}, v4, {sr(S_OUT,4)}, s4 offen offset:{p*64}")
        a(f"buffer_load_dwordx2 {vr(32+4*p+2,2)}, v4, {sr(S_OUT,4)}, s4 offen offset:{p*64+32}")
    a(f"""
    s_lshl_b32 s5, {sr(S_W)}, 6
    v_lshlrev_b32 v5, 2, v1
    v_add_u32 v6, s5, v5
    v_add_u32 v6, {LSC}, v6
    v_add_u32 v7, {LSC}, v5
    """)
    tl_fine(a, 2)
    nw = CFG.get('lnw', 4) if CFG.get('lnfirst') == 2 else 0
    e2_wpro(a, 0, nw)
    nv = CFG.get('lnw2', 0) if CFG.get('lnfirst') == 2 else 0
    groups = []
    if nv:
        for j in range(4): a(f"v_mov_b32 {vr(232+j)}, {vr(V2_BD+j)}")
        for st in range(nw, nw + nv): groups += e2_wdma(st, 232)
    a(f"s_waitcnt vmcnt({4*nw})")
    tl_fine(a, 3)
    a0 = a; cnt = [0]; every = CFG.get('lnwe', 24)
    def a(txt):
        for ln in txt.split("\n"):
            a0(ln)
            if ln.strip().startswith("v_") and "permlane" not in ln:
                cnt[0] += 1
                if groups and cnt[0] % every == 0:
                    for g in groups.pop(0): a0(g)
    for d in range(32):
        a(f"v_lshlrev_b32 {vr(F+2*d)}, 16, {vr(32+d)}")
        a(f"v_and_b32 {vr(F+2*d+1)}, 0xffff0000, {vr(32+d)}")
    def total(src, region):
        for k in range(16): a(f"v_pk_add_f32 {vr(128+2*k,2)}, {vr(src+4*k,2)}, {vr(src+4*k+2,2)}")
        n = 16
        while n > 1:
            n //= 2
            for k in range(n): a(f"v_pk_add_f32 {vr(128+2*k,2)}, {vr(128+2*k,2)}, {vr(128+2*(k+n),2)}")
        a("v_add_f32 v2, v128, v129")
        xreduce(a, 2, 3, "v_add_f32")
        a(f"""
        ds_write_b32 v6, v2 offset:{region}
        s_waitcnt lgkmcnt(0)
        s_barrier
        ds_read_b32 v128, v7 offset:{region}
        ds_read_b32 v129, v7 offset:{region+64}
        ds_read_b32 v130, v7 offset:{region+128}
        ds_read_b32 v131, v7 offset:{region+192}
        s_waitcnt lgkmcnt(0)
        v_add_f32 v128, v128, v129
        v_add_f32 v130, v130, v131
        v_add_f32 v2, v128, v130
        v_mul_f32 v2, {fbits(1/1024):#x}, v2
        """)
    total(F, 0)
    a("v_mov_b32 v5, v2")
    D = 160
    for k in range(64): a(f"v_sub_f32 {vr(D+k)}, {vr(F+k)}, v5")
    for k in range(0, 64, 2): a(f"v_pk_mul_f32 {vr(D+k,2)}, {vr(D+k,2)}, {vr(D+k,2)}")
    total(D, 256)
    a(f"""
    v_cvt_pk_bf16_f32 v5, v5, v5
    v_cvt_pk_bf16_f32 v2, v2, v2
    v_lshlrev_b32 v5, 16, v5
    v_lshlrev_b32 v2, 16, v2
    v_add_f32 v2, {fbits(1e-5):#x}, v2
    v_cvt_pk_bf16_f32 v2, v2, v2
    v_lshlrev_b32 v2, 16, v2
    v_sqrt_f32 v2, v2
    s_nop 0
    v_cvt_pk_bf16_f32 v2, v2, v2
    v_lshlrev_b32 v2, 16, v2
    v_rcp_f32 v2, v2
    """)
    for k in range(64): a(f"v_sub_f32 {vr(F+k)}, {vr(F+k)}, v5")
    for d in range(32): a(f"v_cvt_pk_bf16_f32 {vr(32+d)}, {vr(F+2*d)}, {vr(F+2*d+1)}")
    for d in range(32):
        a(f"v_lshlrev_b32 {vr(F+2*d)}, 16, {vr(32+d)}")
        a(f"v_and_b32 {vr(F+2*d+1)}, 0xffff0000, {vr(32+d)}")
    for k in range(64): a(f"v_mul_f32 {vr(F+k)}, {vr(F+k)}, v2")
    for d in range(32): a(f"v_cvt_pk_bf16_f32 {vr(32+d)}, {vr(F+2*d)}, {vr(F+2*d+1)}")
    for g0 in groups:
        for g in g0: a0(g)
    a(f"""
    s_lshr_b32 s4, {sr(s_rank)}, 4
    s_lshl_b32 s4, s4, 19
    s_and_b32 s5, {sr(s_rank)}, 15
    s_lshl_b32 s5, s5, 8
    s_add_u32 s4, s4, s5
    s_lshl_b32 s5, {sr(S_W)}, 17
    s_add_u32 s4, s4, s5
    s_add_u32 s4, s4, {OFF_XN}
    """)
    for p in range(8):
        a(f"buffer_store_dwordx4 {vr(32+4*p,4)}, {vr(V_AD)}, {sr(S_WS,4)}, s4 offen sc1")
        if p < 7: a("s_add_u32 s4, s4, 16384")

S_PID, S_PCNT = 92, 93
def tl_stamp(a, i):
    if CFG.get('tl'):
        a(f"s_memrealtime s[{70+2*i}:{71+2*i}]")
        a("s_waitcnt lgkmcnt(0)")
def tl_fine(a, k):
    if CFG.get('tl') == 3:
        a("s_memrealtime s[76:77]")
        a("s_waitcnt lgkmcnt(0)")
        a(f"v_writelane_b32 v248, s76, {k}")
def tl_fine2(a, k):
    if CFG.get('tl') == 3:
        a("s_memrealtime s[76:77]")
        a(f"s_lshl_b32 s78, {sr(S_KIND)}, 4")
        a(f"s_add_u32 s78, s78, {8 + k}")
        a("s_mov_b32 s79, m0")
        a("s_mov_b32 m0, s78")
        a("s_waitcnt lgkmcnt(0)")
        a("v_writelane_b32 v248, s76, m0")
        a("s_mov_b32 m0, s79")
def tl_task_start(a):
    if CFG.get('tl'):
        tl_stamp(a, 1)
def tl_store(a, tk):
    if CFG.get('tl'):
        lab = a.label("Ltl")
        tl_stamp(a, 2)
        if not isinstance(tk, str):
            a(f"s_mov_b32 s68, {tk}"); tk = "s68"
        a(f"""
        s_cmp_lg_u32 {sr(S_W)}, 0
        s_cbranch_scc1 {lab}
        v_mov_b32 v4, 0
        v_writelane_b32 v4, {tk}, 0
        v_writelane_b32 v4, s70, 1
        v_writelane_b32 v4, s72, 2
        v_writelane_b32 v4, s74, 3
        s_lshl_b32 s4, {sr(S_PID)}, 11
        s_lshl_b32 s5, {sr(S_PCNT)}, 4
        s_add_u32 s4, s4, s5
        s_add_u32 s4, s4, {OFF_DBG}
        v_mov_b32 v5, 0x80000000
        v_cmp_gt_u32 vcc, 4, v0
        s_nop 1
        v_cndmask_b32 v5, v5, {vr(V_L4)}, vcc
        buffer_store_dword v4, v5, {sr(S_WS,4)}, s4 offen
        s_waitcnt vmcnt(0)
        {lab}:
        s_add_u32 {sr(S_PCNT)}, {sr(S_PCNT)}, 1
        s_min_u32 {sr(S_PCNT)}, {sr(S_PCNT)}, 127
        s_mov_b32 s70, s74
        """)

def wait_word(a, srd, s_off, target, sleep=8):
    top = a.label("Lww"); ok = a.label("Lwwo")
    a(f"""
    s_cmp_lg_u32 {sr(S_W)}, 0
    s_cbranch_scc1 {ok}
    v_mov_b32 v1, {s_off}
    {top}:
    buffer_load_dword v2, v1, {sr(srd,4)}, 0 offen sc1
    s_waitcnt vmcnt(0)
    v_cmp_le_u32 vcc, {target}, v2
    s_cbranch_vccnz {ok}
    s_sleep {sleep}
    s_sub_u32 {sr(S_GBUD)}, {sr(S_GBUD)}, 1
    s_cbranch_scc0 {top}
    s_branch L_abort
    {ok}:
    s_barrier
    """)

def wait_cnt(a, base, s_idx, target, scale=1, sleep=8):
    if s_idx is None:
        wait_word(a, S_WS, OFF_CNT + base*256, target, sleep)
    else:
        a(f"s_mul_i32 s4, {sr(s_idx)}, {256*scale}")
        a(f"s_add_u32 s4, s4, {OFF_CNT + base*256}")
        wait_word(a, S_WS, "s4", target, sleep)

def drain_signal(a):
    a("s_waitcnt vmcnt(0) lgkmcnt(0)")
    a("s_barrier")
    a(signal_op(sr(S_DONE)))

G_END, G_KV, G_GU, G_Q, G_DN = 0, 1, 2, 3, 4
K_K, K_V, K_Q, K_GU, K_DN = 1, 2, 3, 4, 5
SCHED = [
    [(0, G_GU, 8), (8, G_KV, 8), (16, G_KV, -8), (24, G_GU, -24)],
    [(0, G_GU, 32), (8, G_GU, 32), (16, G_GU, 0), (24, G_GU, 0)],
    [(0, G_Q, 0), (8, G_KV, 24), (16, G_KV, 8), (24, G_DN, -24), (28, G_Q, 0)],
    [(0, G_Q, 8), (8, G_Q, 8), (16, G_GU, 32), (24, G_Q, 2), (26, G_END, 0), (28, G_DN, -24), (30, G_Q, -6)],
    [(0, G_END, 0), (8, G_KV, 40), (16, G_KV, 24), (24, G_END, 0), (30, G_DN, -24)],
    [(0, G_END, 0), (16, G_KV, 40), (24, G_END, 0)],
    [(0, G_END, 0)],
]
def sched_setup(a):
    sched = CFG.get('sched', SCHED)
    for k in range(8):
        rows = sched[k] if k < len(sched) else [(0, G_END, 0)]
        d = S_SCH + k
        for n, (t0, g, off) in enumerate(rows):
            val = f"s_add_u32 s4, {sr(S_T)}, {(g << 8) + off}" if g != G_END else "s_mov_b32 s4, 0"
            a(val)
            if n == 0: a(f"s_mov_b32 {sr(d)}, s4")
            else:
                a(f"s_cmp_ge_u32 {sr(S_T)}, {t0}")
                a(f"s_cselect_b32 {sr(d)}, s4, {sr(d)}")

def sched_pop(a):
    for k in range(7): a(f"s_mov_b32 {sr(S_SCH+k)}, {sr(S_SCH+k+1)}")
    a(f"s_mov_b32 {sr(S_SCH+7)}, 0")

def e1_decode(a, dn):
    lq = a.label("Ldq"); lg = a.label("Ldg"); lv = a.label("Ldv"); lb = a.label("Ldb"); le = a.label("Lde"); ld = a.label("Ldd")
    a(f"""
    s_lshr_b32 s6, {sr(S_SCH)}, 8             ; group
    s_and_b32 s7, {sr(S_SCH)}, 0xff           ; index
    s_mov_b32 {sr(S_A+2)}, {WS_BYTES}
    s_mov_b32 {sr(S_NCNT)}, 7
    s_cmp_eq_u32 s6, {G_GU}
    s_cbranch_scc1 {lg}
    """)
    if dn:
        a(f"""
        s_cmp_eq_u32 s6, {G_DN}
        s_cbranch_scc1 {ld}
        """)
    a(f"""
    s_cmp_eq_u32 s6, {G_Q}
    s_cbranch_scc1 {lq}
    s_lshr_b32 {sr(S_T0)}, s7, 3
    s_and_b32 {sr(S_T0+1)}, s7, 3
    s_lshl_b32 s4, {sr(S_J)}, 2
    s_add_u32 {sr(S_T0+1)}, {sr(S_T0+1)}, s4      ; nt
    s_add_u32 s4, {sr(S_T0)}, {CN_KV}
    s_lshl_b32 s4, s4, 8
    s_add_u32 {sr(S_NDONE)}, s4, {OFF_CNT}
    s_bitcmp1_b32 s7, 2
    s_cbranch_scc1 {lv}
    s_load_dwordx2 {sr(S_B,2)}, s[0:1], {KA_WK}
    s_mov_b32 {sr(S_NKIND)}, {K_K}
    s_lshl_b32 s4, {sr(S_T0)}, 21
    s_lshl_b32 s5, {sr(S_T0+1)}, 17
    s_add_u32 s4, s4, s5
    s_add_u32 {sr(S_NCOFF)}, s4, {OFF_KX}
    s_branch {lb}
    {lv}:
    s_load_dwordx2 {sr(S_B,2)}, s[0:1], {KA_WV}
    s_mov_b32 {sr(S_NKIND)}, {K_V}
    s_lshl_b32 s4, {sr(S_T0)}, 21
    s_lshl_b32 s5, {sr(S_T0+1)}, 12
    s_add_u32 s4, s4, s5
    s_add_u32 {sr(S_NCOFF)}, s4, {OFF_VT}
    s_branch {lb}
    {lq}:
    s_lshr_b32 {sr(S_T0)}, s7, 2
    s_and_b32 {sr(S_T0+1)}, s7, 3
    s_lshl_b32 s4, {sr(S_J)}, 2
    s_add_u32 {sr(S_T0+1)}, {sr(S_T0+1)}, s4
    s_add_u32 s4, {sr(S_T0)}, {CN_Q}
    s_lshl_b32 s4, s4, 8
    s_add_u32 {sr(S_NDONE)}, s4, {OFF_CNT}
    s_load_dwordx2 {sr(S_B,2)}, s[0:1], {KA_WQ}
    s_mov_b32 {sr(S_NKIND)}, {K_Q}
    s_lshl_b32 s4, {sr(S_T0)}, 21
    s_lshl_b32 s5, {sr(S_T0+1)}, 17
    s_add_u32 s4, s4, s5
    s_add_u32 {sr(S_NCOFF)}, s4, {OFF_QX}
    {lb}:
    s_mov_b32 {sr(S_B+2)}, {8*MB}
    s_mov_b32 {sr(S_T0+2)}, 8192
    s_lshl_b32 {sr(S_BOFF)}, {sr(S_T0+1)}, 9
    s_and_b32 s4, {sr(S_W)}, 1
    s_lshl_b32 s4, s4, 8
    s_add_u32 {sr(S_BOFF)}, {sr(S_BOFF)}, s4
    s_lshl_b32 {sr(S_AOFF)}, {sr(S_T0)}, 19
    s_add_u32 {sr(S_AOFF)}, {sr(S_AOFF)}, {OFF_XN}
    s_branch {le}
    """)
    if dn:
        a(f"""
        {ld}:
        s_load_dwordx2 {sr(S_B,2)}, s[0:1], {KA_WD}
        s_mov_b32 {sr(S_B+2)}, {3584*2048}
        s_mov_b32 {sr(S_NKIND)}, {K_DN}
        s_mov_b32 {sr(S_NCNT)}, 27
        s_add_u32 s4, s7, {CN_DN}
        s_lshl_b32 s4, s4, 8
        s_add_u32 {sr(S_NDONE)}, s4, {OFF_CNT}
        s_mov_b32 {sr(S_T0+2)}, 2048
        s_lshl_b32 {sr(S_BOFF)}, {sr(S_J)}, 9
        s_and_b32 s4, {sr(S_W)}, 1
        s_lshl_b32 s4, s4, 8
        s_add_u32 {sr(S_BOFF)}, {sr(S_BOFF)}, s4
        s_mul_i32 {sr(S_AOFF)}, s7, {448*4096}
        s_add_u32 {sr(S_AOFF)}, {sr(S_AOFF)}, {OFF_H}
        s_lshl_b32 s4, s7, 19
        s_lshl_b32 s5, {sr(S_J)}, 17
        s_add_u32 s4, s4, s5
        s_add_u32 {sr(S_NCOFF)}, s4, {OFF_GS}
        s_branch {le}
        """)
    a(f"""
    {lg}:
    s_mul_i32 s5, s7, 9363
    s_lshr_b32 {sr(S_T0)}, s5, 16
    s_mul_i32 s5, {sr(S_T0)}, 7
    s_sub_u32 s4, s7, s5
    s_mul_i32 {sr(S_T0+1)}, {sr(S_J)}, 7
    s_add_u32 {sr(S_T0+1)}, {sr(S_T0+1)}, s4   ; nt
    s_add_u32 s4, {sr(S_T0)}, {CN_GU}
    s_lshl_b32 s4, s4, 8
    s_add_u32 {sr(S_NDONE)}, s4, {OFF_CNT}
    s_and_b32 s4, {sr(S_W)}, 1
    s_lshl_b32 s4, s4, 3
    s_add_u32 s4, s4, {KA_WG}
    s_load_dwordx2 {sr(S_B,2)}, s[0:1], s4
    s_mov_b32 {sr(S_B+2)}, {1024*7168}
    s_mov_b32 {sr(S_NKIND)}, {K_GU}
    s_mov_b32 {sr(S_T0+2)}, 7168
    s_lshl_b32 {sr(S_BOFF)}, {sr(S_T0+1)}, 8
    s_mul_i32 s4, {sr(S_T0)}, {448*4096}
    s_lshl_b32 s5, {sr(S_T0+1)}, 16
    s_add_u32 s4, s4, s5
    s_add_u32 {sr(S_NCOFF)}, s4, {OFF_H}
    s_lshl_b32 {sr(S_AOFF)}, {sr(S_T0)}, 19
    s_add_u32 {sr(S_AOFF)}, {sr(S_AOFF)}, {OFF_XN}
    {le}:
    s_mov_b32 {sr(S_B+3)}, 0x20000
    """)
    e1_bvoff(a, S_T0+2)

def e1_next(a, back):
    nul = a.label("Lnul")
    a(f"""
    s_lshr_b32 s6, {sr(S_SCH)}, 8
    s_cmp_eq_u32 s6, {G_END}
    s_cbranch_scc1 {nul}
    s_cmp_eq_u32 s6, {G_DN}
    s_cbranch_scc1 {nul}
    """)
    e1_decode(a, False)
    sched_pop(a)
    a(f"s_branch {back}")
    a(f"""
    {nul}:
    s_mov_b32 {sr(S_NKIND)}, 0
    s_mov_b32 {sr(S_A+2)}, 0
    s_mov_b32 {sr(S_B+2)}, 0
    s_branch {back}
    """)

def promote(a):
    a(f"""
    s_mov_b32 {sr(S_COFF)}, {sr(S_NCOFF)}
    s_mov_b32 {sr(S_DONE)}, {sr(S_NDONE)}
    s_mov_b32 {sr(S_KIND)}, {sr(S_NKIND)}
    s_mov_b32 {sr(S_CNT)}, {sr(S_NCNT)}
    s_cmp_eq_u32 {sr(S_KIND)}, {K_V}
    s_cbranch_scc1 L_f4S
    s_branch L_f4N
    """)

def g_setup(a):
    a(f"""
    v_lshlrev_b32 {vr(V_L4)}, 2, v0
    v_mov_b32 {vr(V_ONE)}, 1
    v_mov_b32 {vr(V_OOB)}, 0x80000000
    s_cmp_eq_u32 {sr(S_W)}, 0
    s_cselect_b32 s5, 0, 0x80000000
    v_mov_b32 v1, s5
    v_mov_b32 v2, 0x80000000
    v_cmp_eq_u32 vcc, 0, v0
    s_nop 1
    v_cndmask_b32 {vr(V_SIG)}, v2, v1, vcc
    s_mov_b32 {sr(S_GBUD)}, {CFG.get('budget', 400000)}
    """)
    e1_setup_regs(a)
    att_setup_regs(a)

def g_start(a, s_rank):
    lab = a.label("Lini"); l2 = a.label("Lln0")
    e2_setup_regs(a)
    a(f"s_mov_b32 {sr(S_KIND)}, 0")
    tl_fine(a, 0)
    kv0_setup(a)
    tl_fine(a, 1)
    if not CFG.get('lnfirst'): e2_wpro(a)
    a(f"""
    s_cmp_lg_u32 {sr(s_rank)}, 0
    s_cbranch_scc1 {lab}
    v_lshlrev_b32 v1, 8, v0
    v_mov_b32 v2, 0
    s_mov_b32 s4, {OFF_CNT}
    buffer_store_dword v2, v1, {sr(S_WS,4)}, s4 offen sc1
    s_add_u32 s4, s4, {64*256}
    buffer_store_dword v2, v1, {sr(S_WS,4)}, s4 offen sc1
    s_add_u32 s4, s4, {64*256}
    buffer_store_dword v2, v1, {sr(S_WS,4)}, s4 offen sc1
    {lab}:
    s_lshl_b32 {sr(S_PDONE)}, {sr(S_T)}, 2
    s_add_u32 {sr(S_PDONE)}, {sr(S_PDONE)}, {sr(S_J)}
    """)
    ln_task(a, S_PDONE)
    tl_fine(a, 4)
    e2_setup_regs(a)
    if CFG.get('lnfirst') == 1: e2_wpro(a)
    sched_setup(a)
    a(f"s_waitcnt vmcnt({4*E2N() if CFG.get('lnfirst') == 1 else 0}) lgkmcnt(0)")
    tl_fine(a, 5)
    a("s_barrier")
    tl_fine(a, 6)
    a(f"buffer_atomic_add {vr(V_ONE)}, {vr(V_SIG)}, {sr(S_DBG,4)}, 0 offen offset:{C_LN*4} sc1")
    a(f"""
    s_cmp_ge_u32 {sr(S_PDONE)}, 16
    s_cbranch_scc1 {l2}
    buffer_atomic_add {vr(V_ONE)}, {vr(V_SIG)}, {sr(S_DBG,4)}, 0 offen offset:{C_LN0*4} sc1
    s_cmp_ge_u32 {sr(S_PDONE)}, 8
    s_cbranch_scc1 {l2}
    buffer_atomic_add {vr(V_ONE)}, {vr(V_SIG)}, {sr(S_DBG,4)}, 0 offen offset:{C_LN0A*4} sc1
    {l2}:
    """)
    if CFG.get('lnfirst') == 2: e2_wpro(a, CFG.get('lnw', 4) + CFG.get('lnw2', 0))
    if CFG.get('tl'):
        a("s_mov_b32 s72, s70")
        tl_store(a, 0xffff)
    if CFG.get('ln0a', 1): wait_word(a, S_DBG, C_LN0A*4, 8, CFG.get('ln0sleep', 2))
    else: wait_word(a, S_DBG, C_LN0*4, 16, CFG.get('ln0sleep', 8))
    a(f"s_mov_b32 {sr(S_PDONE)}, {OFF_CNT + CN_SPARE*256}")
    tl_fine(a, 7)
    kv0_loop(a)
    if CFG.get('tl') == 3:
        a(f"""
        v_lshlrev_b32 v4, 2, v0
        s_lshl_b32 s4, {sr(S_PID)}, 8
        s_lshl_b32 s4, s4, 2
        s_lshl_b32 s5, {sr(S_W)}, 8
        s_add_u32 s4, s4, s5
        s_add_u32 s4, s4, {OFF_DBG + 768*1024}
        v_mov_b32 v5, 0x80000000
        v_cmp_gt_u32 vcc, 64, v0
        s_nop 1
        v_cndmask_b32 v4, v5, v4, vcc
        buffer_store_dword v248, v4, {sr(S_WS,4)}, s4 offen
        """)
    wait_word(a, S_DBG, C_LN*4, 128)

def g_main(a):
    a("L_e1start:")
    lab = a.label("Lnd")
    a(f"""
    s_lshr_b32 s6, {sr(S_SCH)}, 8
    s_cmp_eq_u32 s6, {G_END}
    s_cbranch_scc1 L_p2
    s_cmp_eq_u32 s6, {G_DN}
    s_cbranch_scc0 {lab}
    s_and_b32 {sr(S_MT)}, {sr(S_SCH)}, 0xff
    """)
    wait_cnt(a, CN_GU, S_MT, 28)
    a(f"{lab}:")
    e1_decode(a, True)
    sched_pop(a)
    a(f"s_mov_b32 {sr(S_DONE)}, {OFF_CNT + CN_SPARE*256}")
    a("s_waitcnt lgkmcnt(0)")
    e1_prologue(a)
    a(f"s_mov_b32 {sr(S_PDONE)}, {OFF_CNT + CN_SPARE*256}")
    promote(a)
    e1_body(a, False, "N")
    e1_body(a, True, "S")
    a("L_e1ep:")
    a(f"""
    s_cmp_eq_u32 {sr(S_KIND)}, {K_V}
    s_cbranch_scc1 L_epV
    s_cmp_eq_u32 {sr(S_KIND)}, {K_GU}
    s_cbranch_scc1 L_epGU
    s_cmp_eq_u32 {sr(S_KIND)}, {K_DN}
    s_cbranch_scc1 L_epDN
    """)
    ep_chunks(a)
    a("s_branch L_e1done")
    a("L_epV:")
    ep_vt(a)
    a("s_branch L_e1done")
    a("L_epGU:")
    ep_gu(a)
    a("s_branch L_e1done")
    a("L_epDN:")
    ep_down1(a)
    a("L_e1done:")
    if CFG.get('tl'):
        a(f"s_lshr_b32 s5, {sr(S_COFF)}, 12")
        a(f"s_lshl_b32 s5, s5, 4")
        a(f"s_or_b32 s5, s5, {sr(S_KIND)}")
        a(f"s_mov_b32 s68, s5")
        tl_store_nowait(a, "s68")
    a(f"""
    s_cmp_eq_u32 {sr(S_NKIND)}, 0
    s_cbranch_scc1 L_e1drain
    s_mov_b32 {sr(S_PDONE)}, {sr(S_DONE)}
    """)
    promote(a)
    a("L_e1drain:")
    drain_signal(a)
    a("s_branch L_e1start")

def tl_store_nowait(a, tk):
    lab = a.label("Ltw")
    tl_stamp(a, 2)
    a(f"""
    s_and_b32 s4, {sr(S_PCNT)}, 63
    s_mov_b32 s5, m0
    s_mov_b32 m0, s4
    s_nop 0
    v_writelane_b32 v252, {tk}, m0
    v_writelane_b32 v253, s70, m0
    v_writelane_b32 v254, s72, m0
    v_writelane_b32 v255, s74, m0
    s_mov_b32 m0, s5
    s_add_u32 {sr(S_PCNT)}, {sr(S_PCNT)}, 1
    s_mov_b32 s70, s74
    """)

def tl_dump(a):
    if CFG.get('tl'):
        lab = a.label("Ltd")
        a(f"""
        s_cmp_lg_u32 {sr(S_W)}, 0
        s_cbranch_scc1 {lab}
        s_lshl_b32 s4, {sr(S_PID)}, 11
        s_add_u32 s4, s4, {OFF_DBG}
        v_lshlrev_b32 v4, 4, v0
        v_mov_b32 v5, 0x80000000
        v_cmp_lt_u32 vcc, 0, v0
        v_cmp_gt_u32 s[6:7], {sr(S_PCNT)}, v0
        s_and_b64 vcc, vcc, s[6:7]
        s_nop 1
        v_cndmask_b32 v4, v5, v4, vcc
        buffer_store_dword v252, v4, {sr(S_WS,4)}, s4 offen
        buffer_store_dword v253, v4, {sr(S_WS,4)}, s4 offen offset:4
        buffer_store_dword v254, v4, {sr(S_WS,4)}, s4 offen offset:8
        buffer_store_dword v255, v4, {sr(S_WS,4)}, s4 offen offset:12
        s_waitcnt vmcnt(0)
        {lab}:
        """)

def wait_multi(a, sleep=8):
    top = a.label("Lwm"); ok = a.label("Lwmo")
    a(f"""
    s_cmp_lg_u32 {sr(S_W)}, 0
    s_cbranch_scc1 {ok}
    {top}:
    buffer_load_dword {vr(V_PV)}, {vr(V_PA)}, {sr(S_WS,4)}, 0 offen sc1
    s_waitcnt vmcnt(0)
    v_cmp_ge_u32 vcc, {vr(V_PV)}, {vr(V_PT)}
    s_cmp_eq_u64 vcc, -1
    s_cbranch_scc1 {ok}
    s_sleep {sleep}
    s_sub_u32 {sr(S_GBUD)}, {sr(S_GBUD)}, 1
    s_cbranch_scc0 {top}
    s_branch L_abort
    {ok}:
    s_barrier
    """)

def phase2(a):
    mk = CFG.get('wo_masks') or [0x2492492492555555, 0x4924924924aaaaaa, 0x9249249249000000]
    a("L_p2:")
    a(f"""
    v_lshrrev_b32 v4, 4, v0
    v_lshlrev_b32 v4, 9, v4
    v_and_b32 v5, 15, v0
    v_lshlrev_b32 v5, 4, v5
    v_add_u32 {vr(V_OD)}, v4, v5
    """)
    tl_dump(a)
    if CFG.get('nop2'): a("s_branch L_exit")
    a(f"""
    s_cmp_ge_u32 {sr(S_T)}, 8
    s_cbranch_scc1 L_WO
    """)
    wait_word(a, S_DBG, C_RBAR*4, 128)
    a(f"s_lshr_b32 {sr(S_KIND)}, {sr(S_T)}, 1             ; segment")
    if CFG.get('odata'):
        assert CFG.get('oseg', 1)
        a(f"""
        s_add_u32 s4, {sr(S_KIND)}, 60
        s_lshl_b32 s4, s4, 18
        s_lshl_b32 s5, {sr(S_J)}, 1
        s_and_b32 s6, {sr(S_T)}, 1
        s_add_u32 s5, s5, s6
        s_lshl_b32 s5, s5, 2
        s_add_u32 s5, s5, {sr(S_W)}                ; head
        s_lshl_b32 s5, s5, 13
        s_add_u32 s4, s4, s5
        s_add_u32 s4, s4, {OFF_OX}
        """)
        for r in range(4): a(f"v_mov_b32 {vr(32+r)}, -1")
        for c in range(4):
            for qt in range(2):
                a(f"buffer_store_dwordx4 {vr(32,4)}, {vr(V_OD)}, {sr(S_WS,4)}, s4 offen offset:{qt*256} sc1")
            if c < 3: a("s_add_u32 s4, s4, 2048")
    a("L_AT:")
    a(f"""
    s_lshr_b32 {sr(S_MT)}, {sr(S_KIND)}, 3
    s_lshl_b32 s5, {sr(S_J)}, 1
    s_and_b32 s4, {sr(S_T)}, 1
    s_add_u32 s4, s4, s5
    s_lshl_b32 s4, s4, 3
    s_and_b32 s6, {sr(S_KIND)}, 7
    s_add_u32 {sr(S_NT)}, s4, s6
    s_lshl_b32 s5, {sr(S_KIND)}, 8
    s_add_u32 {sr(S_DONE)}, s5, {OFF_CNT + CN_AT*256}
    ; keys / values and queries of the tile ; the recurrence has passed the segment (step s+1 reports s+2, the last two segments are watched directly)
    s_lshl_b32 s4, {sr(S_MT)}, 8
    s_add_u32 s5, s4, {OFF_CNT + CN_KV*256}
    v_mov_b32 {vr(V_PA)}, s5
    s_add_u32 s5, s4, {OFF_CNT + CN_Q*256}
    v_writelane_b32 {vr(V_PA)}, s5, 1
    s_mov_b32 s5, {OFF_CNT + CN_PROG*256}
    v_writelane_b32 {vr(V_PA)}, s5, 2
    s_cmp_eq_u32 {sr(S_MT)}, 0
    s_cselect_b32 s5, 128, 32
    v_mov_b32 {vr(V_PT)}, s5
    s_mov_b32 s5, 16
    v_writelane_b32 {vr(V_PT)}, s5, 1
    s_cmp_ge_u32 {sr(S_KIND)}, {CFG.get('atd', (64, 2))[0]}
    s_cselect_b32 s5, {CFG.get('atd', (64, 2))[1]}, 2
    s_add_u32 s5, s5, {sr(S_KIND)}
    s_min_u32 s5, s5, 63
    v_writelane_b32 {vr(V_PT)}, s5, 2
    """)
    tl_stamp(a, 0)
    wait_multi(a)
    tl_stamp(a, 1)
    att_task(a)
    drain_signal(a)
    if CFG.get('tl'):
        a(f"s_lshl_b32 s68, {sr(S_KIND)}, 4")
        a("s_or_b32 s68, s68, 6")
        tl_store_nowait(a, "s68")
    a(f"""
    s_add_u32 {sr(S_KIND)}, {sr(S_KIND)}, 4
    s_cmp_lt_u32 {sr(S_KIND)}, 64
    s_cbranch_scc1 L_AT
    s_branch L_p2end
    L_WO:
    s_lshl_b32 s4, {sr(S_J)}, 3
    s_and_b32 s5, {sr(S_T)}, 7
    s_add_u32 {sr(S_CB)}, s4, s5
    s_mov_b32 {sr(S_MSK)}, {mk[0] & 0xffffffff:#x}
    s_mov_b32 {sr(S_MSK+1)}, {mk[0] >> 32:#x}
    s_cmp_ge_u32 {sr(S_T)}, 16
    s_cselect_b32 {sr(S_MSK)}, {mk[1] & 0xffffffff:#x}, {sr(S_MSK)}
    s_cselect_b32 {sr(S_MSK+1)}, {mk[1] >> 32:#x}, {sr(S_MSK+1)}
    s_cmp_ge_u32 {sr(S_T)}, 24
    s_cselect_b32 {sr(S_MSK)}, {mk[2] & 0xffffffff:#x}, {sr(S_MSK)}
    s_cselect_b32 {sr(S_MSK+1)}, {mk[2] >> 32:#x}, {sr(S_MSK+1)}
    s_cmp_eq_u64 {sr(S_MSK,2)}, 0
    s_cbranch_scc1 L_p2end
    """)
    tl_stamp(a, 0)
    e3_setup(a)
    if CFG.get('tl'):
        tl_stamp(a, 1)
        a("s_mov_b32 s68, 9")
        tl_store_nowait(a, "s68")
    e3_loop(a)
    a("L_p2end:")
    tl_dump(a)
    a("s_branch L_exit")
```

```python
import sys
from asmlib import *
from layout import *
import gk4 as gk, rk7 as rk

NAME = "recurrent_scan__memory_aug_recurrent_mem_tr__glu_gated_reglu__prompt_kernel"
STUB = open("recurrent_scan__memory_aug_recurrent_mem_tr__glu_gated_reglu__prompt.s.ref").read()

def header(name):
    lines = STUB.split("\n")
    hdr = [l for l in lines if l.startswith(";") and not l.startswith("; @launch")]
    out = []
    for l in lines:
        if l.startswith("; @launch"):
            out.append("; @launch grid=(256,1,1) block=(256,1,1) lds=163840")
            break
        out.append(l)
    out.append(f""".amdgcn_target "amdgcn-amd-amdhsa--gfx950"
.text
.globl {name}
.p2align 8
.type {name},@function
{name}:""")
    return "\n".join(out)

def footer(name):
    return f"""
.section .rodata,"a"
.p2align 6
.amdhsa_kernel {name}
  .amdhsa_next_free_vgpr 512
  .amdhsa_next_free_sgpr 102
  .amdhsa_accum_offset 256
  .amdhsa_group_segment_fixed_size 0
  .amdhsa_kernarg_size 112
  .amdhsa_user_sgpr_count 2
  .amdhsa_user_sgpr_kernarg_segment_ptr 1
  .amdhsa_system_sgpr_workgroup_id_x 1
.end_amdhsa_kernel
"""

S_IDX, S_RANK = 90, 91

def gen(name=NAME, rmask=0x55, rcfg=None, gcfg=None, noR=False):
    rk.CFG.clear(); rk.CFG.update(dict(local_sc1=False, prof=False, dbg_mem=False, nsteps=64, bar_count=128, kv_flags=True, progress=True, kv0late=1, kvprobe=1,
                                       earlyb2=1, obar=1, cx4=1, lateshadow=1, pfg2=1, kvahead=1,
                                       delayA=4, delayB=3, ppB=2, delayO=5, delayC=8))
    if rcfg: rk.CFG.update(rcfg)
    if gcfg and gcfg.get('tl'): rk.CFG['tl'] = True
    gk.CFG.clear(); gk.CFG.update(dict(atsleep=2, lnfirst=2, lnw=4, odata=61, atd=(56, 1), sigearly=1, xkeep=1,
                                       wo_masks=[0x2492492493555555, 0x492492492caaaaaa, 0x9249249240000000]))
    if gcfg: gk.CFG.update(gcfg)
    if gk.CFG.get('lnmini'): rk.CFG['ln0a_t'] = 128
    a = Asm()
    S_WS, S_DBG, S_W = gk.S_WS, gk.S_DBG, gk.S_W
    a.lines.append(header(name))
    if gk.CFG.get('tl') == 3: a("s_memrealtime s[96:97]")
    a(f"""
    s_cmp_ge_u32 s2, 256
    s_cbranch_scc1 L_exit
    s_load_dwordx2 {sr(S_WS,2)}, s[0:1], {KA_WS}
    s_load_dwordx2 {sr(S_DBG,2)}, s[0:1], {KA_DBG}
    s_mov_b32 {sr(S_WS+2)}, {WS_BYTES}
    s_mov_b32 {sr(S_WS+3)}, 0x20000
    s_mov_b32 {sr(S_DBG+2)}, 256
    s_mov_b32 {sr(S_DBG+3)}, 0x20000
    v_lshrrev_b32 v1, 6, v0
    v_and_b32 v0, 63, v0
    s_getreg_b32 s4, hwreg(HW_REG_XCC_ID, 0, 4)
    v_readfirstlane_b32 {sr(S_W)}, v1
    s_and_b32 s4, s4, 7
    s_and_b32 s5, s4, 3
    s_lshr_b32 s6, s4, 2
    s_lshl_b32 s6, s6, 5
    s_add_u32 s5, s5, s6
    s_lshl_b32 s5, s5, 2
    v_mov_b32 v1, s5
    v_mov_b32 v2, 1
    v_mov_b32 v3, {gk.LMB + 8}
    s_cmp_lg_u32 {sr(S_W)}, 0
    s_waitcnt lgkmcnt(0)
    s_cbranch_scc1 L_notk
    v_cmp_eq_u32 vcc, 0, v0
    s_and_saveexec_b64 s[6:7], vcc
    buffer_atomic_add v2, v1, {sr(S_DBG,4)}, 0 offen sc0{gk.CFG.get('tkmod', ' sc1')}
    s_waitcnt vmcnt(0)
    ds_write_b32 v3, v2
    s_mov_b64 exec, s[6:7]
    L_notk:
    s_waitcnt lgkmcnt(0)
    s_barrier
    ds_read_b32 v2, v3
    s_lshl_b32 s6, 1, s4
    s_sub_u32 s6, s6, 1
    s_lshr_b32 s7, {rmask}, s4
    s_and_b32 s7, s7, 1
    s_mov_b32 s5, {rmask}
    s_cmp_eq_u32 s7, 1
    s_cselect_b32 s5, s5, {(~rmask) & 0xff}
    s_and_b32 s6, s6, s5
    s_bcnt1_i32_b32 {sr(S_IDX)}, s6
    s_and_b32 {sr(S_IDX)}, {sr(S_IDX)}, 3
    s_waitcnt lgkmcnt(0)
    v_readfirstlane_b32 s5, v2
    s_cmp_ge_u32 s5, 32
    s_cbranch_scc1 L_exit
    s_lshl_b32 {sr(S_RANK)}, {sr(S_IDX)}, 5
    s_add_u32 {sr(S_RANK)}, {sr(S_RANK)}, s5
    s_lshl_b32 s6, s7, 7
    s_add_u32 {sr(gk.S_PID)}, {sr(S_RANK)}, s6
    s_mov_b32 {sr(gk.S_PCNT)}, 0
    """)
    gk.tl_stamp(a, 0)
    if gk.CFG.get('tl') == 3: a("v_writelane_b32 v248, s96, 60")
    a(f"""
    s_cmp_eq_u32 s7, 0
    s_cbranch_scc1 L_G
    """)
    if noR:
        a("s_branch L_exit")
    else:
        a(f"""
        s_mov_b32 {sr(rk.S_BUD)}, 400000
        s_lshr_b32 {sr(rk.S_G)}, {sr(S_RANK)}, 4
        s_and_b32 {sr(rk.S_M)}, {sr(S_RANK)}, 15
        """)
        rk.emit_R(a, S_DBG, C_RBAR*4)
        a("L_R_abort:")
        a("s_endpgm")
        a("L_R_done:")
        if gk.CFG.get('tl'):
            a(f"""
            v_lshlrev_b32 v4, 2, v0
            s_lshl_b32 s4, {sr(S_RANK)}, 8
            s_add_u32 s4, s4, {OFF_DBG + 512*1024}
            buffer_store_dword v250, v4, {sr(S_WS,4)}, s4 offen
            s_add_u32 s4, s4, 32768
            buffer_store_dword v251, v4, {sr(S_WS,4)}, s4 offen
            v_lshlrev_b32 {vr(gk.V_L4)}, 2, v0
            s_mov_b32 s72, s70
            """)
            gk.tl_store(a, 0xfffe)
        a("s_branch L_exit")
    a("L_G:")
    a(f"s_mov_b32 {sr(gk.S_J)}, {sr(S_IDX)}")
    a(f"s_and_b32 {sr(gk.S_T)}, {sr(S_RANK)}, 31")
    gk.g_setup(a)
    gk.g_start(a, S_RANK)
    gk.g_main(a)
    gk.phase2(a)
    a("""
    L_abort:
    L_exit:
    s_endpgm
    """)
    a.lines.append(footer(name))
    return a.text()

if __name__ == "__main__":
    s = gen()
    open("recurrent_scan__memory_aug_recurrent_mem_tr__glu_gated_reglu__prompt.s", "w").write(s)
    print(len(s), s.count("\n"))
```

```python
from asmlib import *
from layout import *
import struct

def fbits(x):
    return struct.unpack("<I", struct.pack("<f", x))[0]

V_ALD, V_L16, V_AST, V_BST, V_OST, V_OLD, V_CST, V_CLD, V_PW, V_KXD, V_VTD, V_IDX, V_SEL = range(8, 21)
V_SEL2, V_VMX, V_EXP = 21, 22, 23
V_NEG = 24
V_T = 28
V_R1, V_R2, V_R3, V_EXPK, V_EXPV, V_EXPM = 30, 31, 32, 33, 34, 35
V_ID = 36
DT = 40
D2 = 64
CF = 68
V_EXR = 72
V_W = 76
AF = 96
PR = 112
OF = 128
KXF = 160
XF = 192
PA0 = 208
PA1 = 212
ONES = 216
PB = 220
A_WO = 192
S_W = 3
S_WS = 8
S_T = 12
S_G, S_M, S_H, S_STEP, S_BUD = 16, 17, 18, 19, 20
S_A, S_B, S_O, S_C = 21, 22, 23, 24
S_PAR = 26
S_CRE, S_ORE, S_EXP, S_KXD, S_VTD, S_LRD, S_LWR, S_CSC = 28, 29, 30, 31, 32, 33, 34, 35
S_C4 = 36
S_TMP = 37
S_PROF = 40
S_AB, S_BB, S_OB, S_Q, S_KXB, S_VTB = 72, 73, 74, 75, 76, 77
S_ARE, S_BRE = 78, 79
S_ACC = 80
S_MK = [12, 14, 88, 90]
LA, LO, LV, LEXP, LKX = 0, 16384, 24576, 25600, 26624
KXSLOT = 10240
LVP = LKX + 2*KXSLOT
CSLOT = 131072

CFG = dict(local_sc1=False, prof=False, dbg_mem=False, nsteps=64)

def st_local():
    return " sc1" if CFG['local_sc1'] else ""

def stamp(a, i):
    if CFG['prof']:
        a(f"s_memtime {sr(S_PROF + 2*i, 2)}")

def check(a, regs, retry):
    t = V_T
    rr = list(regs)
    if len(rr) >= 3:
        a(f"v_max3_u32 {vr(t)}, {vr(rr[0])}, {vr(rr[1])}, {vr(rr[2])}")
        rr = rr[3:]
    else:
        a(f"v_max_u32 {vr(t)}, {vr(rr[0])}, {vr(rr[1])}")
        rr = rr[2:]
    while len(rr) >= 2:
        a(f"v_max3_u32 {vr(t)}, {vr(t)}, {vr(rr[0])}, {vr(rr[1])}"); rr = rr[2:]
    if rr:
        a(f"v_max_u32 {vr(t)}, {vr(t)}, {vr(rr[0])}")
    a(f"v_cmp_eq_u32 vcc, -1, {vr(t)}")
    a(f"s_cbranch_vccnz {retry}")

def retry_code(a, name, retry, loads, back):
    cnt = ""
    if CFG.get('proto'):
        ci = 68 + "ABOC".index(name)
        cnt = f"s_add_u32 s{ci}, s{ci}, 1"
    rd = CFG.get('rdelay' + name, 0)
    sl = f"s_sleep {rd}\n" if rd else ""
    lds = "\n".join(loads)
    a.cold.append(f"""{retry}:
    {cnt}
    s_sub_u32 {sr(S_BUD)}, {sr(S_BUD)}, 1
    s_cbranch_scc1 L_R_abort
    {sl}{lds}
    s_branch {back}""")

def lane_mask(regs, dst):
    t = V_T
    return [f"v_max3_u32 {vr(t)}, {vr(regs[0])}, {vr(regs[1])}, {vr(regs[2])}",
            f"v_max_u32 {vr(t)}, {vr(t)}, {vr(regs[3])}",
            f"v_cmp_eq_u32 {dst}, -1, {vr(t)}"]

def retry_masked(a, name, retry, loads, regs, back, inflight=False):
    cnt = ""
    if CFG.get('proto'):
        ci = 68 + "ABOC".index(name)
        cnt = f"s_add_u32 s{ci}, s{ci}, 1"
    rd = CFG.get('rdelay' + name, 0)
    out = [f"{retry}:", cnt, f"s_sub_u32 {sr(S_BUD)}, {sr(S_BUD)}, 1", "s_cbranch_scc1 L_R_abort"]
    if rd: out.append(f"s_sleep {rd}")
    dbl = CFG.get('dbl' + name, 0)
    for j, (ld, rg) in enumerate(zip(loads, regs)):
        mk = "vcc" if not dbl else sr(S_MK[j], 2)
        out += lane_mask(rg, mk)
        out += [f"s_mov_b64 exec, {mk}", ld, "s_mov_b64 exec, -1"]
        if j == 0 and inflight and len(loads) > 1: out.append("s_waitcnt vmcnt(1)")
    if dbl:
        lab = a.label("Ldb")
        out.append(f"s_sleep {dbl}" if dbl < 16 else f"s_nop {dbl - 16}")
        for j, (ld, rg) in enumerate(zip(loads, regs)):
            out += [f"s_mov_b64 exec, {sr(S_MK[j], 2)}", ld]
        out.append("s_mov_b64 exec, -1")
        out.append(f"s_waitcnt vmcnt({len(loads)})")
        allr = [r for rg in regs for r in rg]
        chk = Asm(); chk.cold = []
        check(chk, allr, lab)
        out += [x.strip() for x in chk.lines]
        out += [f"s_branch {back}_go", f"{lab}:", "s_waitcnt vmcnt(0)", f"s_branch {back}"]
    else:
        out += ["s_waitcnt vmcnt(0)", f"s_branch {back}"]
    a.cold.append("\n".join(x for x in out if x))

def poll_issue(a, name, loads, mid=None):
    d = CFG.get('delay' + name, 0)
    if d: a(f"s_sleep {d}")
    for ln in loads: a(ln)
    pp = CFG.get('pp' + name, 0)
    if pp:
        for k in range(CFG.get('np' + name, 2) - 1):
            if mid and k == 0:
                mid()
            a(f"s_sleep {pp}")
            for ln in loads: a(ln)

def poll_wait(a, name, loads, regs):
    top = a.label("Lp" + name); retry = a.label("Lr" + name)
    if CFG.get('pp' + name, 0):
        a(f"{top}:")
        a(f"s_waitcnt vmcnt({len(loads) * (CFG.get('np' + name, 2) - 1)})")
        check(a, regs, retry)
        retry_code(a, name, retry, loads, top)
        return
    if name in str(CFG.get('mretry', '')):
        a("s_waitcnt vmcnt(0)")
        a(f"{top}:")
        check(a, regs, retry)
        a(f"{top}_go:")
        retry_masked(a, name, retry, loads, [regs[4*j:4*j+4] for j in range(len(loads))], top)
        return
    a(f"{top}:")
    a("s_waitcnt vmcnt(0)")
    check(a, regs, retry)
    retry_code(a, name, retry, loads, top)

def calib(a, dst):
    lab = a.label("Lcal")
    a(f"""
    s_memrealtime s[88:89]
    s_waitcnt lgkmcnt(0)
    s_mov_b32 s92, 200
    {lab}:
    s_memrealtime s[90:91]
    s_waitcnt lgkmcnt(0)
    s_sub_u32 s92, s92, 1
    s_cbranch_scc1 {lab}_x
    s_cmp_eq_u32 s90, s88
    s_cbranch_scc1 {lab}
    {lab}_x:
    s_memtime s[88:89]
    s_waitcnt lgkmcnt(0)
    s_mov_b32 s{dst}, s90
    s_mov_b32 s{dst+1}, s88
    """)

def halves_sum(a, d, o0, o1):
    a(f"""
    v_permlane32_swap_b32 {vr(d)}, {vr(d+2)}
    v_permlane32_swap_b32 {vr(d+1)}, {vr(d+3)}
    v_add_f32 {vr(o0)}, {vr(d)}, {vr(d+2)}
    v_add_f32 {vr(o1)}, {vr(d+1)}, {vr(d+3)}
    """)

def pack_pairs(a, o0, o1, out, tmp):
    a(f"""
    v_cvt_pk_bf16_f32 {vr(out)}, {vr(o0)}, {vr(o1)}
    s_nop 1
    v_mov_b32_dpp {vr(tmp)}, {vr(out)} quad_perm:[1,0,3,2] row_mask:0xf bank_mask:0xf
    v_perm_b32 {vr(out)}, {vr(out)}, {vr(tmp)}, {vr(V_SEL)}
    """)

def oob_hi(dst, src, n=32):
    return f"""v_mov_b32 v5, 0x80000000
    v_cmp_gt_u32 vcc, {n}, v0
    s_nop 1
    v_cndmask_b32 {vr(dst)}, v5, {vr(src)}, vcc"""

def setup(a):
    a(f"""
    s_lshr_b32 s4, {sr(S_M)}, 2
    s_lshl_b32 {sr(S_H)}, {sr(S_G)}, 2
    s_add_u32 {sr(S_H)}, {sr(S_H)}, s4          ; head
    s_and_b32 {sr(S_C4)}, {sr(S_M)}, 3
    s_and_b32 {sr(S_Q)}, {sr(S_G)}, 1
    v_and_b32 v1, 15, v0                        ; n / j
    v_lshrrev_b32 v2, 4, v0                     ; g
    v_lshlrev_b32 {vr(V_L16)}, 4, v0
    s_lshl_b32 s4, {sr(S_W)}, 12
    v_add_u32 {vr(V_ALD)}, s4, {vr(V_L16)}
    s_lshl_b32 s4, {sr(S_W)}, 11
    v_add_u32 {vr(V_OLD)}, s4, {vr(V_L16)}
    s_lshl_b32 s4, {sr(S_W)}, 10
    v_add_u32 {vr(V_PW)}, s4, {vr(V_L16)}
    v_lshlrev_b32 v3, 2, v2
    v_and_b32 v4, 1, v1
    v_lshlrev_b32 v4, 1, v4
    v_add_u32 v3, v3, v4
    v_lshrrev_b32 v4, 3, v1
    v_add_u32 v6, v3, v4
    v_lshlrev_b32 v4, 4, v6
    v_bfe_u32 v5, v1, 1, 2
    v_lshlrev_b32 v5, 2, v5
    v_add_u32 v4, v4, v5
    s_lshl_b32 s4, {sr(S_M)}, 10
    s_lshl_b32 s5, {sr(S_Q)}, 9
    s_add_u32 s4, s4, s5
    s_lshl_b32 s5, {sr(S_W)}, 7
    s_add_u32 s4, s4, s5
    v_add_u32 v4, s4, v4
    {oob_hi(V_AST, 4)}
    v_and_b32 v3, 1, v2
    v_lshlrev_b32 v3, 2, v3
    v_lshrrev_b32 v4, 1, v2
    v_lshlrev_b32 v4, 1, v4
    v_add_u32 v3, v3, v4
    v_and_b32 v4, 1, v1
    v_add_u32 v3, v3, v4                        ; row
    v_lshrrev_b32 v4, 2, v1
    v_lshlrev_b32 v4, 8, v4
    v_lshlrev_b32 v5, 4, v3
    v_add_u32 v4, v4, v5
    v_bfe_u32 v5, v1, 1, 1
    v_lshlrev_b32 v5, 2, v5
    v_add_u32 v4, v4, v5                        ; (n>>2)*256 + row*16 + ((n>>1)&1)*4
    s_lshl_b32 s4, {sr(S_C4)}, 10
    s_lshr_b32 s5, {sr(S_W)}, 1
    s_xor_b32 s5, s5, 1
    s_lshl_b32 s5, s5, 7
    s_add_u32 s4, s4, s5
    s_and_b32 s5, {sr(S_W)}, 1
    s_lshl_b32 s5, s5, 3
    s_add_u32 s4, s4, s5
    v_add_u32 {vr(V_BST)}, s4, v4
    v_lshrrev_b32 v4, 2, v1
    v_lshlrev_b32 v4, 7, v4
    v_lshlrev_b32 v5, 4, v3
    v_add_u32 v4, v4, v5
    v_bfe_u32 v5, v1, 1, 1
    v_lshlrev_b32 v5, 2, v5
    v_add_u32 v4, v4, v5
    s_and_b32 s5, {sr(S_W)}, 1
    s_lshl_b32 s4, s5, 3
    v_add_u32 v4, s4, v4
    v_lshlrev_b32 v5, 2, v0
    s_lshl_b32 s4, s5, 8
    v_add_u32 v5, s4, v5
    v_add_u32 {vr(V_EXPK)}, {LEXP}, v4
    v_add_u32 {vr(V_EXPV)}, {LEXP + 512}, v5
    s_lshl_b32 s4, {sr(S_H)}, 12
    s_lshl_b32 s5, {sr(S_C4)}, 10
    s_add_u32 s4, s4, s5
    s_add_u32 s4, s4, {OFF_KM}
    v_add_u32 {vr(V_EXPM)}, s4, {vr(V_L16)}
    v_mov_b32 {vr(V_NEG)}, -1
    v_mov_b32 {vr(V_NEG+1)}, -1
    v_mov_b32 {vr(V_NEG+2)}, -1
    v_mov_b32 {vr(V_NEG+3)}, -1
    s_lshl_b32 s4, {sr(S_M)}, 10
    s_lshl_b32 s5, {sr(S_Q)}, 9
    s_add_u32 s4, s4, s5
    v_add_u32 v4, s4, {vr(V_L16)}
    {oob_hi(7, 4)}
    v_lshrrev_b32 v4, 3, v0
    v_lshlrev_b32 v4, 10, v4
    v_and_b32 v5, 7, v0
    v_lshlrev_b32 v5, 4, v5
    v_add_u32 v4, v4, v5
    s_lshl_b32 s4, {sr(S_M)}, 13
    s_lshl_b32 s5, {sr(S_G)}, 7
    s_add_u32 s4, s4, s5
    v_add_u32 v4, s4, v4
    s_cmp_eq_u32 {sr(S_W)}, 0
    s_cselect_b64 vcc, -1, 0
    v_cndmask_b32 {vr(V_R1)}, v4, v7, vcc
    s_lshl_b32 s4, {sr(S_C4)}, 10
    v_add_u32 {vr(V_R2)}, s4, {vr(V_L16)}
    s_lshr_b32 s4, {sr(S_M)}, 2
    s_lshl_b32 s4, s4, 1
    s_lshr_b32 s5, {sr(S_C4)}, 1
    s_add_u32 s4, s4, s5
    s_lshl_b32 s4, s4, 10
    s_and_b32 s5, {sr(S_C4)}, 1
    s_lshl_b32 s5, s5, 7
    s_add_u32 s4, s4, s5
    v_lshrrev_b32 v4, 3, v0
    v_lshlrev_b32 v4, 8, v4
    v_and_b32 v5, 7, v0
    v_lshlrev_b32 v5, 4, v5
    v_add_u32 v4, v4, v5
    v_add_u32 v4, s4, v4
    {oob_hi(V_R3, 4)}
    s_lshr_b32 s4, {sr(S_M)}, 2
    s_lshl_b32 s4, s4, 1
    s_lshr_b32 s5, {sr(S_C4)}, 1
    s_add_u32 s4, s4, s5
    s_lshl_b32 s4, s4, 10
    s_and_b32 s5, {sr(S_C4)}, 1
    s_lshl_b32 s5, s5, 7
    s_add_u32 s4, s4, s5
    s_and_b32 s5, {sr(S_W)}, 1
    s_lshl_b32 s5, s5, 3
    s_add_u32 s4, s4, s5
    v_lshlrev_b32 v4, 8, v2
    v_lshlrev_b32 v5, 4, v1
    v_add_u32 v4, v4, v5
    v_add_u32 v4, s4, v4
    v_mov_b32 v5, 0x80000000
    v_cmp_gt_u32 vcc, 8, v1
    s_nop 1
    v_cndmask_b32 {vr(V_OST)}, v5, v4, vcc
    v_lshrrev_b32 v4, 3, v1
    v_lshlrev_b32 v4, 10, v4
    v_and_b32 v5, 7, v1
    v_lshlrev_b32 v5, 4, v5
    v_add_u32 v4, v4, v5
    v_lshlrev_b32 v5, 3, v2
    v_add_u32 v4, v4, v5
    s_lshl_b32 s4, {sr(S_M)}, 13
    s_lshl_b32 s5, {sr(S_W)}, 11
    s_add_u32 s4, s4, s5
    s_lshl_b32 s5, {sr(S_G)}, 7
    s_add_u32 s4, s4, s5
    v_add_u32 v4, s4, v4
    {oob_hi(V_CST, 4, 16 if CFG.get('cx4') else 32)}
    s_lshl_b32 s4, {sr(S_M)}, 13
    s_lshl_b32 s5, {sr(S_Q)}, 12
    s_add_u32 s4, s4, s5
    s_lshl_b32 s5, {sr(S_W)}, 10
    s_add_u32 s4, s4, s5
    v_add_u32 {vr(V_CLD)}, s4, {vr(V_L16)}
    v_lshlrev_b32 v4, 12, v2
    v_lshlrev_b32 v5, 4, v1
    v_add_u32 {vr(V_KXD)}, v4, v5
    v_lshlrev_b32 v4, 16, v2
    v_add_u32 {vr(V_VTD)}, v4, v5
    v_mov_b32 v4, 0x44444444
    v_mov_b32 v5, 0xeeeeeeee
    v_cmp_gt_u32 vcc, 8, v1
    s_nop 1
    v_cndmask_b32 {vr(V_IDX)}, v5, v4, vcc
    v_and_b32 v4, 1, v1
    v_cmp_eq_u32 vcc, 0, v4
    v_mov_b32 v4, 0x01000504
    v_mov_b32 v5, 0x07060302
    v_cndmask_b32 {vr(V_SEL)}, v5, v4, vcc
    v_mov_b32 v4, 0x01000504
    v_mov_b32 v5, 0x05040100
    v_cndmask_b32 v4, v5, v4, vcc
    v_lshrrev_b32 v5, 3, v1
    v_mul_u32_u24 v5, 0x020202, v5
    v_lshrrev_b32 v7, 3, v1
    v_lshlrev_b32 v7, 25, v7
    v_add_u32 v5, v5, v7
    v_add_u32 {vr(V_SEL2)}, v4, v5
    s_mov_b32 {sr(S_PAR)}, 0xaaaaaaaa
    s_mov_b32 {sr(S_PAR+1)}, 0xaaaaaaaa
    """)
    for r in range(4):
        a(f"""
        v_mov_b32 v4, 0
        v_mov_b32 v5, 0x3f80
        v_cmp_eq_u32 vcc, {2*r}, v1
        s_nop 1
        v_cndmask_b32 v4, v4, v5, vcc
        v_mov_b32 v5, 0x3f800000
        v_cmp_eq_u32 vcc, {2*r+1}, v1
        s_nop 1
        v_cndmask_b32 {vr(V_ID+r)}, v4, v5, vcc
        """)
    a(f"""
    v_lshlrev_b32 v4, 3, v0
    s_and_b32 s5, {sr(S_W)}, 1
    s_lshl_b32 s5, s5, 9
    s_add_u32 s5, s5, {LV}
    v_add_u32 {vr(V_VMX)}, s5, v4
    s_mov_b32 {sr(S_CSC)}, {fbits(128**-0.5 * 1.4426950408889634)}
    s_lshr_b32 s4, {sr(S_G)}, 1
    s_lshl_b32 s4, s4, 16
    s_add_u32 {sr(S_AB)}, s4, {OFF_RA}
    s_lshl_b32 s4, {sr(S_H)}, 14
    s_add_u32 {sr(S_BB)}, s4, {OFF_RB}
    s_lshl_b32 s4, {sr(S_G)}, 15
    s_add_u32 {sr(S_OB)}, s4, {OFF_RO}
    s_lshl_b32 s4, {sr(S_H)}, 16
    s_lshl_b32 s5, {sr(S_W)}, 14
    s_add_u32 s4, s4, s5
    s_add_u32 {sr(S_KXB)}, s4, {OFF_KX}
    s_lshl_b32 s4, {sr(S_H)}, 11
    s_lshl_b32 s5, {sr(S_C4)}, 9
    s_add_u32 s4, s4, s5
    s_lshl_b32 s5, {sr(S_W)}, 8
    s_add_u32 s4, s4, s5
    s_add_u32 {sr(S_VTB)}, s4, {OFF_VT}
    """)

def arm_and_mem0(a):
    a(f"""
    s_load_dwordx2 {sr(S_T,2)}, s[0:1], {KA_MEM0}
    s_mov_b32 {sr(S_T+2)}, 16384
    s_mov_b32 {sr(S_T+3)}, 0x20000
    v_lshlrev_b32 v4, 11, v6
    v_and_b32 v5, 6, v1
    v_lshlrev_b32 v5, 1, v5
    v_add_u32 v4, v4, v5
    {oob_hi(4, 4)}
    s_lshl_b32 s4, {sr(S_M)}, 7
    s_lshl_b32 s5, {sr(S_Q)}, 6
    s_add_u32 s4, s4, s5
    s_lshl_b32 s5, {sr(S_W)}, 4
    s_add_u32 s4, s4, s5
    s_waitcnt lgkmcnt(0)
    buffer_load_dword v6, v4, {sr(S_T,4)}, s4 offen
    s_mov_b32 s4, {sr(S_AB)}
    s_waitcnt vmcnt(0)
    buffer_store_dword v6, {vr(V_AST)}, {sr(S_WS,4)}, s4 offen{st_local()}
    """)
    for sl in range(1, 4):
        a(f"""
        s_add_u32 s4, s4, 16384
        buffer_store_dword {vr(V_NEG)}, {vr(V_AST)}, {sr(S_WS,4)}, s4 offen{st_local()}
        """)
    a(f"""
    s_mov_b32 s4, {sr(S_BB)}
    s_mov_b32 s5, {sr(S_OB)}
    s_mov_b32 s6, {OFF_RC}
    """)
    for sl in range(4):
        a(f"""
        buffer_store_dword {vr(V_NEG)}, {vr(V_BST)}, {sr(S_WS,4)}, s4 offen{st_local()}
        buffer_store_dwordx{4 if CFG.get('cx4') else 2} {vr(V_NEG,4 if CFG.get('cx4') else 2)}, {vr(V_CST)}, {sr(S_WS,4)}, s6 offen sc1
        s_add_u32 s4, s4, 4096
        s_add_u32 s6, s6, {CSLOT}
        """)
    if CFG.get('arm_export', True):
        a(f"s_lshl_b32 s4, {sr(S_W)}, 21")
        for k in range(16):
            a(f"buffer_store_dwordx4 {vr(V_NEG,4)}, {vr(V_EXPM)}, {sr(S_WS,4)}, s4 offen sc1")
            a(f"s_add_u32 s4, s4, 131072")
    lab = a.label("Lnoo")
    a(f"""
    s_cmp_lt_u32 {sr(S_W)}, 2
    s_cbranch_scc1 {lab}
    """)
    for sl in range(4):
        a(f"""
        buffer_store_dwordx2 {vr(V_NEG,2)}, {vr(V_OST)}, {sr(S_WS,4)}, s5 offen{st_local()}
        s_add_u32 s5, s5, 8192
        """)
    a(f"{lab}:")

def load_srd(a, ka, nbytes):
    a(f"""
    s_load_dwordx2 {sr(S_T,2)}, s[0:1], {ka}
    s_mov_b32 {sr(S_T+2)}, {nbytes}
    s_mov_b32 {sr(S_T+3)}, 0x20000
    s_waitcnt lgkmcnt(0)
    """)

def load_weights(a):
    VQ, VO, VT0, VT1, VWO = 76, 77, 78, 79, 80
    a(f"""
    v_lshrrev_b32 v4, 2, v0
    v_lshlrev_b32 v4, 13, v4
    v_and_b32 v5, 3, v0
    v_lshlrev_b32 v5, 4, v5
    v_add_u32 v{VQ}, v4, v5
    v_lshrrev_b32 v4, 3, v0
    v_lshlrev_b32 v4, 11, v4
    v_and_b32 v5, 7, v0
    v_lshlrev_b32 v5, 4, v5
    v_add_u32 v{VO}, v4, v5
    s_lshl_b32 s4, {sr(S_H)}, 8
    s_lshl_b32 s5, {sr(S_C4)}, 6
    s_add_u32 {sr(S_TMP)}, s4, s5
    s_lshl_b32 s4, {sr(S_W)}, 21
    s_add_u32 {sr(S_TMP)}, {sr(S_TMP)}, s4  ; + 256w rows * 8192
    v_lshrrev_b32 v4, 5, v0                 ; gb>>1
    v_lshlrev_b32 v4, 4, v4
    v_bfe_u32 v5, v0, 4, 1                  ; gb&1
    v_lshlrev_b32 v6, 2, v5
    v_add_u32 v4, v4, v6
    v_bfe_u32 v6, v0, 3, 1                  ; r>>1
    v_lshlrev_b32 v7, 3, v6
    v_add_u32 v4, v4, v7
    v_bfe_u32 v7, v0, 2, 1                  ; r&1
    v_add_u32 v4, v4, v7
    v_lshlrev_b32 v4, 6, v4
    v_and_b32 v7, 3, v0
    v_lshlrev_b32 v7, 3, v7                 ; c4*8
    v_add_u32 v4, v4, v7
    s_lshl_b32 s4, {sr(S_W)}, 14
    v_add_u32 v{VT0}, s4, v4
    s_add_u32 s4, s4, 65536
    v_add_u32 v{VT1}, s4, v4
    v_lshlrev_b32 v4, 5, v6
    v_lshlrev_b32 v5, 4, v5
    v_add_u32 v4, v4, v5
    v_lshrrev_b32 v5, 5, v0
    v_lshlrev_b32 v5, 2, v5
    v_add_u32 v4, v4, v5
    v_bfe_u32 v5, v0, 2, 1
    v_add_u32 v4, v4, v5
    v_lshlrev_b32 v4, 7, v4
    v_add_u32 v4, v4, v7
    s_lshl_b32 s4, {sr(S_W)}, 5
    s_add_u32 s4, s4, 65536
    v_add_u32 v{VWO}, s4, v4
    """)
    def dma_qkv(ka, ldsbase):
        load_srd(a, ka, 8*MB)
        a(f"""
        s_mov_b32 s4, {sr(S_TMP)}
        s_lshl_b32 s5, {sr(S_W)}, 14
        s_add_u32 s5, s5, {ldsbase}
        """)
        for i in range(16):
            a(f"""
            s_mov_b32 m0, s5
            s_add_u32 s5, s5, 1024
            buffer_load_dwordx4 v{VQ}, {sr(S_T,4)}, s4 offen lds
            s_add_u32 s4, s4, 131072
            """)
    def tr_tiles(vaddr, tile0):
        n = 0
        for t in range(2):
            for i in range(4):
                for hb in range(2):
                    for pr in range(2):
                        a(f"ds_read_b64_tr_b16 {ar(((tile0+t)*4 + i)*8 + 4*hb + 2*pr, 2)}, v{vaddr} offset:{i*4096 + hb*2048 + pr*128 + t*32}")
                        n += 1
                        if n % 8 == 0: a("s_waitcnt lgkmcnt(4)")
        a("s_waitcnt lgkmcnt(0)")
    dma_qkv(KA_WQ, 0)
    dma_qkv(KA_WK, 65536)
    a("s_waitcnt vmcnt(16)")
    tr_tiles(VT0, 2)
    dma_qkv(KA_WV, 0)
    a("s_waitcnt vmcnt(16)")
    tr_tiles(VT1, 0)
    load_srd(a, KA_WO, 8*MB)
    a(f"""
    s_lshl_b32 s4, {sr(S_G)}, 9
    s_lshl_b32 s5, {sr(S_W)}, 7
    s_add_u32 s4, s4, s5
    s_lshl_b32 s4, s4, 11                   ; row*2048
    s_lshl_b32 s5, {sr(S_M)}, 7
    s_add_u32 s4, s4, s5
    s_lshl_b32 s5, {sr(S_W)}, 14
    s_add_u32 s5, s5, 65536
    """)
    for i in range(16):
        a(f"""
        s_mov_b32 m0, s5
        s_add_u32 s5, s5, 1024
        buffer_load_dwordx4 v{VO}, {sr(S_T,4)}, s4 offen lds
        s_add_u32 s4, s4, {0 if CFG.get('wofake') else 16384}
        """)
    a("s_waitcnt vmcnt(16)")
    tr_tiles(VT0, 4)
    a("""
    s_waitcnt vmcnt(0)
    s_barrier
    """)
    for ks in range(8):
        for hb in range(2):
            for pr in range(2):
                a(f"ds_read_b64_tr_b16 {ar(A_WO + 8*ks + 4*hb + 2*pr, 2)}, v{VWO} offset:{ks*8192 + hb*1024 + pr*256}")
        if ks % 2 == 1: a("s_waitcnt lgkmcnt(4)")
    a("""
    s_waitcnt lgkmcnt(0)
    s_barrier
    """)

def seg_offsets_l(seg):
    return [x.strip() for x in f"""s_lshr_b32 s4, {sr(seg)}, 3
    s_lshl_b32 s4, s4, 21
    s_and_b32 s5, {sr(seg)}, 7
    s_lshl_b32 s5, s5, 9
    s_add_u32 s4, s4, s5
    s_add_u32 {sr(S_KXD)}, s4, {sr(S_KXB)}
    s_lshl_b32 s4, {sr(seg)}, 18
    s_add_u32 {sr(S_VTD)}, s4, {sr(S_VTB)}
    s_and_b32 s4, {sr(seg)}, 1
    s_mul_i32 s4, s4, {KXSLOT}
    s_add_u32 {sr(S_LWR)}, s4, {LKX}""".split("\n")]

def prefetch_l(vwave, part=0):
    if CFG.get('nopf'): return []
    if CFG.get('pf01') and not vwave: return []
    if part == 1:
        if not CFG.get('pf01'): return []
        return [[f"s_lshl_b32 s6, {sr(S_W)}, 10", f"s_add_u32 s6, s6, {sr(S_LWR)}", f"s_add_u32 s6, s6, 2048", f"s_add_u32 s7, {sr(S_KXD)}, 32768"],
           ["s_mov_b32 m0, s6", f"s_add_u32 s6, s6, {4096 - 256}",
            f"buffer_load_dwordx4 {vr(V_KXD)}, {sr(S_WS,4)}, s7 offen sc1 lds"],
           ["s_mov_b32 m0, s6", "s_nop 0",
            f"buffer_load_dwordx4 {vr(V_KXD)}, {sr(S_WS,4)}, s7 offen offset:256 sc1 lds"]]
    out = [[f"s_lshl_b32 s6, {sr(S_W)}, 10", f"s_add_u32 s6, s6, {sr(S_LWR)}"],
           ["s_mov_b32 m0, s6", f"s_add_u32 s6, s6, {4096 - 256}",
            f"buffer_load_dwordx4 {vr(V_KXD)}, {sr(S_WS,4)}, {sr(S_KXD)} offen sc1 lds"],
           ["s_mov_b32 m0, s6", f"s_add_u32 s6, s6, {4096 + 256}",
            f"buffer_load_dwordx4 {vr(V_KXD)}, {sr(S_WS,4)}, {sr(S_KXD)} offen offset:256 sc1 lds"]]
    if vwave:
        out.append(["s_mov_b32 m0, s6", "s_nop 0",
                    f"buffer_load_dwordx4 {vr(V_VTD)}, {sr(S_WS,4)}, {sr(S_VTD)} offen sc1 lds"])
    return out

def flat(groups):
    out = []
    for g in groups:
        if isinstance(g, str): out.append(g)
        else: out.extend(g)
    return out

def front_offsets_l():
    return [x.strip() for x in f"""s_and_b32 s4, {sr(S_STEP)}, 3
    s_lshl_b32 s5, s4, 17
    s_add_u32 {sr(S_C)}, s5, {OFF_RC}
    s_add_u32 s5, s4, 2
    s_and_b32 s5, s5, 3
    s_lshl_b32 s5, s5, 17
    s_add_u32 {sr(S_CRE)}, s5, {OFF_RC}
    s_add_u32 s4, s4, 3
    s_and_b32 s4, s4, 3
    s_lshl_b32 s5, s4, 14
    s_add_u32 {sr(S_ARE)}, s5, {sr(S_AB)}
    s_lshl_b32 s5, s4, 12
    s_add_u32 {sr(S_BRE)}, s5, {sr(S_BB)}
    s_lshl_b32 s5, s4, 13
    s_add_u32 {sr(S_ORE)}, s5, {sr(S_OB)}
    s_lshl_b32 {sr(S_EXP)}, {sr(S_STEP)}, 17""".split("\n")]

def next_offsets_l():
    return [x.strip() for x in f"""s_add_u32 {sr(S_STEP)}, {sr(S_STEP)}, 1
    s_and_b32 s4, {sr(S_STEP)}, 3
    s_lshl_b32 s5, s4, 14
    s_add_u32 {sr(S_A)}, s5, {sr(S_AB)}
    s_lshl_b32 s5, s4, 12
    s_add_u32 {sr(S_B)}, s5, {sr(S_BB)}
    s_lshl_b32 s5, s4, 13
    s_add_u32 {sr(S_O)}, s5, {sr(S_OB)}
    s_and_b32 s4, {sr(S_STEP)}, 1
    s_mul_i32 s4, s4, {KXSLOT}
    s_add_u32 {sr(S_LRD)}, s4, {LKX}
    s_add_u32 {sr(S_TMP)}, {sr(S_STEP)}, 1
    s_min_u32 {sr(S_TMP)}, {sr(S_TMP)}, 63""".split("\n")] + seg_offsets_l(S_TMP)

def smf(d, af, b_reg):
    return f"v_smfmac_f32_16x16x64_bf16 {vr(d,4)}, {vr(af,4)}, {b_reg}, {vr(V_IDX)}"

def tile_smf(tile, i):
    return smf(DT + 4*tile, AF + 4*i, ar((tile*4 + i)*8, 8))

def sum4(a, base):
    a(f"""
    v_pk_add_f32 {vr(base,2)}, {vr(base,2)}, {vr(base+4,2)}
    v_pk_add_f32 {vr(base+2,2)}, {vr(base+2,2)}, {vr(base+6,2)}
    v_pk_add_f32 {vr(base+8,2)}, {vr(base+8,2)}, {vr(base+12,2)}
    v_pk_add_f32 {vr(base+10,2)}, {vr(base+10,2)}, {vr(base+14,2)}
    v_pk_add_f32 {vr(base,2)}, {vr(base,2)}, {vr(base+8,2)}
    v_pk_add_f32 {vr(base+2,2)}, {vr(base+2,2)}, {vr(base+10,2)}
    s_nop 1
    """)

def gemm1(a, w, last=False):
    loads = [f"buffer_load_dwordx4 {vr(AF + 4*i, 4)}, {vr(V_ALD)}, {sr(S_WS,4)}, {sr(S_A)} offen offset:{i*1024} sc1" for i in range(4)]
    poll_issue(a, "A", loads)
    for r in range(24): a(f"v_mov_b32 {vr(DT+r)}, 0")
    for ln in front_offsets_l(): a(ln)
    if CFG['prof']:
        a("s_waitcnt lgkmcnt(0)")
        for i in range(1, 8):
            a(f"s_sub_u32 s4, {sr(S_PROF + 2*i)}, {sr(S_PROF)}")
            a(f"s_add_u32 {sr(S_ACC + i)}, {sr(S_ACC + i)}, s4")
        if CFG.get('trace'):
            a(f"s_mov_b32 m0, {sr(S_STEP)}")
            a("s_nop 0")
            for i in range(8):
                a(f"v_writelane_b32 v{232+i}, {sr(S_PROF + 2*i)}, m0")
            a("v_writelane_b32 v240, s88, m0")
    for i in range(4):
        top = a.label("LpA"); retry = a.label("LrA")
        a(f"s_waitcnt vmcnt({3-i})")
        a(f"{top}:")
        check(a, [AF + 4*i + r for r in range(4)], retry)
        back = a.label("LbA")
        if "A" in str(CFG.get('mretry', '')):
            a(f"{top}_go:")
            retry_masked(a, "A", retry, loads[i:], [[AF + 4*k + r for r in range(4)] for k in range(i, 4)], top, inflight=True)
        else:
            retry_code(a, "A", retry, loads[i:] + [f"s_waitcnt vmcnt({3-i})"], top)
        if i == 3:
            stamp(a, 0)
            if CFG['prof'] and CFG.get('trace'): a("s_memrealtime s[88:89]")
        for tile in range(4): a(tile_smf(tile, i))
    vs = [tile_smf(4 + t, i) for i in range(4) for t in range(2)]
    a(vs[0]); a(vs[1])
    for tile in range(4):
        a(f"ds_write_b128 {vr(V_PW)}, {vr(DT + 4*tile, 4)} offset:{LA + tile*4096}")
        a(vs[2 + tile])
    a(vs[6]); a(vs[7])
    a("s_waitcnt lgkmcnt(0)")
    a("s_barrier")
    for src in range(4):
        a(f"ds_read_b128 {vr(PR + 4*src, 4)}, {vr(V_ALD)} offset:{LA + src*1024}")
    for t in range(2):
        a(f"ds_write_b128 {vr(V_PW)}, {vr(DT + 16 + 4*t, 4)} offset:{LVP + t*4096}")
    if not last and not CFG.get('pfafter') and not CFG.get('pflate') and not CFG.get('pfg2'):
        for ln in flat(prefetch_l(w < 2)): a(ln)
    a("s_waitcnt lgkmcnt(2)")
    sum4(a, PR)
    halves_sum(a, PR, V_W, V_W+1)
    pack_pairs(a, V_W, V_W+1, V_W+2, V_W+3)
    if not last:
        a(f"buffer_store_dword {vr(V_W+2)}, {vr(V_BST)}, {sr(S_WS,4)}, {sr(S_B)} offen{st_local()}")
        stamp(a, 1)
        if CFG.get('pfafter'):
            for ln in flat(prefetch_l(w < 2)): a(ln)
        if not CFG.get('pflate'):
            for ln in flat(prefetch_l(w < 2, 1)): a(ln)
    else:
        stamp(a, 1)

def v_reduce(a):
    for src in range(4):
        a(f"ds_read_b128 {vr(PR + 4*src, 4)}, {vr(V_ALD)} offset:{LVP + src*1024}")
    a(f"ds_write_b32 {vr(V_EXPK)}, {vr(V_W+2)}")
    a("s_waitcnt lgkmcnt(1)")
    sum4(a, PR)
    halves_sum(a, PR, V_W+4, V_W+5)
    a(f"""
    v_cvt_pk_bf16_f32 {vr(V_W+6)}, {vr(V_W+4)}, 0
    v_cvt_pk_bf16_f32 {vr(V_W+7)}, {vr(V_W+5)}, 0
    v_cvt_pk_bf16_f32 {vr(V_EXP)}, {vr(V_W+4)}, {vr(V_W+5)}
    ds_write_b64 {vr(V_VMX)}, {vr(V_W+6,2)}
    ds_write_b32 {vr(V_EXPV)}, {vr(V_EXP)}
    """)

def export_read(a):
    a(f"ds_read_b128 {vr(V_EXR,4)}, {vr(V_L16)} offset:{LEXP}")

def export_store(a):
    a(f"buffer_store_dwordx4 {vr(V_EXR,4)}, {vr(V_EXPM)}, {sr(S_WS,4)}, {sr(S_EXP)} offen sc1")

def shadow(a, w):
    if w == 0:
        a(f"buffer_store_dwordx4 {vr(V_NEG,4)}, {vr(V_R1)}, {sr(S_WS,4)}, {sr(S_ARE)} offen{st_local()}")
        a(f"buffer_store_dwordx4 {vr(V_NEG,4)}, {vr(V_R2)}, {sr(S_WS,4)}, {sr(S_BRE)} offen{st_local()}")
        a(f"buffer_store_dwordx4 {vr(V_NEG,4)}, {vr(V_R3)}, {sr(S_WS,4)}, {sr(S_ORE)} offen{st_local()}")
    if w == 1 and CFG.get('progress'):
        lab = a.label("Lprg")
        a(f"""
        s_or_b32 s4, {sr(S_G)}, {sr(S_M)}
        s_cmp_lg_u32 s4, 0
        s_cbranch_scc1 {lab}
        s_add_u32 s4, {sr(S_STEP)}, 1
        v_mov_b32 {vr(V_T)}, {OFF_CNT + CN_PROG*256}
        v_mov_b32 {vr(V_T+1)}, s4
        s_mov_b64 exec, 1
        buffer_store_dword {vr(V_T+1)}, {vr(V_T)}, {sr(S_WS,4)}, 0 offen sc1
        s_mov_b64 exec, -1
        {lab}:
        """)

def kv_check(a, dbg_srd):
    if not CFG.get('kv_flags'): return
    lab = a.label("Lkv")
    a(f"""
    s_add_u32 s4, {sr(S_STEP)}, {CFG.get('kvahead', 2)}
    s_mov_b32 s6, 128
    s_cmp_eq_u32 s4, 4
    s_cselect_b32 s4, 64, s4
    s_cselect_b32 s7, 0, 1
    s_and_b32 s5, s4, 7
    s_cmp_lg_u32 s5, 0
    s_cbranch_scc1 {lab}_ok
    s_lshr_b32 s4, s4, 3
    s_mul_i32 s4, s4, s7
    s_cmp_eq_u32 s7, 1
    s_cselect_b32 s6, 32, s6
    s_cmp_ge_u32 s4, 8
    s_cbranch_scc1 {lab}_ok
    s_add_u32 s4, s4, {CN_KV}
    s_lshl_b32 s4, s4, 8
    s_add_u32 s4, s4, {OFF_CNT}
    s_branch {lab}_cold
    {lab}_ok:
    """)
    early = f"""v_readfirstlane_b32 s5, {vr(V_PRB)}
    s_cmp_ge_u32 s5, s6
    s_cbranch_scc1 {lab}_ok
    """ if CFG.get('kvprobe') else ""
    a.cold.append(f"""{lab}_cold:
    {early}v_mov_b32 v4, s4
    {lab}_l:
    buffer_load_dword v5, v4, {sr(S_WS,4)}, 0 offen sc1
    s_waitcnt vmcnt(0)
    v_cmp_le_u32 vcc, s6, v5
    s_cbranch_vccnz {lab}_ok
    s_sleep 4
    s_sub_u32 {sr(S_BUD)}, {sr(S_BUD)}, 1
    s_cbranch_scc0 {lab}_l
    s_branch L_R_abort""")

V_PRB = 224
def kv_probe(a, w):
    if not (CFG.get('kvprobe') and CFG.get('kv_flags') and w == 0): return
    assert CFG.get('kvahead', 2) == 1
    lab = a.label("Lpb")
    a(f"""
    s_add_u32 s4, {sr(S_STEP)}, 2
    s_and_b32 s5, s4, 3
    s_cbranch_scc1 {lab}
    s_lshr_b32 s4, s4, 3
    s_min_u32 s4, s4, 7
    s_lshl_b32 s4, s4, 8
    s_add_u32 s4, s4, {OFF_CNT + CN_KV*256}
    buffer_load_dword {vr(V_PRB)}, off, {sr(S_WS,4)}, s4 sc1
    {lab}:
    """)

def after_c_store(a, w):
    if w == 0:
        export_store(a)
    if w == 1:
        a(f"buffer_store_dwordx4 {vr(V_NEG,4)}, {vr(V_R1)}, {sr(S_WS,4)}, {sr(S_CRE)} offen sc1")

def kv0_hook(a, w):
    if not CFG.get('kv0late'): return
    hook = a.label("Lk0h"); back = a.label("Lk0b")
    a(f"s_cmp_eq_u32 {sr(S_STEP)}, 0")
    a(f"s_cbranch_scc1 {hook}")
    a(f"{back}:")
    c = Asm(); c.n = 0
    pre = a.label("K0")
    c.label = lambda p: a.label(p)
    c(f"{hook}:")
    wait_barrier(c, S_WS, OFF_CNT + CN_KV0A*256, 128, CFG.get('kv0sleep', 2))
    for ln in seg_offsets_l(S_STEP): c(ln)
    for ln in flat(prefetch_l(w < 2)): c(ln)
    c(f"s_mov_b32 {sr(S_TMP)}, 1")
    for ln in seg_offsets_l(S_TMP): c(ln)
    c("s_waitcnt vmcnt(0)")
    c("s_barrier")
    c(f"s_branch {back}")
    a.cold.append("\n".join(c.lines))

def attention(a, w):
    t = w & 1
    loads = [f"buffer_load_dwordx4 {vr(XF + 4*c, 4)}, {vr(V_L16)}, {sr(S_WS,4)}, {sr(S_B)} offen offset:{c*1024} sc1" for c in range(4)]
    def early():
        kv0_hook(a, w)
        a("s_waitcnt lgkmcnt(0)")
        a("s_barrier")
        a(f"v_add_u32 {vr(V_T+1)}, {sr(S_LRD)}, {vr(V_L16)}")
        for tau in range(2):
            for c in range(4):
                a(f"ds_read_b128 {vr(KXF + 16*tau + 4*c, 4)}, {vr(V_T+1)} offset:{(tau*4 + c)*1024}")
        a(f"ds_read_b64 {vr(PA0,2)}, {vr(V_T+1)} offset:{8192 + t*1024}")
        a(f"ds_read_b64 {vr(PA1,2)}, {vr(V_T+1)} offset:{8192 + t*1024 + 8}")
    if CFG.get('earlyb2'):
        early()
        poll_issue(a, "B", loads)
    else:
        poll_issue(a, "B", loads)
        early()
    a("s_barrier")
    a(f"ds_read_b32 {vr(PA0+2)}, {vr(V_VMX)}")
    a(f"ds_read_b32 {vr(PA1+2)}, {vr(V_VMX)} offset:4")
    poll_wait(a, "B", loads, [XF + r for r in range(16)])
    stamp(a, 2)
    a("s_waitcnt lgkmcnt(0)")
    Dm, D0, D1 = V_W, V_W+4, V_W+8
    for c in range(4):
        cm = "0" if c == 0 else vr(Dm,4); c0 = "0" if c == 0 else vr(D0,4); c1 = "0" if c == 0 else vr(D1,4)
        a(f"v_mfma_f32_16x16x32_bf16 {vr(Dm,4)}, {vr(XF+4*c,4)}, {vr(XF+4*c,4)}, {cm}")
        a(f"v_mfma_f32_16x16x32_bf16 {vr(D0,4)}, {vr(KXF+4*c,4)}, {vr(XF+4*c,4)}, {c0}")
        a(f"v_mfma_f32_16x16x32_bf16 {vr(D1,4)}, {vr(KXF+16+4*c,4)}, {vr(XF+4*c,4)}, {c1}")
    a("s_nop 0")
    a(f"v_mov_b32_dpp {vr(Dm)}, {vr(Dm+1)} row_shr:8 row_mask:0xf bank_mask:0xc")
    a(f"v_mov_b32_dpp {vr(Dm+2)}, {vr(Dm+3)} row_shr:8 row_mask:0xf bank_mask:0xc")
    a("s_nop 4")
    for r in range(4):
        a(f"v_mov_b32_dpp {vr(D0+r)}, {vr(D1+r)} row_shr:8 row_mask:0xf bank_mask:0xc")
    a(f"v_permlane32_swap_b32 {vr(Dm)}, {vr(Dm+2)}")
    pm = Dm+2; M = V_W+12; T2 = V_W+13
    a(f"""
    v_max3_f32 {vr(M)}, {vr(D0)}, {vr(D0+1)}, {vr(D0+2)}
    v_max3_f32 {vr(M)}, {vr(M)}, {vr(D0+3)}, {vr(pm)}
    s_nop 1
    v_max_f32_dpp {vr(T2)}, {vr(M)}, {vr(M)} row_ror:8 row_mask:0xf bank_mask:0xf
    v_max_f32_dpp {vr(M)}, {vr(M)}, {vr(M)} row_ror:8 row_mask:0xf bank_mask:0xf
    s_nop 1
    v_permlane16_swap_b32 {vr(M)}, {vr(T2)}
    v_max_f32 {vr(M)}, {vr(M)}, {vr(T2)}
    v_max_f32 {vr(T2)}, {vr(M)}, {vr(M)}
    s_nop 1
    v_permlane32_swap_b32 {vr(M)}, {vr(T2)}
    v_max_f32 {vr(M)}, {vr(M)}, {vr(T2)}
    v_mul_f32 {vr(M)}, {sr(S_CSC)}, {vr(M)}
    """)
    for r in range(4):
        a(f"v_fma_f32 {vr(D0+r)}, {vr(D0+r)}, {sr(S_CSC)}, -{vr(M)}")
    a(f"v_fma_f32 {vr(pm)}, {vr(pm)}, {sr(S_CSC)}, -{vr(M)}")
    for r in range(4):
        a(f"v_exp_f32 {vr(D0+r)}, {vr(D0+r)}")
    a(f"v_exp_f32 {vr(pm)}, {vr(pm)}")
    a(f"""
    v_cvt_pk_bf16_f32 {vr(PB)}, {vr(D0)}, {vr(D0+1)}
    v_cvt_pk_bf16_f32 {vr(PB+1)}, {vr(D0+2)}, {vr(D0+3)}
    v_cvt_pk_bf16_f32 {vr(PB+2)}, {vr(pm)}, 0
    s_nop 1
    """)
    DA, DB, DS = V_W, V_W+4, V_W+8
    a(f"v_mfma_f32_16x16x32_bf16 {vr(DS,4)}, {vr(ONES,4)}, {vr(PB,4)}, 0")
    a(f"v_mfma_f32_16x16x32_bf16 {vr(DA,4)}, {vr(PA0,4)}, {vr(PB,4)}, 0")
    a(f"v_mfma_f32_16x16x32_bf16 {vr(DB,4)}, {vr(PA1,4)}, {vr(PB,4)}, 0")
    L = V_W+12
    a("s_nop 3")
    a(f"v_add_f32_dpp {vr(L)}, {vr(DS)}, {vr(DS)} row_ror:8 row_mask:0xf bank_mask:0xf")
    a(f"v_rcp_f32 {vr(L)}, {vr(L)}")
    a("s_nop 2")
    for r in range(4):
        a(f"v_add_f32_dpp {vr(DA+r)}, {vr(DB+r)}, {vr(DA+r)} row_ror:8 row_mask:0xf bank_mask:0xf")
    for r in range(4):
        a(f"v_mul_f32 {vr(DA+r)}, {vr(DA+r)}, {vr(L)}")
    a(f"""
    v_cvt_pk_bf16_f32 {vr(DB)}, {vr(DA)}, {vr(DA+1)}
    v_cvt_pk_bf16_f32 {vr(DB+1)}, {vr(DA+2)}, {vr(DA+3)}
    buffer_store_dwordx2 {vr(DB,2)}, {vr(V_OST)}, {sr(S_WS,4)}, {sr(S_O)} offen{st_local()}
    """)
    stamp(a, 3)

def gemm2(a, w):
    own = [2*w, 2*w+1]
    loads = [f"buffer_load_dwordx4 {vr(OF + 4*(2*w+i), 4)}, {vr(V_OLD)}, {sr(S_WS,4)}, {sr(S_O)} offen offset:{i*1024} sc1" for i in range(2)]
    if CFG.get('obar'): a("s_barrier")
    poll_issue(a, "O", loads)
    for r in range(4): a(f"v_mov_b32 {vr(D2+r)}, 0")
    poll_wait(a, "O", loads, [OF + 8*w + r for r in range(8)])
    stamp(a, 4)
    for i in range(2):
        a(f"ds_write_b128 {vr(V_OLD)}, {vr(OF + 4*(2*w+i), 4)} offset:{LO + i*1024}")
    a(smf(D2, OF + 4*own[0], ar(A_WO + 8*own[0], 8)))
    a("s_waitcnt lgkmcnt(0)")
    a("s_barrier")
    others = [k for k in range(8) if k not in own]
    for k in others:
        a(f"ds_read_b128 {vr(OF + 4*k, 4)}, {vr(V_L16)} offset:{LO + k*1024}")
    a(smf(D2, OF + 4*own[1], ar(A_WO + 8*own[1], 8)))
    if CFG.get('pfg2') == 1:
        for ln in flat(prefetch_l(w < 2)): a(ln)
        kv_probe(a, w)
    for n, k in enumerate(others):
        a(f"s_waitcnt lgkmcnt({5-n})")
        a(smf(D2, OF + 4*k, ar(A_WO + 8*k, 8)))
    a("s_nop 7")
    for r in range(4): a(f"v_permlane32_swap_b32 {vr(D2+r)}, {vr(V_W+r)}")
    a(f"""
    v_pk_add_f32 {vr(D2,2)}, {vr(D2,2)}, {vr(V_W,2)}
    v_pk_add_f32 {vr(D2+2,2)}, {vr(D2+2,2)}, {vr(V_W+2,2)}
    v_cvt_pk_bf16_f32 {vr(V_W+4)}, {vr(D2)}, {vr(D2+1)}
    v_cvt_pk_bf16_f32 {vr(V_W+5)}, {vr(D2+2)}, {vr(D2+3)}
    """)
    if CFG.get('cx4'):
        a(f"""
        s_nop 0
        v_permlane16_swap_b32 {vr(V_W+4)}, {vr(V_W+6)}
        v_permlane16_swap_b32 {vr(V_W+5)}, {vr(V_W+7)}
        buffer_store_dwordx4 {vr(V_W+4,4)}, {vr(V_CST)}, {sr(S_WS,4)}, {sr(S_C)} offen {CFG.get('cst_mod', 'sc1')}
        """)
    else:
        a(f"buffer_store_dwordx2 {vr(V_W+4,2)}, {vr(V_CST)}, {sr(S_WS,4)}, {sr(S_C)} offen {CFG.get('cst_mod', 'sc1')}")
    stamp(a, 5)
    if CFG.get('pfg2') == 2:
        for ln in flat(prefetch_l(w < 2)): a(ln)

def reduce_c(a, w):
    loads = [f"buffer_load_dwordx4 {vr(CF,4)}, {vr(V_CLD)}, {sr(S_WS,4)}, {sr(S_C)} offen {CFG.get('cld_mod', 'sc1')}"]
    poll_issue(a, "C", loads)
    for ln in next_offsets_l(): a(ln)
    poll_wait(a, "C", loads, [CF + r for r in range(4)])
    stamp(a, 6)
    D = V_W
    a(f"v_mfma_f32_16x16x32_bf16 {vr(D,4)}, {vr(V_ID,4)}, {vr(CF,4)}, 0")
    a("s_nop 7")
    for r in range(4):
        a(f"v_add_f32_dpp {vr(D+r)}, {vr(D+r)}, {vr(D+r)} row_ror:8 row_mask:0xf bank_mask:0xf")
    a(f"""
    v_cvt_pk_bf16_f32 {vr(D+4)}, {vr(D)}, {vr(D+1)}
    v_cvt_pk_bf16_f32 {vr(D+5)}, {vr(D+2)}, {vr(D+3)}
    v_cndmask_b32 {vr(D+6)}, {vr(D+5)}, {vr(D+4)}, {sr(S_PAR,2)}
    v_cndmask_b32 {vr(D+7)}, {vr(D+4)}, {vr(D+5)}, {sr(S_PAR,2)}
    s_nop 0
    v_mov_b32_dpp {vr(D+8)}, {vr(D+6)} quad_perm:[1,0,3,2] row_mask:0xf bank_mask:0xf
    v_perm_b32 {vr(D+9)}, {vr(D+7)}, {vr(D+8)}, {vr(V_SEL2)}
    buffer_store_dword {vr(D+9)}, {vr(V_AST)}, {sr(S_WS,4)}, {sr(S_A)} offen{st_local()}
    """)
    if CFG['dbg_mem']:
        lab = a.label("Lnd")
        a(f"""
        s_cmp_gt_u32 {sr(S_G)}, 1
        s_cbranch_scc1 {lab}
        s_lshl_b32 s4, {sr(S_STEP)}, 14
        s_add_u32 s4, s4, {OFF_MEMDBG}
        buffer_store_dword {vr(D+9)}, {vr(V_AST)}, {sr(S_WS,4)}, s4 offen sc1
        {lab}:
        """)
    stamp(a, 7)

def wave_loop(a, w):
    ns = CFG['nsteps']
    top = a.label("Lstep")
    if w >= 2:
        for r in range(4): a(f"v_mov_b32 {vr(ONES+r)}, 0x3f803f80")
        a(f"v_mov_b32 {vr(PA0+3)}, 0")
        a(f"v_mov_b32 {vr(PA1+3)}, 0")
        a(f"v_mov_b32 {vr(PB+3)}, 0")
    last = a.label("Llast")
    a(f"{top}:")
    if CFG.get('tl') and w == 0:
        a("s_memrealtime s[94:95]")
        a("s_waitcnt lgkmcnt(0)")
        a(f"s_mov_b32 m0, {sr(S_STEP)}")
        a("s_nop 0")
        a("v_writelane_b32 v250, s94, m0")
        a("s_memtime s[94:95]")
        a("s_waitcnt lgkmcnt(0)")
        a("v_writelane_b32 v251, s94, m0")
    a(f"s_cmp_eq_u32 {sr(S_STEP)}, {ns-1}")
    a(f"s_cbranch_scc1 {last}")
    gemm1(a, w)
    if w < 2:
        kv0_hook(a, w)
        a("s_waitcnt lgkmcnt(0)")
        a("s_barrier")
        if CFG.get('crep'): stamp(a, 2)
        v_reduce(a)
        if not CFG.get('lateshadow'): shadow(a, w)
        a("s_waitcnt lgkmcnt(0)")
        a("s_barrier")
        if CFG.get('crep'): stamp(a, 3)
        if CFG.get('lateshadow'): shadow(a, w)
        if CFG.get('pflate'):
            a(f"s_sleep {CFG['pflate']}")
            for ln in flat(prefetch_l(True)): a(ln)
            for ln in flat(prefetch_l(True, 1)): a(ln)
        if w == 0:
            export_read(a)
            if CFG.get('early_wt'):
                a("s_waitcnt lgkmcnt(0)")
                after_c_store(a, w)
            kv_check(a, a.dbg_srd)
        elif CFG.get('early_wt'):
            after_c_store(a, w)
    else:
        attention(a, w)
    gemm2(a, w)
    if not CFG.get('early_wt'): after_c_store(a, w)
    reduce_c(a, w)
    a(f"s_branch {top}")
    a(f"{last}:")
    sv = CFG['prof']; CFG['prof'] = False
    gemm1(a, w, last=True)
    CFG['prof'] = sv
    a("s_waitcnt lgkmcnt(0)")
    a("s_barrier")
    if w < 2:
        v_reduce(a)
    a("s_waitcnt lgkmcnt(0)")
    a("s_barrier")
    if w == 0:
        export_read(a)
        a("s_waitcnt lgkmcnt(0)")
        export_store(a)
    a("s_waitcnt vmcnt(0)")
    a("s_branch L_R_done")

def start_barrier(a, dbg_srd, off):
    ok = a.label("Lsbo")
    a(f"""
    s_waitcnt vmcnt(0)
    s_barrier
    s_cmp_lg_u32 {sr(S_W)}, 0
    s_cbranch_scc1 {ok}
    v_mov_b32 v4, {off}
    v_mov_b32 v5, 1
    v_cmp_eq_u32 vcc, 0, v0
    s_and_saveexec_b64 s[6:7], vcc
    buffer_atomic_add v5, v4, {sr(dbg_srd,4)}, 0 offen sc1
    s_mov_b64 exec, s[6:7]
    {ok}:
    """)

def wait_barrier(a, srd, off, count, sleep=8):
    lab = a.label("Lwb")
    a(f"""
    s_cmp_lg_u32 {sr(S_W)}, 0
    s_cbranch_scc1 {lab}_ok
    v_mov_b32 v4, {off}
    {lab}:
    buffer_load_dword v5, v4, {sr(srd,4)}, 0 offen sc1
    s_waitcnt vmcnt(0)
    v_cmp_le_u32 vcc, {count}, v5
    s_cbranch_vccnz {lab}_ok
    s_sleep {sleep}
    s_sub_u32 {sr(S_BUD)}, {sr(S_BUD)}, 1
    s_cbranch_scc0 {lab}
    s_branch L_R_abort
    {lab}_ok:
    s_barrier
    """)

def emit_R(a, dbg_srd, bar_off):
    a.cold = []
    a.dbg_srd = dbg_srd
    setup(a)
    arm_and_mem0(a)
    start_barrier(a, dbg_srd, bar_off)
    if CFG.get('proto'): a(f"s_memtime {sr(S_PROF + 16, 2)}")
    load_weights(a)
    if CFG.get('proto'): a(f"s_memtime {sr(S_PROF + 18, 2)}")
    wait_barrier(a, dbg_srd, bar_off, CFG.get('bar_count', 128))
    if CFG.get('kv_flags'):
        wait_barrier(a, dbg_srd, C_LN0A*4, CFG.get('ln0a_t', 8), 2)
        if not CFG.get('kv0late'): wait_barrier(a, S_WS, OFF_CNT + CN_KV0A*256, 128)
    if not CFG.get('kv0late'):
        a(f"s_mov_b32 {sr(S_STEP)}, 0")
        for ln in seg_offsets_l(S_STEP): a(ln)
        l0 = a.label("Lpf"); l1 = a.label("Lpf")
        a(f"s_cmp_lt_u32 {sr(S_W)}, 2")
        a(f"s_cbranch_scc1 {l0}")
        for ln in flat(prefetch_l(False)): a(ln)
        a(f"s_branch {l1}")
        a(f"{l0}:")
        for ln in flat(prefetch_l(True)): a(ln)
        for ln in flat(prefetch_l(True, 1)): a(ln)
        a(f"{l1}:")
    a(f"s_mov_b32 {sr(S_STEP)}, -1")
    for ln in next_offsets_l(): a(ln)
    a("s_waitcnt vmcnt(0)")
    a("s_barrier")
    if CFG['prof']:
        for i in range(8):
            a(f"s_mov_b32 {sr(S_PROF + 2*i)}, 0")
            a(f"s_mov_b32 {sr(S_ACC + i)}, 0")
    if CFG.get('proto'):
        for ci in range(68, 72): a(f"s_mov_b32 s{ci}, 0")
        calib(a, 96)
        a(f"s_memtime {sr(S_PROF + 20, 2)}")
    labs = [a.label("Lwave") for _ in range(4)]
    for w in range(1, 4):
        a(f"s_cmp_eq_u32 {sr(S_W)}, {w}")
        a(f"s_cbranch_scc1 {labs[w]}")
    for w in range(4):
        a(f"{labs[w]}:")
        wave_loop(a, w)
    for c in a.cold: a(c)
```

```python
from asmlib import *
from layout import *
import struct

def fbits(x):
    return struct.unpack("<I", struct.pack("<f", x))[0]

CFG = dict()
def LSC1(): return "" if CFG.get('nolsc1') else " sc1"
def SSC1(): return CFG.get('sflag', "" if CFG.get('nossc1') else " sc1")
def EPST(x): return "s_nop 0" if CFG.get('noepst') else x

S_W = 3
S_WS = 8
S_B = 12
S_AOFF, S_BOFF, S_BSTEP, S_M0A, S_M0B, S_CNT = 16, 17, 18, 19, 20, 21
S_GBUD, S_J, S_TK, S_T, S_MT, S_NT = 22, 23, 24, 25, 26, 27
S_COFF, S_DONE, S_M2 = 29, 40, 41
S_NCOFF, S_NDONE = 42, 43
S_A = 48
S_KIND, S_NKIND, S_PDONE, S_NCNT = 60, 61, 62, 63
S_SCH = 80
S_T0 = 30
S_OUT = 44
S_MASK = 52
S_DBG = 64
V_XA, V_WA, V_AOFF = 8, 10, 18
V_ROW0, V_SWZ = 19, 20
V_SIG, V_ONE, V_L4, V_OOB = 23, 24, 25, 26
V_EP = 30
V_FRAG = 32
V2_XD, V2_BD, V2_WA, V2_RW, V2_RR = 208, 212, 216, 220, 223
V2_XO, V2_L16 = 226, 227
V_AD, V_KMD, V_VD, V_NB = 228, 229, 230, 231
STAGE = 32768
LMB = 131072
LSC = LMB + 64

def XF16(p, i): return V_FRAG + 64*p + 4*i
def WF16(p, t): return V_FRAG + 64*p + 32 + 4*t
def ACC16(t, i): return (t*8 + i)*4
def frag_reads16(p, ring):
    hi = ring >> 1; base = (ring & 1)*STAGE
    xs = [f"ds_read_b128 {vr(XF16(p,i),4)}, {vr(V_XA + hi)} offset:{base + i*256}" for i in range(8)]
    ws = []
    for t in range(8):
        for sec in range(2):
            off = base + 16384 + (t >> 2)*8192 + (16*sec)*256
            ws.append(f"ds_read_b64_tr_b16 {vr(WF16(p,t) + 2*sec, 2)}, {vr(V_WA + 4*hi + (t & 3))} offset:{off}")
    return [ws[0], ws[1]] + xs + ws[2:]
def mfmas16(p, first, swap):
    out = []
    for t in range(8):
        for i in range(8):
            x, y = (XF16(p,i), WF16(p,t)) if swap else (WF16(p,t), XF16(p,i))
            out.append(f"v_mfma_f32_16x16x32_bf16 {ar(ACC16(t,i),4)}, {vr(x,4)}, {vr(y,4)}, {'0' if first else ar(ACC16(t,i),4)}")
    return out

def dma_ops(ring, vb):
    g = []
    base = ring*STAGE
    g.append([f"s_add_u32 m0, {sr(S_M0A)}, {base}", "s_nop 0",
              f"buffer_load_dwordx4 {vr(V_AOFF)}, {sr(S_A,4)}, {sr(S_AOFF)} offen{LSC1()} lds"])
    for j in range(1, 4):
        g.append([f"buffer_load_dwordx4 {vr(V_AOFF)}, {sr(S_A,4)}, {sr(S_AOFF)} offen offset:{j*1024}{LSC1()} lds"])
    g[-1].append(f"s_add_u32 {sr(S_AOFF)}, {sr(S_AOFF)}, 16384")
    g.append([f"s_add_u32 m0, {sr(S_M0B)}, {base}", "s_nop 0",
              f"buffer_load_dwordx4 {vr(vb)}, {sr(S_B,4)}, {sr(S_BOFF)} offen lds"])
    for j in range(1, 4):
        g.append([f"buffer_load_dwordx4 {vr(vb+j)}, {sr(S_B,4)}, {sr(S_BOFF)} offen offset:{j*1024} lds"])
    g[-1].append(f"s_add_u32 {sr(S_BOFF)}, {sr(S_BOFF)}, {sr(S_BSTEP)}")
    return g

def weave(main, slots):
    out = []
    for i, m in enumerate(main):
        out.append(m)
        if i in slots: out.extend(slots[i])
    return out

def place(slots, items, positions):
    for it, p in zip(items, positions):
        slots.setdefault(p, [])
        if isinstance(it, str): slots[p].append(it)
        else: slots[p].extend(it)

VB = 32 + 128 + 48
V_BW = 204

def stage16(a, ring, p, swap, first=False, dma=True, vm=16, next_reads=True):
    a("s_waitcnt lgkmcnt(0)" if vm is None else f"s_waitcnt vmcnt({vm}) lgkmcnt(0)")
    a("s_barrier")
    sl = {}
    if next_reads: place(sl, frag_reads16(p ^ 1, (ring+1) & 3), range(0, 48, 2))
    if dma: place(sl, dma_ops(ring, V_BW), range(3, 64, 8))
    for ln in weave(mfmas16(p, first, swap), sl): a(ln)

def signal_op(soff):
    return f"buffer_atomic_add {vr(V_ONE)}, {vr(V_SIG)}, {sr(S_WS,4)}, {soff} offen sc1"

NEP = 32
def e1_prologue(a):
    for ring in range(4):
        for g in dma_ops(ring, V_BW):
            for ln in g: a(ln)
    a("s_waitcnt vmcnt(24)")
    a("s_barrier")
    for ln in frag_reads16(0, 0): a(ln)
    pad_ops(a, NEP)

def pad_ops(a, n):
    for _ in range(n): a(f"buffer_store_dword {vr(V_ONE)}, {vr(V_OOB)}, {sr(S_WS,4)}, 0 offen")

def e1_body(a, swap, tag):
    a(f"L_f4{tag}:")
    tl_task_start(a)
    for r in range(4):
        a(f"s_waitcnt vmcnt({16 + NEP if r < 3 else 16}) lgkmcnt(0)")
        a("s_barrier")
        sl = {}
        place(sl, frag_reads16((r & 1) ^ 1, (r+1) & 3), range(0, 48, 2))
        place(sl, dma_ops(r, V_BW), range(3, 64, 8))
        if r == 3: place(sl, [signal_op(sr(S_PDONE))], [1])
        for ln in weave(mfmas16(r & 1, r == 0, swap), sl): a(ln)
    top = a.label("Lmid"); sw = a.label("Lsw"); back = a.label("Lswb")
    a(f"{top}:")
    a(f"s_cmp_eq_u32 {sr(S_CNT)}, 1")
    a(f"s_cbranch_scc1 {sw}")
    a(f"{back}:")
    for r in range(4): stage16(a, r, r & 1, swap)
    a(f"s_sub_u32 {sr(S_CNT)}, {sr(S_CNT)}, 1")
    a(f"s_cmp_lg_u32 {sr(S_CNT)}, 0")
    a(f"s_cbranch_scc1 {top}")
    a("s_branch L_e1ep")
    a(f"{sw}:")
    e1_next(a, back)

def e1_setup_regs(a):
    a(f"""
    v_and_b32 v1, 15, v0
    v_lshrrev_b32 v2, 4, v0         ; g
    v_lshlrev_b32 v4, 4, v1
    v_lshlrev_b32 v5, 12, v2
    v_add_u32 {vr(V_AD)}, v4, v5    ; g*4096 + i*16
    s_lshr_b32 s4, {sr(S_W)}, 1
    s_lshl_b32 s5, s4, 11
    v_add_u32 {vr(V_XA)}, s5, {vr(V_AD)}
    v_add_u32 {vr(V_XA+1)}, 0x10000, {vr(V_XA)}
    v_mov_b32 {vr(V_EP)}, {vr(V_XA)}
    v_bfe_u32 v3, v0, 2, 2          ; r
    v_lshlrev_b32 v4, 2, v2         ; 4g
    v_add_u32 v4, v4, v3            ; k
    v_and_b32 v6, 7, v4             ; k&7
    v_lshlrev_b32 v4, 8, v4         ; k*256
    v_and_b32 v5, 3, v0
    v_lshlrev_b32 v5, 3, v5         ; c*8
    v_add_u32 v4, v4, v5
    s_and_b32 s5, {sr(S_W)}, 1
    s_lshl_b32 s5, s5, 2            ; 4wn
    """)
    for tl in range(4):
        a(f"""
        s_add_u32 s6, s5, {tl}
        v_xor_b32 v5, s6, v6
        v_lshlrev_b32 v5, 5, v5
        v_add_u32 {vr(V_WA+tl)}, v4, v5
        v_add_u32 {vr(V_WA+4+tl)}, 0x10000, {vr(V_WA+tl)}
        """)
    a(f"""
    v_lshlrev_b32 v4, 4, v0
    s_lshl_b32 s5, {sr(S_W)}, 12
    v_add_u32 {vr(V_AOFF)}, s5, v4
    v_lshrrev_b32 v1, 4, v0
    v_and_b32 v2, 15, v0
    """)
    for j in range(2):
        a(f"""
        v_add_u32 v3, {4*j}, v1
        v_lshlrev_b32 v3, 1, v3
        v_xor_b32 v3, v2, v3
        v_lshlrev_b32 {vr(V_SWZ+j)}, 4, v3
        """)
    a(f"""
    s_lshr_b32 s5, {sr(S_W)}, 1
    s_lshl_b32 s5, s5, 4
    v_add_u32 {vr(V_ROW0)}, s5, v1
    s_lshl_b32 {sr(S_M0A)}, {sr(S_W)}, 12
    s_and_b32 s6, {sr(S_W)}, 1
    s_lshl_b32 s6, s6, 13
    s_lshr_b32 s7, {sr(S_W)}, 1
    s_lshl_b32 s7, s7, 12
    s_add_u32 s6, s6, s7
    s_add_u32 {sr(S_M0B)}, s6, 16384
    s_mov_b32 {sr(S_A)}, {sr(S_WS)}
    s_mov_b32 {sr(S_A+1)}, {sr(S_WS+1)}
    s_mov_b32 {sr(S_A+2)}, 0
    s_mov_b32 {sr(S_A+3)}, 0x20000
    """)

def e1_bvoff(a, s_ldb):
    a(f"""
    v_mul_u32_u24 v1, {sr(s_ldb)}, {vr(V_ROW0)}
    s_lshl_b32 s4, {sr(s_ldb)}, 2
    s_sub_u32 s4, s4, 1024
    v_add_u32 {vr(V_BW)}, v1, {vr(V_SWZ)}
    v_add3_u32 {vr(V_BW+1)}, v1, {vr(V_SWZ+1)}, s4
    s_lshl_b32 s5, s4, 1
    v_add3_u32 {vr(V_BW+2)}, v1, {vr(V_SWZ)}, s5
    s_add_u32 s5, s5, s4
    v_add3_u32 {vr(V_BW+3)}, v1, {vr(V_SWZ+1)}, s5
    s_lshl_b32 {sr(S_BSTEP)}, {sr(s_ldb)}, 5
    """)

def ep_chunks(a):
    a(f"""
    s_and_b32 s5, {sr(S_W)}, 1
    s_lshl_b32 s5, s5, 15
    s_add_u32 s7, {sr(S_COFF)}, s5
    s_nop 4
    """)
    tmp = 160; n = 0
    for p in range(4):
        a(f"s_add_u32 s6, s7, {(16*(p>>1) + 4*(p&1))*4096}")
        for i in range(8):
            b = tmp + (n % 3)*12; n += 1
            for tt in range(2):
                for r in range(4):
                    a(f"v_accvgpr_read_b32 {vr(b+4*tt+r)}, {ar(ACC16(2*p+tt,i)+r)}")
            for r in range(4):
                a(f"v_cvt_pk_bf16_f32 {vr(b+8+r)}, {vr(b+2*r)}, {vr(b+2*r+1)}")
            a(EPST(f"buffer_store_dwordx4 {vr(b+8,4)}, {vr(V_EP)}, {sr(S_WS,4)}, s6 offen offset:{i*256}{SSC1()}"))

def ep_vt(a):
    a(f"""
    s_lshr_b32 s5, {sr(S_W)}, 1
    s_lshl_b32 s5, s5, 20             ; wm*16*65536
    s_add_u32 s7, {sr(S_COFF)}, s5
    s_and_b32 s5, {sr(S_W)}, 1
    s_lshl_b32 s5, s5, 10             ; 64 wn * 16
    s_add_u32 s7, s7, s5
    s_nop 4
    """)
    tmp = 160; n = 0
    for P in range(4):
        a(f"s_add_u32 s6, s7, {4*P*65536}")
        for t in range(8):
            b = tmp + (n % 3)*12; n += 1
            for ii in range(2):
                for r in range(4):
                    a(f"v_accvgpr_read_b32 {vr(b+4*ii+r)}, {ar(ACC16(t,2*P+ii)+r)}")
            for r in range(4):
                a(f"v_cvt_pk_bf16_f32 {vr(b+8+r)}, {vr(b+2*r)}, {vr(b+2*r+1)}")
            a(EPST(f"buffer_store_dwordx4 {vr(b+8,4)}, {vr(V_VD)}, {sr(S_WS,4)}, s6 offen offset:{(t>>2)*2048 + (t&3)*256}{SSC1()}"))

def ep_gu(a):
    a(f"""
    s_and_b32 s5, {sr(S_W)}, 1
    s_lshl_b32 s5, s5, 15
    s_add_u32 s7, {sr(S_COFF)}, s5
    s_nop 4
    """)
    tmp = 160; n = 0
    for p in range(2):
        a(f"s_add_u32 s6, s7, {4*p*4096}")
        for i in range(8):
            b = tmp + (n % 2)*20; n += 1
            for tt in range(2):
                for r in range(4):
                    a(f"v_accvgpr_read_b32 {vr(b+4*tt+r)}, {ar(ACC16(2*p+tt,i)+r)}")
                    a(f"v_accvgpr_read_b32 {vr(b+8+4*tt+r)}, {ar(ACC16(4+2*p+tt,i)+r)}")
            for r in range(8):
                a(f"v_max_f32 {vr(b+r)}, 0, {vr(b+r)}")
            for r in range(0, 8, 2):
                a(f"v_pk_mul_f32 {vr(b+r,2)}, {vr(b+r,2)}, {vr(b+8+r,2)}")
            for r in range(4):
                a(f"v_cvt_pk_bf16_f32 {vr(b+16+r)}, {vr(b+2*r)}, {vr(b+2*r+1)}")
            a(f"buffer_store_dwordx4 {vr(b+16,4)}, {vr(V_EP)}, {sr(S_WS,4)}, s6 offen offset:{i*256}{SSC1()}")

    pad_ops(a, NEP - 16)

def ep_down1(a):
    c = fbits(-1.4426950408889634)
    a(f"""
    s_and_b32 s5, {sr(S_W)}, 1
    s_lshl_b32 s5, s5, 15
    s_add_u32 s7, {sr(S_COFF)}, s5
    s_mov_b32 s4, {c:#x}
    s_nop 4
    """)
    tmp = 160; n = 0
    for p in range(4):
        a(f"s_add_u32 s6, s7, {(16*(p>>1) + 4*(p&1))*4096}")
        for i in range(8):
            b = tmp + (n % 2)*20; n += 1
            for tt in range(2):
                for r in range(4):
                    a(f"v_accvgpr_read_b32 {vr(b+4*tt+r)}, {ar(ACC16(2*p+tt,i)+r)}")
            for r in range(8): a(f"v_mul_f32 {vr(b+8+r)}, s4, {vr(b+r)}")
            for r in range(8): a(f"v_exp_f32 {vr(b+8+r)}, {vr(b+8+r)}")
            for r in range(8): a(f"v_add_f32 {vr(b+8+r)}, 1.0, {vr(b+8+r)}")
            for r in range(8): a(f"v_rcp_f32 {vr(b+8+r)}, {vr(b+8+r)}")
            for r in range(8): a(f"v_mul_f32 {vr(b+r)}, {vr(b+r)}, {vr(b+8+r)}")
            for r in range(4): a(f"v_cvt_pk_bf16_f32 {vr(b+16+r)}, {vr(b+2*r)}, {vr(b+2*r+1)}")
            a(f"buffer_store_dwordx4 {vr(b+16,4)}, {vr(V_EP)}, {sr(S_WS,4)}, s6 offen offset:{i*256} sc1")

def load_srd(a, srd, ka, nbytes):
    a(f"""
    s_load_dwordx2 {sr(srd,2)}, s[0:1], {ka}
    s_mov_b32 {sr(srd+2)}, {nbytes}
    s_mov_b32 {sr(srd+3)}, 0x20000
    """)

def X2(r, i): return 32 + 32*r + 4*i
def W2(p, t): return 160 + 16*p + 4*t
def ACC2(t, i): return (i*4 + t)*4
def e2_tr(p, slot):
    return [f"ds_read_b64_tr_b16 {vr(W2(p,t) + 2*sec, 2)}, {vr(V2_WA + t)} offset:{slot*4096 + sec*2048}" for t in range(4) for sec in range(2)]
PITCH2 = 8192
def e2_wdma(slot, bd=V2_BD):
    g = [[f"s_add_u32 m0, {sr(S_M2)}, {slot*4096}", "s_nop 0",
          f"buffer_load_dwordx4 {vr(bd)}, {sr(S_B,4)}, {sr(S_BOFF)} offen lds"]]
    for j in range(1, 4):
        g.append([f"buffer_load_dwordx4 {vr(bd+j)}, {sr(S_B,4)}, {sr(S_BOFF)} offen offset:{j*1024} lds"])
    g[-1].append(f"s_add_u32 {sr(S_BOFF)}, {sr(S_BOFF)}, {32*PITCH2}")
    return g
def e2_xload(r, i):
    return f"buffer_load_dwordx4 {vr(X2(r,i),4)}, {vr(V2_XD + (i >> 1))}, {sr(S_WS,4)}, {sr(S_AOFF)} offen offset:{(i & 1)*256}{LSC1()}"
def e2_stage(a, r, swap, first=False, issue=True, vm=32, nxt=True):
    p = r & 1
    a(f"s_waitcnt vmcnt({vm}) lgkmcnt(0)")
    main = []
    for i in range(8):
        for t in range(4):
            x, y = (X2(r,i), W2(p,t)) if swap else (W2(p,t), X2(r,i))
            main.append(f"v_mfma_f32_16x16x32_bf16 {ar(ACC2(t,i),4)}, {vr(x,4)}, {vr(y,4)}, {'0' if first else ar(ACC2(t,i),4)}")
    sl = {}
    if issue: place(sl, e2_wdma(r), [0, 1, 2, 3])
    if nxt: place(sl, e2_tr(p ^ 1, (r+1) & 3), [4, 5, 6, 8, 9, 10, 12, 13])
    if issue:
        for i in range(8): place(sl, [e2_xload(r, i)], [4*i + 3])
        place(sl, [f"s_add_u32 {sr(S_AOFF)}, {sr(S_AOFF)}, 16384"], [31])
    for ln in weave(main, sl): a(ln)

def E2N(): return 8 if CFG.get('e2v', 2) == 2 else 4
def X2R(s, i, n=4):
    return vr(X2(s, i), n) if s < 4 else ar(128 + 32*(s-4) + 4*i, n)
def e2_main8b(a, swap):
    def xl(s, i):
        return f"buffer_load_dwordx4 {X2R(s,i)}, {vr(V2_XD + (i >> 1))}, {sr(S_WS,4)}, {sr(S_AOFF)} offen offset:{(i & 1)*256}{LSC1()}"
    for s in range(3):
        for i in range(8): a(xl(s, i))
        a(f"s_add_u32 {sr(S_AOFF)}, {sr(S_AOFF)}, 16384")
    se = CFG.get('sigearly')
    wm = 16 if CFG.get('wmid') else 0
    if wm:
        assert se and CFG.get('lnw') == 4 and CFG.get('lnfirst') == 2
        e2_wpro(a, 4)
    if not se:
        a("s_waitcnt vmcnt(56)")
        a("s_barrier")
        a(signal_op(sr(S_PDONE)))
    tl_fine2(a, 1)
    a(f"s_waitcnt vmcnt({16 + wm if se else 17})")
    tl_fine2(a, 2)
    for ln in e2_tr(0, 0): a(ln)
    for s in range(8):
        p = s & 1
        vm = 17 if s < 3 and not se else 16 + wm if s < 3 else 16 if s < 6 else 8 if s == 6 else 0
        a(f"s_waitcnt vmcnt({vm}) lgkmcnt(0)")
        main = []
        for i in range(8):
            for t in range(4):
                x, y = (X2R(s,i), vr(W2(p,t),4)) if swap else (vr(W2(p,t),4), X2R(s,i))
                main.append(f"v_mfma_f32_16x16x32_bf16 {ar(ACC2(t,i),4)}, {x}, {y}, {'0' if s == 0 else ar(ACC2(t,i),4)}")
        sl = {}
        if s < 7: place(sl, e2_tr(p ^ 1, s + 1), [4, 5, 6, 8, 9, 10, 12, 13])
        if s < 5:
            for i in range(8): place(sl, [xl(s + 3, i)], [4*i + 3])
            place(sl, [f"s_add_u32 {sr(S_AOFF)}, {sr(S_AOFF)}, 16384"], [31])
        for ln in weave(main, sl): a(ln)
        tl_fine2(a, 3 + s)

def SE_(): return 4 if CFG.get('wmid') else 5
def e2_main8c(a, swap):
    SE = SE_()
    def newer(st): return (SE - 1 - st)*4 + 1 + (8 - SE)*4 if st < SE else (7 - st)*4
    if CFG.get('wmid'): e2_wpro(a, SE)
    tl_fine2(a, 1)
    a(f"s_waitcnt vmcnt({newer(0)})")
    tl_fine2(a, 2)
    for ln in e2_tr(0, 0): a(ln)
    for s in range(8):
        p = s & 1
        a(f"s_waitcnt vmcnt({newer(s + 1) if s < 7 else 0}) lgkmcnt(0)")
        main = []
        for i in range(8):
            for t in range(4):
                x, y = (X2R(s,i), vr(W2(p,t),4)) if swap else (vr(W2(p,t),4), X2R(s,i))
                main.append(f"v_mfma_f32_16x16x32_bf16 {ar(ACC2(t,i),4)}, {x}, {y}, {'0' if s == 0 else ar(ACC2(t,i),4)}")
        sl = {}
        if s < 7: place(sl, e2_tr(p ^ 1, s + 1), [4, 5, 6, 8, 9, 10, 12, 13])
        for ln in weave(main, sl): a(ln)
        tl_fine2(a, 3 + s)

def e2_wpro(a, s0=0, s1=None):
    for s in range(s0, E2N() if s1 is None else s1):
        for g in e2_wdma(s):
            for ln in g: a(ln)

def e2_main8(a, swap):
    if E2N() == 8: return e2_main8b(a, swap)
    for s in range(4):
        for i in range(8): a(e2_xload(s, i))
        a(f"s_add_u32 {sr(S_AOFF)}, {sr(S_AOFF)}, 16384")
    if CFG.get('kvchain', 1):
        a("s_waitcnt vmcnt(48)")
        a("s_barrier")
        a(signal_op(sr(S_PDONE)))
    tl_fine2(a, 1)
    a("s_waitcnt vmcnt(44)")
    tl_fine2(a, 2)
    for ln in e2_tr(0, 0): a(ln)
    for r, vm in enumerate((24, 28, 32, 32)):
        e2_stage(a, r, swap, first=(r == 0), vm=vm)
        tl_fine2(a, 3 + r)
    e2_stage(a, 0, swap, issue=False, vm=32)
    tl_fine2(a, 7)
    e2_stage(a, 1, swap, issue=False, vm=20)
    tl_fine2(a, 8)
    e2_stage(a, 2, swap, issue=False, vm=8)
    tl_fine2(a, 9)
    e2_stage(a, 3, swap, issue=False, vm=0, nxt=False)
    tl_fine2(a, 10)

class _R2(int): pass
def XKEEP(): return CFG.get('xkeep') and E2N() == 8
def R2_(): return 160 if XKEEP() else 32
def e2_reduce(a):
    R2 = R2_()
    a("s_nop 7")
    for dd in range(1, 4):
        for ii in range(2):
            for t in range(4):
                a(f"ds_write_b128 {vr(V2_RW + dd-1)}, {ar(ACC2(t, 2*dd+ii), 4)} offset:{(ii*4+t)*1024}")
    for k in range(8):
        for r in range(4): a(f"v_accvgpr_read_b32 {vr(R2 + 4*k + r)}, {ar(ACC2(k & 3, k >> 2) + r)}")
    a("s_waitcnt lgkmcnt(0)")
    a("s_barrier")
    if XKEEP():
        PB = [192, 232]
        grp = [(dd, h) for dd in range(3) for h in range(2)]
        def rd(g):
            dd, h = grp[g]
            for k in range(4): a(f"ds_read_b128 {vr(PB[g & 1] + 4*k, 4)}, {vr(V2_RR + dd)} offset:{(4*h + k)*1024}")
        rd(0); rd(1)
        for g in range(6):
            dd, h = grp[g]
            a(f"s_waitcnt lgkmcnt({4 if g < 5 else 0})")
            for k in range(8):
                a(f"v_pk_add_f32 {vr(R2 + 16*h + 2*k, 2)}, {vr(R2 + 16*h + 2*k, 2)}, {vr(PB[g & 1] + 2*k, 2)}")
            if g + 2 < 6: rd(g + 2)
        return
    P = 64
    for dd in range(3):
        for k in range(8):
            a(f"ds_read_b128 {vr(P + 32*dd + 4*k, 4)}, {vr(V2_RR + dd)} offset:{k*1024}")
        a(f"s_waitcnt lgkmcnt({8 if dd > 0 else 15})") if dd > 0 else None
        if dd > 0:
            for k in range(16):
                a(f"v_pk_add_f32 {vr(R2 + 2*k, 2)}, {vr(R2 + 2*k, 2)}, {vr(P + 32*(dd-1) + 2*k, 2)}")
    a("s_waitcnt lgkmcnt(0)")
    for k in range(16):
        a(f"v_pk_add_f32 {vr(R2 + 2*k, 2)}, {vr(R2 + 2*k, 2)}, {vr(P + 64 + 2*k, 2)}")

def e2_setup_regs(a):
    a(f"""
    v_lshlrev_b32 {vr(V2_L16)}, 4, v0
    """)
    for dd in range(4):
        a(f"""
        s_add_u32 s4, {sr(S_W)}, {dd}
        s_and_b32 s4, s4, 3
        s_lshl_b32 s4, s4, 9
        v_add_u32 {vr(V2_XD+dd)}, s4, {vr(V_AD)}
        """)
    a(f"""
    v_lshrrev_b32 v1, 3, v0
    v_lshlrev_b32 v1, 13, v1
    v_bfe_u32 v2, v0, 1, 2
    v_lshrrev_b32 v3, 4, v0
    v_xor_b32 v2, v2, v3
    v_lshlrev_b32 v2, 5, v2
    v_add_u32 v1, v1, v2
    v_and_b32 v2, 1, v0
    v_lshlrev_b32 v2, 4, v2
    v_add_u32 {vr(V2_BD)}, v1, v2
    """)
    for j in range(1, 4): a(f"v_add_u32 {vr(V2_BD+j)}, {j*(8*PITCH2-1024)}, {vr(V2_BD)}")
    a(f"""
    v_lshrrev_b32 v1, 4, v0
    v_lshlrev_b32 v1, 2, v1
    v_bfe_u32 v2, v0, 2, 2
    v_add_u32 v1, v1, v2              ; k
    v_bfe_u32 v2, v1, 1, 2            ; (k>>1)&3
    v_lshlrev_b32 v1, 7, v1
    v_and_b32 v3, 3, v0
    v_lshlrev_b32 v3, 3, v3
    v_add_u32 v1, v1, v3
    s_lshl_b32 s4, {sr(S_W)}, {15 if E2N() == 8 else 14}
    v_add_u32 v1, s4, v1
    """)
    for tl in range(4):
        a(f"""
        v_xor_b32 v3, {tl}, v2
        v_lshlrev_b32 v3, 5, v3
        v_add_u32 {vr(V2_WA+tl)}, v1, v3
        """)
    if E2N() == 8:
        a(f"""
        s_lshl_b32 s4, {sr(S_W)}, 15
        v_add_u32 {vr(V2_RW)}, s4, {vr(V2_L16)}
        v_add_u32 {vr(V2_RW+1)}, 8192, {vr(V2_RW)}
        v_add_u32 {vr(V2_RW+2)}, 16384, {vr(V2_RW)}
        """)
        for dd in range(1, 4):
            a(f"""
            s_sub_u32 s4, {sr(S_W)}, {dd}
            s_and_b32 s4, s4, 3
            s_lshl_b32 s4, s4, 15
            s_add_u32 s4, s4, {(dd-1)*8192}
            v_add_u32 {vr(V2_RR+dd-1)}, s4, {vr(V2_L16)}
            """)
        return
    a(f"""
    s_lshl_b32 s4, {sr(S_W)}, 14
    v_add_u32 {vr(V2_RW)}, s4, {vr(V2_L16)}
    v_add_u32 {vr(V2_RW+1)}, 8192, {vr(V2_RW)}
    s_lshl_b32 s4, {sr(S_W)}, 13
    s_add_u32 s4, s4, 65536
    v_add_u32 {vr(V2_RW+2)}, s4, {vr(V2_L16)}
    """)
    for dd in range(1, 4):
        a(f"""
        s_sub_u32 s4, {sr(S_W)}, {dd}
        s_and_b32 s4, s4, 3
        """)
        if dd < 3:
            a(f"""
            s_lshl_b32 s4, s4, 14
            s_add_u32 s4, s4, {(dd-1)*8192}
            """)
        else:
            a(f"""
            s_lshl_b32 s4, s4, 13
            s_add_u32 s4, s4, 65536
            """)
        a(f"v_add_u32 {vr(V2_RR+dd-1)}, s4, {vr(V2_L16)}")

def ep_kv0(a, swap):
    Q = 192 if XKEEP() else 96
    R2 = R2_()
    if not swap:
        for ii in range(2):
            for pr in range(2):
                q = Q + 4*(ii*2+pr); b = R2 + (ii*4 + 2*pr)*4
                for d in range(4): a(f"v_cvt_pk_bf16_f32 {vr(q+d)}, {vr(b+2*d)}, {vr(b+2*d+1)}")
        a(f"s_add_u32 s5, {sr(S_COFF)}, 16384")
        for ii in range(2):
            for pr in range(2):
                so = sr(S_COFF) if pr == 0 else "s5"
                a(f"buffer_store_dwordx4 {vr(Q+4*(ii*2+pr),4)}, {vr(V_AD)}, {sr(S_WS,4)}, {so} offen offset:{ii*256} sc1")
    else:
        for t in range(4):
            q = Q + 4*t
            for ii in range(2):
                b = R2 + (ii*4 + t)*4
                a(f"v_cvt_pk_bf16_f32 {vr(q+2*ii)}, {vr(b)}, {vr(b+1)}")
                a(f"v_cvt_pk_bf16_f32 {vr(q+2*ii+1)}, {vr(b+2)}, {vr(b+3)}")
        for t in range(4):
            a(f"buffer_store_dwordx4 {vr(Q+4*t,4)}, {vr(V_VD)}, {sr(S_WS,4)}, {sr(S_COFF)} offen offset:{t*256} sc1")

def kv0_setup(a):
    l1 = a.label("Lk0"); l2 = a.label("Lk0"); l3 = a.label("Lk0")
    a(f"""
    s_lshl_b32 s4, {sr(S_J)}, 5
    s_add_u32 s5, s4, {sr(S_T)}
    s_mov_b32 {sr(S_MT)}, 0                       ; half
    s_mov_b32 {sr(S_DONE)}, {OFF_CNT + CN_KV0A*256}
    s_cmp_eq_u32 {sr(S_KIND)}, 0
    s_cbranch_scc1 {l1}
    s_add_u32 s5, s5, {sr(S_T)}
    s_add_u32 s5, s5, {sr(S_KIND)}
    s_sub_u32 s5, s5, 1
    s_mov_b32 {sr(S_MT)}, 1
    s_mov_b32 {sr(S_DONE)}, {OFF_CNT + CN_KV*256}
    {l1}:
    s_and_b32 {sr(S_NT)}, s5, 63
    s_lshr_b32 s4, {sr(S_J)}, 1
    s_lshl_b32 s4, s4, 3
    s_add_u32 s4, s4, {KA_WK}
    s_load_dwordx2 {sr(S_B,2)}, s[0:1], s4
    s_mov_b32 {sr(S_B+2)}, {8*MB}
    s_mov_b32 {sr(S_B+3)}, 0x20000
    s_lshl_b32 {sr(S_AOFF)}, {sr(S_W)}, 17
    s_lshl_b32 s4, {sr(S_MT)}, 11
    s_add_u32 {sr(S_AOFF)}, {sr(S_AOFF)}, s4
    s_add_u32 {sr(S_AOFF)}, {sr(S_AOFF)}, {OFF_XN}
    s_lshl_b32 {sr(S_BOFF)}, {sr(S_W)}, 21
    s_lshl_b32 s4, {sr(S_NT)}, 7
    s_add_u32 {sr(S_BOFF)}, {sr(S_BOFF)}, s4
    s_lshl_b32 {sr(S_M2)}, {sr(S_W)}, {15 if E2N() == 8 else 14}
    s_cmp_ge_u32 {sr(S_J)}, 2
    s_cbranch_scc1 {l2}
    s_lshl_b32 s4, {sr(S_NT)}, 15
    s_lshl_b32 s5, {sr(S_MT)}, 11
    s_add_u32 s4, s4, s5
    s_lshl_b32 s5, {sr(S_W)}, 9
    s_add_u32 s4, s4, s5
    s_add_u32 {sr(S_COFF)}, s4, {OFF_KX}
    s_branch {l3}
    {l2}:
    s_lshl_b32 s4, {sr(S_MT)}, 2
    s_add_u32 s4, s4, {sr(S_W)}
    s_lshl_b32 s4, s4, 18
    s_lshl_b32 s5, {sr(S_NT)}, 10
    s_add_u32 s4, s4, s5
    s_add_u32 {sr(S_COFF)}, s4, {OFF_VT}
    {l3}:
    s_waitcnt lgkmcnt(0)
    """)

def ln0_probe(a):
    if CFG.get('ln0a', 1):
        a(f"v_mov_b32 v6, {C_LN0*4}")
        a(f"buffer_load_dword v7, v6, {sr(S_DBG,4)}, 0 offen sc1")

def ln0_check(a):
    if CFG.get('ln0a', 1):
        top = a.label("Ll0"); ok = a.label("Ll0o")
        a(f"""
        {top}:
        s_waitcnt vmcnt(0)
        v_cmp_le_u32 vcc, 16, v7
        s_cbranch_vccnz {ok}
        s_sub_u32 {sr(S_GBUD)}, {sr(S_GBUD)}, 1
        s_cbranch_scc1 L_abort
        s_sleep 2
        buffer_load_dword v7, v6, {sr(S_DBG,4)}, 0 offen sc1
        s_branch {top}
        {ok}:
        """)

def kv0_loop(a):
    a("L_kv0:")
    tl_stamp(a, 1)
    tl_fine2(a, 0)
    if XKEEP():
        assert CFG.get('sigearly')
        a(f"s_cmp_eq_u32 {sr(S_KIND)}, 2")
        a("s_cbranch_scc1 L_kv0c")
    a(f"s_cmp_ge_u32 {sr(S_J)}, 2")
    a("s_cbranch_scc1 L_kv0V")
    e2_main8(a, False)
    a("L_kv0Kr:")
    ln0_probe(a)
    e2_reduce(a)
    tl_fine2(a, 11)
    ln0_check(a)
    ep_kv0(a, False)
    a("s_branch L_kv0done")
    if XKEEP():
        a("L_kv0c:")
        a(f"s_cmp_ge_u32 {sr(S_J)}, 2")
        a("s_cbranch_scc1 L_kv0cV")
        e2_main8c(a, False)
        a("s_branch L_kv0Kr")
        a("L_kv0cV:")
        e2_main8c(a, True)
        a("s_branch L_kv0Vr")
    a("L_kv0V:")
    e2_main8(a, True)
    a("L_kv0Vr:")
    ln0_probe(a)
    e2_reduce(a)
    tl_fine2(a, 11)
    ln0_check(a)
    ep_kv0(a, True)
    a("L_kv0done:")
    tl_fine2(a, 12)
    if CFG.get('kvchain', 1):
        if CFG.get('tl'):
            a(f"s_lshl_b32 s68, {sr(S_KIND)}, 4")
            a("s_or_b32 s68, s68, 8")
            tl_store_nowait(a, "s68")
        a(f"""
        s_add_u32 {sr(S_KIND)}, {sr(S_KIND)}, 1
        s_cmp_ge_u32 {sr(S_T)}, 16
        s_cbranch_scc1 L_kv0last
        s_cmp_ge_u32 {sr(S_KIND)}, 3
        s_cbranch_scc1 L_kv0last
        s_mov_b32 {sr(S_PDONE)}, {sr(S_DONE)}
        s_barrier
        """)
        kv0_setup(a)
        if CFG.get('sigearly'):
            SE = SE_()
            e2_wpro(a, 0, SE)
            a(f"s_waitcnt vmcnt({4*SE})")
            a("s_barrier")
            a(signal_op(sr(S_PDONE)))
            if not CFG.get('wmid'): e2_wpro(a, SE)
        else:
            e2_wpro(a)
        a("s_branch L_kv0")
        a("L_kv0last:")
        drain_signal(a)
        a("L_kv0end:")
        return
    drain_signal(a)
    if CFG.get('tl'):
        a(f"s_lshl_b32 s68, {sr(S_KIND)}, 4")
        a("s_or_b32 s68, s68, 8")
        tl_store_nowait(a, "s68")
    a(f"""
    s_add_u32 {sr(S_KIND)}, {sr(S_KIND)}, 1
    s_cmp_ge_u32 {sr(S_T)}, 16
    s_cbranch_scc1 L_kv0end
    s_cmp_ge_u32 {sr(S_KIND)}, 3
    s_cbranch_scc1 L_kv0end
    """)
    kv0_setup(a)
    e2_wpro(a)
    a("s_branch L_kv0")
    a("L_kv0end:")

V3_TR, V3_WD, V3_XO, V3_RW, V3_RR, V_PA, V_PT, V_PV = 208, 210, 211, 212, 213, 214, 215, 216
V3_EX = 204
X3 = lambda p, ii: 32 + (p*2 + ii)*4
W3 = lambda p, t: (p*4 + t)*4
ACC3, XG3, OWN3, PART3, T3 = 160, 192, 196, 200, 218
S_CB, S_SEG, S_NSEG, S_XO, S_GO, S_NAOFF, S_RDY = 30, 31, 32, 33, 34, 35, 36
S_PSEG, S_EXI, S_EXO = 37, 39, 29
S_MSK = 80
CN_PAIR = 128
EXSEG = 32*4096

def e3_setup(a):
    load_srd(a, S_B, KA_WO, 8*MB)
    a(f"""
    v_lshrrev_b32 v1, 2, v0
    v_lshlrev_b32 v1, 11, v1
    v_and_b32 v2, 3, v0
    v_lshlrev_b32 v2, 4, v2
    v_add_u32 {vr(V3_WD)}, v1, v2                 ; (l>>2)*2048 + (l&3)*16
    v_lshrrev_b32 v1, 4, v0
    v_lshlrev_b32 v1, 2, v1
    v_bfe_u32 v2, v0, 2, 2
    v_add_u32 v1, v1, v2                          ; k = 4g + r
    v_lshlrev_b32 v1, 6, v1
    v_and_b32 v2, 3, v0
    v_lshlrev_b32 v2, 3, v2
    v_add_u32 v1, v1, v2
    s_lshl_b32 s4, {sr(S_W)}, 14
    v_add_u32 {vr(V3_TR)}, s4, v1
    v_add_u32 {vr(V3_TR+1)}, 0x10000, {vr(V3_TR)}
    v_and_b32 v1, 15, v0
    v_lshlrev_b32 v1, 11, v1
    v_lshrrev_b32 v2, 4, v0
    v_lshlrev_b32 v2, 3, v2
    v_add_u32 {vr(V3_XO)}, v1, v2                 ; i*2048 + g*8
    v_lshlrev_b32 v1, 4, v0
    s_lshl_b32 s4, {sr(S_W)}, 13
    v_add_u32 {vr(V3_RW)}, s4, v1
    s_lshl_b32 s4, {sr(S_W)}, 10
    v_add_u32 {vr(V3_RR)}, s4, v1
    v_mov_b32 {vr(V3_EX)}, {vr(V3_RR)}
    s_and_b32 s5, {sr(S_CB)}, 1
    s_lshl_b32 s5, s5, 2
    s_add_u32 s5, s5, {sr(S_W)}
    s_lshl_b32 {sr(S_T0+8)}, s5, 20
    s_lshl_b32 {sr(S_M2)}, {sr(S_W)}, 14
    v_mov_b32 {vr(ACC3)}, -1
    v_mov_b32 {vr(ACC3+1)}, -1
    v_mov_b32 {vr(ACC3+2)}, -1
    v_mov_b32 {vr(ACC3+3)}, -1
    s_mov_b64 s[6:7], {sr(S_MSK,2)}
    L_e3arm:
    s_ff1_i32_b64 s4, s[6:7]
    s_bitset0_b64 s[6:7], s4
    s_lshl_b32 s4, s4, 17
    s_lshl_b32 s5, {sr(S_CB)}, 12
    s_add_u32 s4, s4, s5
    s_add_u32 s4, s4, {OFF_EX}
    buffer_store_dwordx4 {vr(ACC3,4)}, {vr(V3_EX)}, {sr(S_WS,4)}, s4 offen
    s_cmp_lg_u64 s[6:7], 0
    s_cbranch_scc1 L_e3arm
    s_waitcnt lgkmcnt(0)
    """)
    def batch(b):
        a(f"""
        s_xor_b32 s4, {sr(S_CB)}, {b >> 1}
        s_lshl_b32 s4, s4, 6
        s_add_u32 {sr(S_BOFF)}, {sr(S_T0+8)}, s4
        s_add_u32 {sr(S_BOFF)}, {sr(S_BOFF)}, {(b & 1)*256*2048}
        """)
        for i in range(16):
            a(f"""
            s_add_u32 m0, {sr(S_M2)}, {(b & 1)*65536 + i*1024}
            s_nop 0
            buffer_load_dwordx4 {vr(V3_WD)}, {sr(S_B,4)}, {sr(S_BOFF)} offen lds
            s_add_u32 {sr(S_BOFF)}, {sr(S_BOFF)}, {16*2048}
            """)
    def reads(b):
        n = 0
        for p in range(8):
            for t in range(2):
                for sec in range(2):
                    a(f"ds_read_b64_tr_b16 {ar(W3(8*(b & 1)+p, 2*(b >> 1)+t) + 2*sec, 2)}, {vr(V3_TR + (b & 1))} offset:{p*2048 + sec*1024 + t*32}")
                    n += 1
                    if n % 8 == 0: a("s_waitcnt lgkmcnt(4)")
        a("s_waitcnt lgkmcnt(0)")
    batch(0); batch(1)
    for b in range(4):
        a(f"s_waitcnt vmcnt({16 if b < 3 else 0})")
        reads(b)
        if b < 2: batch(b + 2)
    a("s_barrier")
    a(f"""
    s_lshr_b32 s4, {sr(S_T)}, 1
    s_lshl_b32 s5, {sr(S_J)}, 4
    s_add_u32 s4, s4, s5
    s_lshl_b32 s4, s4, 8
    s_add_u32 {sr(S_DONE)}, s4, {OFF_CNT + CN_PAIR*256}
    """)
    a(signal_op(sr(S_DONE)))
    load_srd(a, S_B, KA_X, 4*MB)
    load_srd(a, S_OUT, KA_OUT, 4*MB)
    a(f"""
    s_mov_b32 {sr(S_A)}, {sr(S_WS)}
    s_mov_b32 {sr(S_A+1)}, {sr(S_WS+1)}
    s_mov_b32 {sr(S_A+3)}, 0x20000
    s_waitcnt lgkmcnt(0)
    """)
    wait_word(a, S_WS, sr(S_DONE), 2, 2)

V_OD = 205
def OSTEP(): return 2048 if CFG.get('oseg', 1) else 16384
def V_OA(): return V_OD if CFG.get('oseg', 1) else V_AD
def e3_xbase(a, dst, seg):
    if CFG.get('oseg', 1):
        a(f"""
        s_lshl_b32 s4, {sr(seg)}, 18
        s_and_b32 s5, {sr(S_CB)}, 1
        s_lshl_b32 s5, s5, 2
        s_add_u32 s5, s5, {sr(S_W)}
        s_lshl_b32 s5, s5, 15
        s_add_u32 s4, s4, s5
        s_add_u32 {sr(dst)}, s4, {OFF_OX}
        """)
        return
    a(f"""
    s_lshr_b32 s4, {sr(seg)}, 3
    s_lshl_b32 s4, s4, 21
    s_and_b32 s5, {sr(seg)}, 7
    s_lshl_b32 s5, s5, 9
    s_add_u32 s4, s4, s5
    s_and_b32 s5, {sr(S_CB)}, 1
    s_lshl_b32 s5, s5, 2
    s_add_u32 s5, s5, {sr(S_W)}
    s_lshl_b32 s5, s5, 18
    s_add_u32 s4, s4, s5
    s_add_u32 {sr(dst)}, s4, {OFF_OX}
    """)

def e3_polladdr(a, seg):
    a(f"""
    s_lshl_b32 s4, {sr(seg)}, 8
    s_add_u32 s4, s4, {OFF_CNT + CN_AT*256}
    v_mov_b32 {vr(V_PA)}, s4
    s_lshr_b32 s5, {sr(seg)}, 3
    s_lshl_b32 s5, s5, 8
    s_add_u32 s5, s5, {OFF_CNT + CN_DN*256}
    v_writelane_b32 {vr(V_PA)}, s5, 1
    """)

def e3_ld(p, ii, srd, soff):
    return f"buffer_load_dwordx4 {vr(X3(p,ii),4)}, {vr(V_OA())}, {sr(srd,4)}, {sr(soff)} offen offset:{ii*256}{CFG.get('e3mod', ' sc1')}"

def e3_finaddr(a, seg):
    a(f"""
    s_lshl_b32 s4, {sr(seg)}, 16
    s_lshr_b32 s5, {sr(S_W)}, 1
    s_lshl_b32 s6, s5, 15
    s_add_u32 s4, s4, s6
    s_lshl_b32 s6, {sr(S_CB)}, 6
    s_add_u32 s4, s4, s6
    s_and_b32 s7, {sr(S_W)}, 1
    s_lshl_b32 s6, s7, 5
    s_add_u32 {sr(S_XO)}, s4, s6
    s_lshr_b32 s4, {sr(seg)}, 3
    s_lshl_b32 s4, s4, 19
    s_lshl_b32 s6, {sr(S_CB)}, 14
    s_add_u32 s4, s4, s6
    s_and_b32 s6, {sr(seg)}, 7
    s_lshl_b32 s6, s6, 9
    s_add_u32 s4, s4, s6
    s_lshl_b32 s6, s5, 8
    s_add_u32 s4, s4, s6
    s_lshl_b32 s6, s7, 3
    s_add_u32 s4, s4, s6
    s_add_u32 {sr(S_GO)}, s4, {OFF_GS}
    s_lshl_b32 s4, {sr(seg)}, 17
    s_xor_b32 s5, {sr(S_CB)}, 1
    s_lshl_b32 s5, s5, 12
    s_add_u32 s4, s4, s5
    s_add_u32 {sr(S_EXI)}, s4, {OFF_EX}
    """)

def e3_xg(a):
    a(f"""
    buffer_load_dwordx2 {vr(XG3,2)}, {vr(V3_XO)}, {sr(S_B,4)}, {sr(S_XO)} offen
    buffer_load_dwordx2 {vr(XG3+2,2)}, {vr(V_AD)}, {sr(S_WS,4)}, {sr(S_GO)} offen sc1
    """)

def e3_part():
    return f"buffer_load_dwordx4 {vr(PART3,4)}, {vr(V3_EX)}, {sr(S_WS,4)}, {sr(S_EXI)} offen sc1"

def e3_finish(a, vm):
    top = a.label("Le3f"); retry = a.label("Le3r")
    T = T3
    a(f"""
    s_waitcnt vmcnt({vm})
    {top}:
    v_max3_u32 {vr(T)}, {vr(PART3)}, {vr(PART3+1)}, {vr(PART3+2)}
    v_max_u32 {vr(T)}, {vr(T)}, {vr(PART3+3)}
    v_cmp_eq_u32 vcc, -1, {vr(T)}
    s_cbranch_vccnz {retry}
    v_pk_add_f32 {vr(PART3,2)}, {vr(PART3,2)}, {vr(OWN3,2)}
    v_pk_add_f32 {vr(PART3+2,2)}, {vr(PART3+2,2)}, {vr(OWN3+2,2)}
    v_lshlrev_b32 {vr(T)}, 16, {vr(XG3)}
    v_and_b32 {vr(T+1)}, 0xffff0000, {vr(XG3)}
    v_lshlrev_b32 {vr(T+2)}, 16, {vr(XG3+1)}
    v_and_b32 {vr(T+3)}, 0xffff0000, {vr(XG3+1)}
    v_lshlrev_b32 {vr(T+4)}, 16, {vr(XG3+2)}
    v_and_b32 {vr(T+5)}, 0xffff0000, {vr(XG3+2)}
    v_lshlrev_b32 {vr(T+6)}, 16, {vr(XG3+3)}
    v_and_b32 {vr(T+7)}, 0xffff0000, {vr(XG3+3)}
    v_fma_f32 {vr(T)}, {vr(PART3)}, {vr(T+4)}, {vr(T)}
    v_fma_f32 {vr(T+1)}, {vr(PART3+1)}, {vr(T+5)}, {vr(T+1)}
    v_fma_f32 {vr(T+2)}, {vr(PART3+2)}, {vr(T+6)}, {vr(T+2)}
    v_fma_f32 {vr(T+3)}, {vr(PART3+3)}, {vr(T+7)}, {vr(T+3)}
    v_cvt_pk_bf16_f32 {vr(T+8)}, {vr(T)}, {vr(T+1)}
    v_cvt_pk_bf16_f32 {vr(T+9)}, {vr(T+2)}, {vr(T+3)}
    buffer_store_dwordx2 {vr(T+8,2)}, {vr(V3_XO)}, {sr(S_OUT,4)}, {sr(S_XO)} offen{CFG.get('outmod', '')}
    """)
    a.cold3.append(f"""{retry}:
    s_sub_u32 {sr(S_GBUD)}, {sr(S_GBUD)}, 1
    s_cbranch_scc1 L_abort
    {e3_part()}
    s_waitcnt vmcnt(0)
    s_branch {top}""")

def e3_data(a):
    XD = lambda p, ii: 32 + (p*2 + ii)*4
    nof = a.label("Le3dn"); top = a.label("Le3dp"); ok = a.label("Le3do"); st = a.label("Le3ds"); sok = a.label("Le3dk"); full = a.label("Le3df")
    a("L_e3data:")
    a(f"""
    s_cmp_lt_i32 {sr(S_PSEG)}, 0
    s_cbranch_scc1 {nof}
    """)
    e3_finaddr(a, S_PSEG)
    e3_xg(a)
    a(e3_part())
    e3_finish(a, 0)
    a(f"""
    s_mov_b32 {sr(S_PSEG)}, -1
    {nof}:
    s_sub_u32 s4, {sr(S_SEG)}, 4
    s_lshl_b32 s4, s4, 8
    s_add_u32 s4, s4, {OFF_CNT + CN_AT*256}
    v_mov_b32 {vr(V_PA)}, s4
    s_lshr_b32 s5, {sr(S_SEG)}, 3
    s_lshl_b32 s5, s5, 8
    s_add_u32 s5, s5, {OFF_CNT + CN_DN*256}
    v_writelane_b32 {vr(V_PA)}, s5, 1
    {top}:
    buffer_load_dword {vr(V_PV)}, {vr(V_PA)}, {sr(S_WS,4)}, 0 offen sc1
    s_waitcnt vmcnt(0)
    v_cmp_ge_u32 vcc, {vr(V_PV)}, {vr(V_PT)}
    s_cmp_eq_u64 vcc, -1
    s_cbranch_scc1 {ok}
    s_sleep {CFG.get('e3sleep', 4)}
    s_sub_u32 {sr(S_GBUD)}, {sr(S_GBUD)}, 1
    s_cbranch_scc0 {top}
    s_branch L_abort
    {ok}:
    """)
    e3_xbase(a, S_AOFF, S_SEG)
    a(f"""
    s_lshl_b32 s4, {sr(S_SEG)}, 17
    s_lshl_b32 s5, {sr(S_CB)}, 12
    s_add_u32 s4, s4, s5
    s_add_u32 {sr(S_EXO)}, s4, {OFF_EX}
    s_ff1_i32_b64 {sr(S_NSEG)}, {sr(S_MSK,2)}
    s_mov_b32 {sr(S_RDY)}, 0
    v_lshrrev_b32 {vr(T3)}, 4, v0
    v_lshlrev_b32 {vr(T3)}, 13, {vr(T3)}
    v_and_b32 {vr(T3+1)}, 15, v0
    v_lshlrev_b32 {vr(T3+1)}, 4, {vr(T3+1)}
    v_add_u32 {vr(T3)}, {vr(T3)}, {vr(T3+1)}
    v_add_u32 {vr(T3)}, {3*2048 + 256 + 3*512}, {vr(T3)}
    {st}:
    buffer_load_dword {vr(T3+1)}, {vr(T3)}, {sr(S_WS,4)}, {sr(S_AOFF)} offen sc1
    s_waitcnt vmcnt(0)
    v_cmp_eq_u32 vcc, -1, {vr(T3+1)}
    s_cbranch_vccz {full}
    s_sleep {CFG.get('odsleep', 2)}
    s_sub_u32 {sr(S_GBUD)}, {sr(S_GBUD)}, 1
    s_cbranch_scc0 {st}
    s_branch L_abort
    {full}:
    s_mov_b32 {sr(S_NAOFF)}, {sr(S_AOFF)}
    """)
    tl_stamp(a, 1)
    for p in range(16):
        for ii in range(2):
            a(f"buffer_load_dwordx4 {vr(XD(p,ii),4)}, {vr(V_OA())}, {sr(S_WS,4)}, {sr(S_NAOFF)} offen offset:{ii*256} sc1")
        if p < 15: a(f"s_add_u32 {sr(S_NAOFF)}, {sr(S_NAOFF)}, {OSTEP()}")
    a(f"v_mov_b32 {vr(T3+1)}, 0")
    for p in range(16):
        a(f"s_waitcnt vmcnt({30 - 2*p})")
        n = 0
        for t in range(4):
            for ii in range(2):
                acc = ACC3 + ((t >> 1)*4 + ii*2 + (t & 1))*4
                a(f"v_mfma_f32_16x16x32_bf16 {vr(acc,4)}, {ar(W3(p,t),4)}, {vr(XD(p,ii),4)}, {'0' if p == 0 else vr(acc,4)}")
                if n < 4: a(f"v_max3_u32 {vr(T3+1)}, {vr(T3+1)}, {vr(XD(p,0)+2*n)}, {vr(XD(p,0)+2*n+1)}")
                n += 1
    a(f"""
    v_cmp_eq_u32 vcc, -1, {vr(T3+1)}
    s_cbranch_vccz L_e3red
    s_sub_u32 {sr(S_GBUD)}, {sr(S_GBUD)}, 1
    s_cbranch_scc0 {full}
    s_branch L_abort
    """)

def e3_loop(a):
    a.cold3 = []
    a(f"""
    v_mov_b32 {vr(V_PT)}, 8
    s_mov_b32 s4, 4
    v_writelane_b32 {vr(V_PT)}, s4, 1
    s_ff1_i32_b64 {sr(S_SEG)}, {sr(S_MSK,2)}
    s_bitset0_b64 {sr(S_MSK,2)}, {sr(S_SEG)}
    s_mov_b32 {sr(S_PSEG)}, -1
    L_e3cold:
    """)
    tl_stamp(a, 0)
    if CFG.get('odata'):
        a(f"s_cmp_ge_u32 {sr(S_SEG)}, {CFG['odata']}")
        a("s_cbranch_scc1 L_e3data")
    e3_polladdr(a, S_SEG)
    top = a.label("Le3p"); ok = a.label("Le3o")
    a(f"""
    {top}:
    buffer_load_dword {vr(V_PV)}, {vr(V_PA)}, {sr(S_WS,4)}, 0 offen sc1
    s_waitcnt vmcnt(0)
    v_cmp_ge_u32 vcc, {vr(V_PV)}, {vr(V_PT)}
    s_cmp_eq_u64 vcc, -1
    s_cbranch_scc1 {ok}
    s_sleep {CFG.get('e3sleep', 4)}
    s_sub_u32 {sr(S_GBUD)}, {sr(S_GBUD)}, 1
    s_cbranch_scc0 {top}
    s_branch L_abort
    {ok}:
    """)
    e3_xbase(a, S_AOFF, S_SEG)
    for p in range(8):
        a(e3_ld(p, 0, S_WS, S_AOFF)); a(e3_ld(p, 1, S_WS, S_AOFF))
        a(f"s_add_u32 {sr(S_AOFF)}, {sr(S_AOFF)}, {OSTEP()}")
    pad_ops(a, 2)
    a("L_e3top:")
    tl_stamp(a, 1)
    a(f"""
    s_cmp_lt_i32 {sr(S_PSEG)}, 0
    s_cselect_b32 {sr(S_T0+8)}, {sr(S_SEG)}, {sr(S_PSEG)}
    """)
    e3_finaddr(a, S_T0+8)
    a(f"""
    s_lshl_b32 s4, {sr(S_SEG)}, 17
    s_lshl_b32 s5, {sr(S_CB)}, 12
    s_add_u32 s4, s4, s5
    s_add_u32 {sr(S_EXO)}, s4, {OFF_EX}
    s_ff1_i32_b64 {sr(S_NSEG)}, {sr(S_MSK,2)}
    s_max_i32 s7, {sr(S_NSEG)}, 0
    s_mov_b32 {sr(S_T0+8)}, s7
    """)
    e3_polladdr(a, S_T0+8)
    e3_xg(a)
    a(f"buffer_load_dword {vr(V_PV)}, {vr(V_PA)}, {sr(S_WS,4)}, 0 offen sc1")
    e3_xbase(a, S_NAOFF, S_T0+8)
    for p in range(16):
        a(f"s_waitcnt vmcnt({19 if p < 8 else 14 if p == 8 else 15})")
        if p == 8:
            a(f"""
            v_cmp_ge_u32 vcc, {vr(V_PV)}, {vr(V_PT)}
            s_cmp_eq_u64 vcc, -1
            s_cselect_b32 {sr(S_RDY)}, 1, 0
            s_cmp_lt_i32 {sr(S_NSEG)}, 0
            s_cselect_b32 {sr(S_RDY)}, 0, {sr(S_RDY)}
            s_cmp_eq_u32 {sr(S_RDY)}, 1
            s_cselect_b32 {sr(S_A+2)}, {WS_BYTES}, 0
            {e3_part()}
            """)
        for t in range(4):
            for ii in range(2):
                acc = ACC3 + ((t >> 1)*4 + ii*2 + (t & 1))*4
                a(f"v_mfma_f32_16x16x32_bf16 {vr(acc,4)}, {ar(W3(p,t),4)}, {vr(X3(p,ii),4)}, {'0' if p == 0 else vr(acc,4)}")
        if p < 8:
            a(e3_ld(p + 8, 0, S_WS, S_AOFF)); a(e3_ld(p + 8, 1, S_WS, S_AOFF))
            a(f"s_add_u32 {sr(S_AOFF)}, {sr(S_AOFF)}, {OSTEP()}")
        else:
            a(e3_ld(p - 8, 0, S_A, S_NAOFF)); a(e3_ld(p - 8, 1, S_A, S_NAOFF))
            a(f"s_add_u32 {sr(S_NAOFF)}, {sr(S_NAOFF)}, {OSTEP()}")
    a("L_e3red:")
    a("s_nop 7")
    for q in range(8): a(f"ds_write_b128 {vr(V3_RW)}, {vr(ACC3+4*q,4)} offset:{q*1024}")
    a("s_waitcnt lgkmcnt(0)")
    a("s_barrier")
    for hb in (1, 0):
        for src in range(4): a(f"ds_read_b128 {vr(ACC3+16*hb+4*src,4)}, {vr(V3_RR)} offset:{src*8192 + hb*4096}")
    a(f"""
    v_xor_b32 {vr(V3_RW)}, 32768, {vr(V3_RW)}
    v_xor_b32 {vr(V3_RR)}, 32768, {vr(V3_RR)}
    """)
    def sum4(b, d):
        a(f"""
        v_pk_add_f32 {vr(b,2)}, {vr(b,2)}, {vr(b+4,2)}
        v_pk_add_f32 {vr(b+2,2)}, {vr(b+2,2)}, {vr(b+6,2)}
        v_pk_add_f32 {vr(b+8,2)}, {vr(b+8,2)}, {vr(b+12,2)}
        v_pk_add_f32 {vr(b+10,2)}, {vr(b+10,2)}, {vr(b+14,2)}
        v_pk_add_f32 {vr(d,2)}, {vr(b,2)}, {vr(b+8,2)}
        v_pk_add_f32 {vr(d+2,2)}, {vr(b+2,2)}, {vr(b+10,2)}
        """)
    a("s_waitcnt lgkmcnt(4)")
    sum4(ACC3+16, ACC3+16)
    a(f"buffer_store_dwordx4 {vr(ACC3+16,4)}, {vr(V3_EX)}, {sr(S_WS,4)}, {sr(S_EXO)} offen")
    nofin = a.label("Le3n"); fin = a.label("Le3d")
    a(f"""
    s_cmp_lt_i32 {sr(S_PSEG)}, 0
    s_cbranch_scc1 {nofin}
    """)
    e3_finish(a, 17)
    a(f"{fin}:")
    a.cold3.append(f"""{nofin}:
    buffer_store_dword {vr(V_ONE)}, {vr(V_OOB)}, {sr(S_WS,4)}, 0 offen
    s_branch {fin}""")
    a("s_waitcnt lgkmcnt(0)")
    sum4(ACC3, OWN3)
    if CFG.get('tl'):
        a(f"s_lshl_b32 s68, {sr(S_SEG)}, 4")
        a("s_or_b32 s68, s68, 7")
        tl_store_nowait(a, "s68")
    a(f"""
    s_mov_b32 {sr(S_PSEG)}, {sr(S_SEG)}
    s_cmp_lt_i32 {sr(S_NSEG)}, 0
    s_cbranch_scc1 L_e3tail
    s_mov_b32 {sr(S_SEG)}, {sr(S_NSEG)}
    s_bitset0_b64 {sr(S_MSK,2)}, {sr(S_SEG)}
    s_cmp_eq_u32 {sr(S_RDY)}, 0
    s_cbranch_scc1 L_e3cold
    s_mov_b32 {sr(S_AOFF)}, {sr(S_NAOFF)}
    """)
    tl_stamp(a, 0)
    a("""
    s_branch L_e3top
    L_e3tail:
    """)
    e3_finaddr(a, S_PSEG)
    e3_xg(a)
    a(e3_part())
    e3_finish(a, 0)
    a("""
    s_waitcnt vmcnt(0)
    s_branch L_e3end
    """)
    if CFG.get('odata'): e3_data(a)
    for c in a.cold3: a(c)
    a("L_e3end:")

AQ, AK, AKM, AV, AVM = 32, 64, 96, 112, 144
A_ONE = 156
ASC = 160
APX, APA, APB = 180, 188, 196
def att_setup_regs(a):
    a(f"""
    v_and_b32 v1, 15, v0
    v_lshrrev_b32 v2, 4, v0
    v_lshlrev_b32 v4, 16, v2
    v_lshlrev_b32 v5, 4, v1
    v_add_u32 {vr(V_VD)}, v4, v5                  ; g*65536 + n*16
    v_bfe_u32 v4, v1, 2, 1
    v_lshlrev_b32 v4, 2, v4
    v_lshrrev_b32 v5, 3, v1
    v_lshlrev_b32 v5, 1, v5
    v_add_u32 v4, v4, v5
    v_and_b32 v5, 1, v1
    v_add_u32 v4, v4, v5
    v_lshlrev_b32 v4, 4, v4
    v_lshlrev_b32 v5, 7, v2
    v_add_u32 {vr(V_KMD)}, v4, v5
    v_mov_b32 {vr(V_NB)}, {fbits(-3.0e38):#x}
    v_lshlrev_b32 v4, 2, v2
    """)
    for r in range(4):
        a(f"""
        v_add_u32 v5, {r}, v4
        v_cmp_le_u32 {sr(S_MASK+2*r,2)}, v5, v1
        """)

def att_km_loads(so):
    l = [f"buffer_load_dwordx4 {vr(AKM+4*c,4)}, {vr(V_KMD)}, {sr(S_WS,4)}, {so} offen offset:{c*1024} sc1" for c in range(4)]
    l += [f"buffer_load_dword {vr(AVM+2*c+t)}, {vr(V_L4)}, {sr(S_WS,4)}, {so} offen offset:{c*1024+512+t*256} sc1" for c in range(4) for t in range(2)]
    return l

def xreduce(a, M, T, op):
    a(f"""
    v_mov_b32 {vr(T)}, {vr(M)}
    s_nop 1
    v_permlane32_swap_b32 {vr(T)}, {vr(M)}
    {op} {vr(M)}, {vr(M)}, {vr(T)}
    v_mov_b32 {vr(T)}, {vr(M)}
    s_nop 1
    v_permlane16_swap_b32 {vr(T)}, {vr(M)}
    {op} {vr(M)}, {vr(M)}, {vr(T)}
    """)

def att_task(a):
    sSM, sH, sQ, sK, sV, sKM, sO = [S_T0 + k for k in range(7)]
    a(f"""
    s_and_b32 {sr(sSM)}, {sr(S_NT)}, 7
    s_lshr_b32 {sr(sH)}, {sr(S_NT)}, 3
    s_lshl_b32 {sr(sH)}, {sr(sH)}, 2
    s_add_u32 {sr(sH)}, {sr(sH)}, {sr(S_W)}
    s_lshl_b32 s4, {sr(S_MT)}, 21
    s_lshl_b32 s5, {sr(sH)}, 16
    s_add_u32 s4, s4, s5
    s_lshl_b32 s5, {sr(sSM)}, 9
    s_add_u32 s4, s4, s5
    s_add_u32 {sr(sQ)}, s4, {OFF_QX}
    s_add_u32 {sr(sK)}, s4, {OFF_KX}
    s_add_u32 {sr(sO)}, s4, {OFF_OX}
    s_lshl_b32 s4, {sr(S_MT)}, 3
    s_add_u32 s4, s4, {sr(sSM)}                ; segment
    {f'''s_lshl_b32 s5, s4, 18
    s_lshl_b32 s6, {sr(sH)}, 13
    s_add_u32 s5, s5, s6
    s_add_u32 {sr(sO)}, s5, {OFF_OX}''' if CFG.get('oseg', 1) else ''}
    s_lshl_b32 s5, s4, 18
    s_lshl_b32 s6, {sr(sH)}, 11
    s_add_u32 s5, s5, s6
    s_add_u32 {sr(sV)}, s5, {OFF_VT}
    s_lshl_b32 s5, s4, 17
    s_lshl_b32 s6, {sr(sH)}, 12
    s_add_u32 s5, s5, s6
    s_add_u32 {sr(sKM)}, s5, {OFF_KM}
    """)
    for c in range(4):
        for t in range(2):
            a(f"buffer_load_dwordx4 {vr(AK+16*t+4*c,4)}, {vr(V_AD)}, {sr(S_WS,4)}, {sr(sK)} offen offset:{t*256} sc1")
            a(f"buffer_load_dwordx4 {vr(AQ+16*t+4*c,4)}, {vr(V_AD)}, {sr(S_WS,4)}, {sr(sQ)} offen offset:{t*256} sc1")
        if c < 3:
            a(f"s_add_u32 {sr(sK)}, {sr(sK)}, 16384")
            a(f"s_add_u32 {sr(sQ)}, {sr(sQ)}, 16384")
    for dt in range(8):
        a(f"buffer_load_dwordx4 {vr(AV+4*dt,4)}, {vr(V_VD)}, {sr(S_WS,4)}, {sr(sV)} offen offset:{dt*256} sc1")
    km = att_km_loads(sr(sKM))
    for ln in km: a(ln)
    a(f"v_mov_b32 {vr(AVM+8)}, 0")
    a(f"v_mov_b32 {vr(AVM+9)}, 0")
    for r in range(4): a(f"v_mov_b32 {vr(A_ONE+r)}, 0x3f803f80")
    for k in range(APA, APB + 8): a(f"v_mov_b32 {vr(k)}, 0")
    top = a.label("Latp"); ok = a.label("Lato")
    a(f"{top}:")
    a("s_waitcnt vmcnt(0)")
    t = 1
    regs = [AKM + k for k in range(16)] + [AVM + k for k in range(8)]
    a(f"v_max3_u32 {vr(t)}, {vr(regs[0])}, {vr(regs[1])}, {vr(regs[2])}")
    rr = regs[3:]
    while len(rr) >= 2:
        a(f"v_max3_u32 {vr(t)}, {vr(t)}, {vr(rr[0])}, {vr(rr[1])}"); rr = rr[2:]
    if rr: a(f"v_max_u32 {vr(t)}, {vr(t)}, {vr(rr[0])}")
    a(f"""
    v_cmp_eq_u32 vcc, -1, {vr(t)}
    s_cbranch_vccz {ok}
    s_sleep {CFG.get('atsleep', 16)}
    s_sub_u32 {sr(S_GBUD)}, {sr(S_GBUD)}, 1
    s_cbranch_scc1 L_abort
    """)
    for ln in km: a(ln)
    a(f"s_branch {top}")
    a(f"{ok}:")
    Dm = [ASC, ASC + 8]; D0 = [ASC + 4, ASC + 12]; D1 = ASC + 16
    def sc(d, kreg, qt, c):
        a(f"v_mfma_f32_16x16x32_bf16 {vr(d,4)}, {vr(kreg,4)}, {vr(AQ+16*qt+4*c,4)}, {'0' if c == 0 else vr(d,4)}")
    for c in range(4):
        sc(Dm[0], AKM+4*c, 0, c); sc(D0[0], AK+4*c, 0, c)
        sc(Dm[1], AKM+4*c, 1, c); sc(D0[1], AK+4*c, 1, c); sc(D1, AK+16+4*c, 1, c)
    a("s_nop 7")
    csc = fbits(128**-0.5 * 1.4426950408889634)
    a(f"s_mov_b32 s4, {csc:#x}")
    M, T = 2, 3
    for qt in range(2):
        dm = Dm[qt]; d0 = D0[qt]
        masked = d0 if qt == 0 else D1
        for r in range(4):
            a(f"v_cndmask_b32 {vr(masked+r)}, {vr(V_NB)}, {vr(masked+r)}, {sr(S_MASK+2*r,2)}")
        a(f"v_max3_f32 {vr(M)}, {vr(dm)}, {vr(dm+1)}, {vr(d0)}")
        a(f"v_max3_f32 {vr(M)}, {vr(M)}, {vr(d0+1)}, {vr(d0+2)}")
        a(f"v_max_f32 {vr(M)}, {vr(M)}, {vr(d0+3)}")
        if qt == 1:
            a(f"v_max3_f32 {vr(M)}, {vr(M)}, {vr(D1)}, {vr(D1+1)}")
            a(f"v_max3_f32 {vr(M)}, {vr(M)}, {vr(D1+2)}, {vr(D1+3)}")
        xreduce(a, M, T, "v_max_f32")
        a(f"v_mul_f32 {vr(M)}, s4, {vr(M)}")
        vals = [dm, dm+1] + [d0+r for r in range(4)] + ([D1+r for r in range(4)] if qt == 1 else [])
        for v in vals: a(f"v_fma_f32 {vr(v)}, {vr(v)}, s4, -{vr(M)}")
        for v in vals: a(f"v_exp_f32 {vr(v)}, {vr(v)}")
        px = APX + 4*qt
        a(f"v_cvt_pk_bf16_f32 {vr(APA+4*qt)}, {vr(dm)}, {vr(dm+1)}")
        a(f"v_cvt_pk_bf16_f32 {vr(px)}, {vr(d0)}, {vr(d0+1)}")
        a(f"v_cvt_pk_bf16_f32 {vr(px+1)}, {vr(d0+2)}, {vr(d0+3)}")
        if qt == 1:
            a(f"v_cvt_pk_bf16_f32 {vr(px+2)}, {vr(D1)}, {vr(D1+1)}")
            a(f"v_cvt_pk_bf16_f32 {vr(px+3)}, {vr(D1+2)}, {vr(D1+3)}")
        else:
            a(f"v_mov_b32 {vr(px+2)}, 0")
            a(f"v_mov_b32 {vr(px+3)}, 0")
        a(f"v_mov_b32 {vr(APB+4*qt+1)}, {vr(APA+4*qt)}")
    a("s_nop 1")
    for qt in range(2):
        a(f"v_mfma_f32_16x16x32_bf16 {ar(64+4*qt,4)}, {vr(A_ONE,4)}, {vr(APX+4*qt,4)}, 0")
        for dt in range(8):
            a(f"v_mfma_f32_16x16x32_bf16 {ar(32*qt+4*dt,4)}, {vr(AV+4*dt,4)}, {vr(APX+4*qt,4)}, 0")
    for qt in range(2):
        a(f"v_mfma_f32_16x16x32_bf16 {ar(64+4*qt,4)}, {vr(A_ONE,4)}, {vr(APA+4*qt,4)}, {ar(64+4*qt,4)}")
        for dt in range(8):
            pm = (APA if dt % 2 == 0 else APB) + 4*qt
            a(f"v_mfma_f32_16x16x32_bf16 {ar(32*qt+4*dt,4)}, {vr(AVM+(dt & ~1),4)}, {vr(pm,4)}, {ar(32*qt+4*dt,4)}")
    a("s_nop 7")
    for qt in range(2):
        L = 2 + qt
        a(f"v_accvgpr_read_b32 {vr(L)}, {ar(64+4*qt)}")
        a("s_nop 0")
        a(f"v_rcp_f32 {vr(L)}, {vr(L)}")
    n = 0
    for qt in range(2):
        L = 2 + qt
        for c in range(4):
            b = 32 + 12*(n % 4); n += 1
            for k in range(8): a(f"v_accvgpr_read_b32 {vr(b+k)}, {ar(32*qt+8*c+k)}")
            for k in range(8): a(f"v_mul_f32 {vr(b+k)}, {vr(b+k)}, {vr(L)}")
            for k in range(4): a(f"v_cvt_pk_bf16_f32 {vr(b+8+k)}, {vr(b+2*k)}, {vr(b+2*k+1)}")
            a(f"s_add_u32 s5, {sr(sO)}, {c*OSTEP()}")
            a(f"buffer_store_dwordx4 {vr(b+8,4)}, {vr(V_OA())}, {sr(S_WS,4)}, s5 offen offset:{qt*256} sc1")

def ln_stats(a):
    a(f"""
    v_cvt_pk_bf16_f32 v5, v5, v5
    v_cvt_pk_bf16_f32 v2, v2, v2
    v_lshlrev_b32 v5, 16, v5
    v_lshlrev_b32 v2, 16, v2
    v_add_f32 v2, {fbits(1e-5):#x}, v2
    v_cvt_pk_bf16_f32 v2, v2, v2
    v_lshlrev_b32 v2, 16, v2
    v_sqrt_f32 v2, v2
    s_nop 0
    v_cvt_pk_bf16_f32 v2, v2, v2
    v_lshlrev_b32 v2, 16, v2
    v_rcp_f32 v2, v2
    """)

def ln_mini(a, s_row):
    MS = LSC + 1024
    a(f"""
    v_lshrrev_b32 v78, 3, v76
    v_lshlrev_b32 v78, 2, v78
    v_and_b32 v79, 3, v76
    v_add_u32 v78, v78, v79
    v_lshlrev_b32 v78, 12, v78
    v_bfe_u32 v79, v76, 2, 1
    v_lshlrev_b32 v79, 3, v79
    v_add_u32 v80, v78, v79            ; chunk (4 (k >> 5) + ((k >> 2) & 3)) * 4096 + ((k >> 4) & 1) * 8
    s_lshl_b32 s5, {sr(S_W)}, 2
    s_add_u32 s5, s5, {MS}
    v_mov_b32 v78, s5
    v_mov_b32 v81, {MS}
    s_waitcnt vmcnt(16)
    v_lshlrev_b32 v66, 16, v64
    v_and_b32 v67, 0xffff0000, v64
    v_lshlrev_b32 v68, 16, v65
    v_and_b32 v69, 0xffff0000, v65
    """)
    def total(b, off):
        a(f"""
        v_add_f32 v2, {vr(b)}, {vr(b+1)}
        v_add_f32 v3, {vr(b+2)}, {vr(b+3)}
        v_add_f32 v2, v2, v3
        """)
        for r in (8, 4, 2, 1):
            a("s_nop 1")
            a(f"v_add_f32_dpp v2, v2, v2 row_ror:{r} row_mask:0xf bank_mask:0xf")
        xreduce(a, 2, 3, "v_add_f32")
        a(f"""
        ds_write_b32 v78, v2 offset:{off}
        s_waitcnt lgkmcnt(0)
        s_barrier
        ds_read_b128 v[72:75], v81 offset:{off}
        s_waitcnt lgkmcnt(0)
        v_add_f32 v72, v72, v73
        v_add_f32 v74, v74, v75
        v_add_f32 v2, v72, v74
        v_mul_f32 v2, {fbits(1/1024):#x}, v2
        """)
    total(66, 0)
    a("v_mov_b32 v5, v2")
    for k in range(4): a(f"v_sub_f32 {vr(82+k)}, {vr(66+k)}, v5")
    for k in range(4): a(f"v_mul_f32 {vr(82+k)}, {vr(82+k)}, {vr(82+k)}")
    total(82, 16)
    ln_stats(a)
    for k in range(4): a(f"v_sub_f32 {vr(66+k)}, {vr(66+k)}, v5")
    a("""
    v_cvt_pk_bf16_f32 v64, v66, v67
    v_cvt_pk_bf16_f32 v65, v68, v69
    v_lshlrev_b32 v66, 16, v64
    v_and_b32 v67, 0xffff0000, v64
    v_lshlrev_b32 v68, 16, v65
    v_and_b32 v69, 0xffff0000, v65
    """)
    for k in range(4): a(f"v_mul_f32 {vr(66+k)}, {vr(66+k)}, v2")
    a(f"""
    v_cvt_pk_bf16_f32 v64, v66, v67
    v_cvt_pk_bf16_f32 v65, v68, v69
    s_lshl_b32 s5, {sr(s_row)}, 4
    s_add_u32 s5, s5, {OFF_XN}
    buffer_store_dwordx2 v[64:65], v80, {sr(S_WS,4)}, s5 offen sc1
    """)

def ln_task(a, s_rank, s_row=None):
    load_srd(a, S_OUT, KA_X, 4*MB)
    F = 64
    a(f"""
    v_and_b32 v1, 15, v0
    v_lshrrev_b32 v2, 4, v0
    v_lshlrev_b32 v4, 11, v1
    v_lshlrev_b32 v5, 3, v2
    v_add_u32 v4, v4, v5
    s_lshl_b32 s4, {sr(s_rank)}, 15
    s_lshl_b32 s5, {sr(S_W)}, 9
    s_add_u32 s4, s4, s5
    s_waitcnt lgkmcnt(0)
    """)
    mini = CFG.get('lnmini')
    if mini:
        a(f"""
        s_lshl_b32 s5, {sr(S_W)}, 6
        v_add_u32 v76, s5, v0              ; thread
        v_lshlrev_b32 v77, 3, v76
        s_lshl_b32 s6, {sr(s_row)}, 11
        buffer_load_dwordx2 v[64:65], v77, {sr(S_OUT,4)}, s6 offen
        """)
    for p in range(8):
        a(f"buffer_load_dwordx2 {vr(32+4*p,2)}, v4, {sr(S_OUT,4)}, s4 offen offset:{p*64}")
        a(f"buffer_load_dwordx2 {vr(32+4*p+2,2)}, v4, {sr(S_OUT,4)}, s4 offen offset:{p*64+32}")
    a(f"""
    s_lshl_b32 s5, {sr(S_W)}, 6
    v_lshlrev_b32 v5, 2, v1
    v_add_u32 v6, s5, v5
    v_add_u32 v6, {LSC}, v6
    v_add_u32 v7, {LSC}, v5
    """)
    tl_fine(a, 2)
    nw = CFG.get('lnw', 4) if CFG.get('lnfirst') == 2 else 0
    if mini: ln_mini(a, s_row)
    e2_wpro(a, 0, nw)
    skip = a.label("Lnm")
    if mini:
        a(f"""
        s_waitcnt vmcnt({4*nw})
        s_barrier
        buffer_atomic_add {vr(V_ONE)}, {vr(V_SIG)}, {sr(S_DBG,4)}, 0 offen offset:{C_LN0A*4} sc1
        s_cmp_lt_u32 {sr(s_rank)}, 8
        s_cbranch_scc1 {skip}
        """)
    nv = CFG.get('lnw2', 0) if CFG.get('lnfirst') == 2 else 0
    groups = []
    if nv:
        for j in range(4): a(f"v_mov_b32 {vr(232+j)}, {vr(V2_BD+j)}")
        for st in range(nw, nw + nv): groups += e2_wdma(st, 232)
    if not mini: a(f"s_waitcnt vmcnt({4*nw})")
    tl_fine(a, 3)
    a0 = a; cnt = [0]; every = CFG.get('lnwe', 24)
    def a(txt):
        for ln in txt.split("\n"):
            a0(ln)
            if ln.strip().startswith("v_") and "permlane" not in ln:
                cnt[0] += 1
                if groups and cnt[0] % every == 0:
                    for g in groups.pop(0): a0(g)
    for d in range(32):
        a(f"v_lshlrev_b32 {vr(F+2*d)}, 16, {vr(32+d)}")
        a(f"v_and_b32 {vr(F+2*d+1)}, 0xffff0000, {vr(32+d)}")
    def total(src, region):
        for k in range(16): a(f"v_pk_add_f32 {vr(128+2*k,2)}, {vr(src+4*k,2)}, {vr(src+4*k+2,2)}")
        n = 16
        while n > 1:
            n //= 2
            for k in range(n): a(f"v_pk_add_f32 {vr(128+2*k,2)}, {vr(128+2*k,2)}, {vr(128+2*(k+n),2)}")
        a("v_add_f32 v2, v128, v129")
        xreduce(a, 2, 3, "v_add_f32")
        a(f"""
        ds_write_b32 v6, v2 offset:{region}
        s_waitcnt lgkmcnt(0)
        s_barrier
        ds_read_b32 v128, v7 offset:{region}
        ds_read_b32 v129, v7 offset:{region+64}
        ds_read_b32 v130, v7 offset:{region+128}
        ds_read_b32 v131, v7 offset:{region+192}
        s_waitcnt lgkmcnt(0)
        v_add_f32 v128, v128, v129
        v_add_f32 v130, v130, v131
        v_add_f32 v2, v128, v130
        v_mul_f32 v2, {fbits(1/1024):#x}, v2
        """)
    total(F, 0)
    a("v_mov_b32 v5, v2")
    D = 160
    for k in range(64): a(f"v_sub_f32 {vr(D+k)}, {vr(F+k)}, v5")
    for k in range(0, 64, 2): a(f"v_pk_mul_f32 {vr(D+k,2)}, {vr(D+k,2)}, {vr(D+k,2)}")
    total(D, 256)
    ln_stats(a)
    for k in range(64): a(f"v_sub_f32 {vr(F+k)}, {vr(F+k)}, v5")
    for d in range(32): a(f"v_cvt_pk_bf16_f32 {vr(32+d)}, {vr(F+2*d)}, {vr(F+2*d+1)}")
    for d in range(32):
        a(f"v_lshlrev_b32 {vr(F+2*d)}, 16, {vr(32+d)}")
        a(f"v_and_b32 {vr(F+2*d+1)}, 0xffff0000, {vr(32+d)}")
    for k in range(64): a(f"v_mul_f32 {vr(F+k)}, {vr(F+k)}, v2")
    for d in range(32): a(f"v_cvt_pk_bf16_f32 {vr(32+d)}, {vr(F+2*d)}, {vr(F+2*d+1)}")
    for g0 in groups:
        for g in g0: a0(g)
    a(f"""
    s_lshr_b32 s4, {sr(s_rank)}, 4
    s_lshl_b32 s4, s4, 19
    s_and_b32 s5, {sr(s_rank)}, 15
    s_lshl_b32 s5, s5, 8
    s_add_u32 s4, s4, s5
    s_lshl_b32 s5, {sr(S_W)}, 17
    s_add_u32 s4, s4, s5
    s_add_u32 s4, s4, {OFF_XN}
    """)
    for p in range(8):
        a(f"buffer_store_dwordx4 {vr(32+4*p,4)}, {vr(V_AD)}, {sr(S_WS,4)}, s4 offen sc1")
        if p < 7: a("s_add_u32 s4, s4, 16384")
    if mini:
        a0(f"""
        {skip}:
        v_mov_b32 v76, {C_LN0A*4}
        buffer_load_dword v79, v76, {sr(S_DBG,4)}, 0 offen sc1
        """)

S_PID, S_PCNT = 92, 93
def tl_stamp(a, i):
    if CFG.get('tl'):
        a(f"s_memrealtime s[{70+2*i}:{71+2*i}]")
        a("s_waitcnt lgkmcnt(0)")
def tl_fine(a, k):
    if CFG.get('tl') == 3:
        a("s_memrealtime s[76:77]")
        a("s_waitcnt lgkmcnt(0)")
        a(f"v_writelane_b32 v248, s76, {k}")
def tl_fine2(a, k):
    if CFG.get('tl') == 3:
        a("s_memrealtime s[76:77]")
        a(f"s_lshl_b32 s78, {sr(S_KIND)}, 4")
        a(f"s_add_u32 s78, s78, {8 + k}")
        a("s_mov_b32 s79, m0")
        a("s_mov_b32 m0, s78")
        a("s_waitcnt lgkmcnt(0)")
        a("v_writelane_b32 v248, s76, m0")
        a("s_mov_b32 m0, s79")
def tl_task_start(a):
    if CFG.get('tl'):
        tl_stamp(a, 1)
def tl_store(a, tk):
    if CFG.get('tl'):
        lab = a.label("Ltl")
        tl_stamp(a, 2)
        if not isinstance(tk, str):
            a(f"s_mov_b32 s68, {tk}"); tk = "s68"
        a(f"""
        s_cmp_lg_u32 {sr(S_W)}, 0
        s_cbranch_scc1 {lab}
        v_mov_b32 v4, 0
        v_writelane_b32 v4, {tk}, 0
        v_writelane_b32 v4, s70, 1
        v_writelane_b32 v4, s72, 2
        v_writelane_b32 v4, s74, 3
        s_lshl_b32 s4, {sr(S_PID)}, 11
        s_lshl_b32 s5, {sr(S_PCNT)}, 4
        s_add_u32 s4, s4, s5
        s_add_u32 s4, s4, {OFF_DBG}
        v_mov_b32 v5, 0x80000000
        v_cmp_gt_u32 vcc, 4, v0
        s_nop 1
        v_cndmask_b32 v5, v5, {vr(V_L4)}, vcc
        buffer_store_dword v4, v5, {sr(S_WS,4)}, s4 offen
        s_waitcnt vmcnt(0)
        {lab}:
        s_add_u32 {sr(S_PCNT)}, {sr(S_PCNT)}, 1
        s_min_u32 {sr(S_PCNT)}, {sr(S_PCNT)}, 127
        s_mov_b32 s70, s74
        """)

def wait_word(a, srd, s_off, target, sleep=8):
    top = a.label("Lww"); ok = a.label("Lwwo")
    a(f"""
    s_cmp_lg_u32 {sr(S_W)}, 0
    s_cbranch_scc1 {ok}
    v_mov_b32 v1, {s_off}
    {top}:
    buffer_load_dword v2, v1, {sr(srd,4)}, 0 offen sc1
    s_waitcnt vmcnt(0)
    v_cmp_le_u32 vcc, {target}, v2
    s_cbranch_vccnz {ok}
    s_sleep {sleep}
    s_sub_u32 {sr(S_GBUD)}, {sr(S_GBUD)}, 1
    s_cbranch_scc0 {top}
    s_branch L_abort
    {ok}:
    s_barrier
    """)

def wait_cnt(a, base, s_idx, target, scale=1, sleep=8):
    if s_idx is None:
        wait_word(a, S_WS, OFF_CNT + base*256, target, sleep)
    else:
        a(f"s_mul_i32 s4, {sr(s_idx)}, {256*scale}")
        a(f"s_add_u32 s4, s4, {OFF_CNT + base*256}")
        wait_word(a, S_WS, "s4", target, sleep)

def drain_signal(a):
    a("s_waitcnt vmcnt(0) lgkmcnt(0)")
    a("s_barrier")
    a(signal_op(sr(S_DONE)))

G_END, G_KV, G_GU, G_Q, G_DN = 0, 1, 2, 3, 4
K_K, K_V, K_Q, K_GU, K_DN = 1, 2, 3, 4, 5
SCHED = [
    [(0, G_GU, 8), (8, G_KV, 8), (16, G_KV, -8), (24, G_GU, -24)],
    [(0, G_GU, 32), (8, G_GU, 32), (16, G_GU, 0), (24, G_GU, 0)],
    [(0, G_Q, 0), (8, G_KV, 24), (16, G_KV, 8), (24, G_DN, -24), (28, G_Q, 0)],
    [(0, G_Q, 8), (8, G_Q, 8), (16, G_GU, 32), (24, G_Q, 2), (26, G_END, 0), (28, G_DN, -24), (30, G_Q, -6)],
    [(0, G_END, 0), (8, G_KV, 40), (16, G_KV, 24), (24, G_END, 0), (30, G_DN, -24)],
    [(0, G_END, 0), (16, G_KV, 40), (24, G_END, 0)],
    [(0, G_END, 0)],
]
def sched_setup(a):
    sched = CFG.get('sched', SCHED)
    for k in range(8):
        rows = sched[k] if k < len(sched) else [(0, G_END, 0)]
        d = S_SCH + k
        for n, (t0, g, off) in enumerate(rows):
            val = f"s_add_u32 s4, {sr(S_T)}, {(g << 8) + off}" if g != G_END else "s_mov_b32 s4, 0"
            a(val)
            if n == 0: a(f"s_mov_b32 {sr(d)}, s4")
            else:
                a(f"s_cmp_ge_u32 {sr(S_T)}, {t0}")
                a(f"s_cselect_b32 {sr(d)}, s4, {sr(d)}")

def sched_pop(a):
    for k in range(7): a(f"s_mov_b32 {sr(S_SCH+k)}, {sr(S_SCH+k+1)}")
    a(f"s_mov_b32 {sr(S_SCH+7)}, 0")

def e1_decode(a, dn):
    lq = a.label("Ldq"); lg = a.label("Ldg"); lv = a.label("Ldv"); lb = a.label("Ldb"); le = a.label("Lde"); ld = a.label("Ldd")
    a(f"""
    s_lshr_b32 s6, {sr(S_SCH)}, 8             ; group
    s_and_b32 s7, {sr(S_SCH)}, 0xff           ; index
    s_mov_b32 {sr(S_A+2)}, {WS_BYTES}
    s_mov_b32 {sr(S_NCNT)}, 7
    s_cmp_eq_u32 s6, {G_GU}
    s_cbranch_scc1 {lg}
    """)
    if dn:
        a(f"""
        s_cmp_eq_u32 s6, {G_DN}
        s_cbranch_scc1 {ld}
        """)
    a(f"""
    s_cmp_eq_u32 s6, {G_Q}
    s_cbranch_scc1 {lq}
    s_lshr_b32 {sr(S_T0)}, s7, 3
    s_and_b32 {sr(S_T0+1)}, s7, 3
    s_lshl_b32 s4, {sr(S_J)}, 2
    s_add_u32 {sr(S_T0+1)}, {sr(S_T0+1)}, s4      ; nt
    s_add_u32 s4, {sr(S_T0)}, {CN_KV}
    s_lshl_b32 s4, s4, 8
    s_add_u32 {sr(S_NDONE)}, s4, {OFF_CNT}
    s_bitcmp1_b32 s7, 2
    s_cbranch_scc1 {lv}
    s_load_dwordx2 {sr(S_B,2)}, s[0:1], {KA_WK}
    s_mov_b32 {sr(S_NKIND)}, {K_K}
    s_lshl_b32 s4, {sr(S_T0)}, 21
    s_lshl_b32 s5, {sr(S_T0+1)}, 17
    s_add_u32 s4, s4, s5
    s_add_u32 {sr(S_NCOFF)}, s4, {OFF_KX}
    s_branch {lb}
    {lv}:
    s_load_dwordx2 {sr(S_B,2)}, s[0:1], {KA_WV}
    s_mov_b32 {sr(S_NKIND)}, {K_V}
    s_lshl_b32 s4, {sr(S_T0)}, 21
    s_lshl_b32 s5, {sr(S_T0+1)}, 12
    s_add_u32 s4, s4, s5
    s_add_u32 {sr(S_NCOFF)}, s4, {OFF_VT}
    s_branch {lb}
    {lq}:
    s_lshr_b32 {sr(S_T0)}, s7, 2
    s_and_b32 {sr(S_T0+1)}, s7, 3
    s_lshl_b32 s4, {sr(S_J)}, 2
    s_add_u32 {sr(S_T0+1)}, {sr(S_T0+1)}, s4
    s_add_u32 s4, {sr(S_T0)}, {CN_Q}
    s_lshl_b32 s4, s4, 8
    s_add_u32 {sr(S_NDONE)}, s4, {OFF_CNT}
    s_load_dwordx2 {sr(S_B,2)}, s[0:1], {KA_WQ}
    s_mov_b32 {sr(S_NKIND)}, {K_Q}
    s_lshl_b32 s4, {sr(S_T0)}, 21
    s_lshl_b32 s5, {sr(S_T0+1)}, 17
    s_add_u32 s4, s4, s5
    s_add_u32 {sr(S_NCOFF)}, s4, {OFF_QX}
    {lb}:
    s_mov_b32 {sr(S_B+2)}, {8*MB}
    s_mov_b32 {sr(S_T0+2)}, 8192
    s_lshl_b32 {sr(S_BOFF)}, {sr(S_T0+1)}, 9
    s_and_b32 s4, {sr(S_W)}, 1
    s_lshl_b32 s4, s4, 8
    s_add_u32 {sr(S_BOFF)}, {sr(S_BOFF)}, s4
    s_lshl_b32 {sr(S_AOFF)}, {sr(S_T0)}, 19
    s_add_u32 {sr(S_AOFF)}, {sr(S_AOFF)}, {OFF_XN}
    s_branch {le}
    """)
    if dn:
        a(f"""
        {ld}:
        s_load_dwordx2 {sr(S_B,2)}, s[0:1], {KA_WD}
        s_mov_b32 {sr(S_B+2)}, {3584*2048}
        s_mov_b32 {sr(S_NKIND)}, {K_DN}
        s_mov_b32 {sr(S_NCNT)}, 27
        s_add_u32 s4, s7, {CN_DN}
        s_lshl_b32 s4, s4, 8
        s_add_u32 {sr(S_NDONE)}, s4, {OFF_CNT}
        s_mov_b32 {sr(S_T0+2)}, 2048
        s_lshl_b32 {sr(S_BOFF)}, {sr(S_J)}, 9
        s_and_b32 s4, {sr(S_W)}, 1
        s_lshl_b32 s4, s4, 8
        s_add_u32 {sr(S_BOFF)}, {sr(S_BOFF)}, s4
        s_mul_i32 {sr(S_AOFF)}, s7, {448*4096}
        s_add_u32 {sr(S_AOFF)}, {sr(S_AOFF)}, {OFF_H}
        s_lshl_b32 s4, s7, 19
        s_lshl_b32 s5, {sr(S_J)}, 17
        s_add_u32 s4, s4, s5
        s_add_u32 {sr(S_NCOFF)}, s4, {OFF_GS}
        s_branch {le}
        """)
    a(f"""
    {lg}:
    s_mul_i32 s5, s7, 9363
    s_lshr_b32 {sr(S_T0)}, s5, 16
    s_mul_i32 s5, {sr(S_T0)}, 7
    s_sub_u32 s4, s7, s5
    s_mul_i32 {sr(S_T0+1)}, {sr(S_J)}, 7
    s_add_u32 {sr(S_T0+1)}, {sr(S_T0+1)}, s4   ; nt
    s_add_u32 s4, {sr(S_T0)}, {CN_GU}
    s_lshl_b32 s4, s4, 8
    s_add_u32 {sr(S_NDONE)}, s4, {OFF_CNT}
    s_and_b32 s4, {sr(S_W)}, 1
    s_lshl_b32 s4, s4, 3
    s_add_u32 s4, s4, {KA_WG}
    s_load_dwordx2 {sr(S_B,2)}, s[0:1], s4
    s_mov_b32 {sr(S_B+2)}, {1024*7168}
    s_mov_b32 {sr(S_NKIND)}, {K_GU}
    s_mov_b32 {sr(S_T0+2)}, 7168
    s_lshl_b32 {sr(S_BOFF)}, {sr(S_T0+1)}, 8
    s_mul_i32 s4, {sr(S_T0)}, {448*4096}
    s_lshl_b32 s5, {sr(S_T0+1)}, 16
    s_add_u32 s4, s4, s5
    s_add_u32 {sr(S_NCOFF)}, s4, {OFF_H}
    s_lshl_b32 {sr(S_AOFF)}, {sr(S_T0)}, 19
    s_add_u32 {sr(S_AOFF)}, {sr(S_AOFF)}, {OFF_XN}
    {le}:
    s_mov_b32 {sr(S_B+3)}, 0x20000
    """)
    e1_bvoff(a, S_T0+2)

def e1_next(a, back):
    nul = a.label("Lnul")
    a(f"""
    s_lshr_b32 s6, {sr(S_SCH)}, 8
    s_cmp_eq_u32 s6, {G_END}
    s_cbranch_scc1 {nul}
    s_cmp_eq_u32 s6, {G_DN}
    s_cbranch_scc1 {nul}
    """)
    e1_decode(a, False)
    sched_pop(a)
    a(f"s_branch {back}")
    a(f"""
    {nul}:
    s_mov_b32 {sr(S_NKIND)}, 0
    s_mov_b32 {sr(S_A+2)}, 0
    s_mov_b32 {sr(S_B+2)}, 0
    s_branch {back}
    """)

def promote(a):
    a(f"""
    s_mov_b32 {sr(S_COFF)}, {sr(S_NCOFF)}
    s_mov_b32 {sr(S_DONE)}, {sr(S_NDONE)}
    s_mov_b32 {sr(S_KIND)}, {sr(S_NKIND)}
    s_mov_b32 {sr(S_CNT)}, {sr(S_NCNT)}
    s_cmp_eq_u32 {sr(S_KIND)}, {K_V}
    s_cbranch_scc1 L_f4S
    s_branch L_f4N
    """)

def g_setup(a):
    a(f"""
    v_lshlrev_b32 {vr(V_L4)}, 2, v0
    v_mov_b32 {vr(V_ONE)}, 1
    v_mov_b32 {vr(V_OOB)}, 0x80000000
    s_cmp_eq_u32 {sr(S_W)}, 0
    s_cselect_b32 s5, 0, 0x80000000
    v_mov_b32 v1, s5
    v_mov_b32 v2, 0x80000000
    v_cmp_eq_u32 vcc, 0, v0
    s_nop 1
    v_cndmask_b32 {vr(V_SIG)}, v2, v1, vcc
    s_mov_b32 {sr(S_GBUD)}, {CFG.get('budget', 400000)}
    """)
    e1_setup_regs(a)
    att_setup_regs(a)

def g_start(a, s_rank):
    lab = a.label("Lini"); l2 = a.label("Lln0")
    e2_setup_regs(a)
    a(f"s_mov_b32 {sr(S_KIND)}, 0")
    tl_fine(a, 0)
    kv0_setup(a)
    tl_fine(a, 1)
    if not CFG.get('lnfirst'): e2_wpro(a)
    a(f"""
    s_cmp_lg_u32 {sr(s_rank)}, 0
    s_cbranch_scc1 {lab}
    v_lshlrev_b32 v1, 8, v0
    v_mov_b32 v2, 0
    s_mov_b32 s4, {OFF_CNT}
    buffer_store_dword v2, v1, {sr(S_WS,4)}, s4 offen sc1
    s_add_u32 s4, s4, {64*256}
    buffer_store_dword v2, v1, {sr(S_WS,4)}, s4 offen sc1
    s_add_u32 s4, s4, {64*256}
    buffer_store_dword v2, v1, {sr(S_WS,4)}, s4 offen sc1
    {lab}:
    s_lshl_b32 {sr(S_PDONE)}, {sr(S_T)}, 2
    s_add_u32 {sr(S_PDONE)}, {sr(S_PDONE)}, {sr(S_J)}
    """)
    ln_task(a, S_PDONE, s_rank)
    tl_fine(a, 4)
    e2_setup_regs(a)
    if CFG.get('lnfirst') == 1: e2_wpro(a)
    sched_setup(a)
    a(f"s_waitcnt vmcnt({4*E2N() if CFG.get('lnfirst') == 1 else 0}) lgkmcnt(0)")
    tl_fine(a, 5)
    a("s_barrier")
    tl_fine(a, 6)
    a(f"buffer_atomic_add {vr(V_ONE)}, {vr(V_SIG)}, {sr(S_DBG,4)}, 0 offen offset:{C_LN*4} sc1")
    a(f"""
    s_cmp_ge_u32 {sr(S_PDONE)}, 16
    s_cbranch_scc1 {l2}
    buffer_atomic_add {vr(V_ONE)}, {vr(V_SIG)}, {sr(S_DBG,4)}, 0 offen offset:{C_LN0*4} sc1
    s_cmp_ge_u32 {sr(S_PDONE)}, {0 if CFG.get('lnmini') else 8}
    s_cbranch_scc1 {l2}
    buffer_atomic_add {vr(V_ONE)}, {vr(V_SIG)}, {sr(S_DBG,4)}, 0 offen offset:{C_LN0A*4} sc1
    {l2}:
    """)
    if CFG.get('lnmini'):
        top = a.label("Lmn"); ok = a.label("Lmo")
        if CFG.get('tl'):
            a("s_mov_b32 s72, s70")
            tl_store(a, 0xffff)
        a(f"""
        {top}:
        v_cmp_le_u32 vcc, 128, v79
        s_cbranch_vccnz {ok}
        s_sub_u32 {sr(S_GBUD)}, {sr(S_GBUD)}, 1
        s_cbranch_scc1 L_abort
        s_sleep {CFG.get('ln0sleep', 2)}
        buffer_load_dword v79, v76, {sr(S_DBG,4)}, 0 offen sc1
        s_waitcnt vmcnt(0)
        s_branch {top}
        {ok}:
        """)
        e2_wpro(a, CFG.get('lnw', 4))
    if CFG.get('lnfirst') == 2 and not CFG.get('lnmini') and not CFG.get('wmid'): e2_wpro(a, CFG.get('lnw', 4) + CFG.get('lnw2', 0))
    if CFG.get('tl') and not CFG.get('lnmini'):
        a("s_mov_b32 s72, s70")
        tl_store(a, 0xffff)
    if CFG.get('lnmini'): pass
    elif CFG.get('ln0a', 1): wait_word(a, S_DBG, C_LN0A*4, 8, CFG.get('ln0sleep', 2))
    else: wait_word(a, S_DBG, C_LN0*4, 16, CFG.get('ln0sleep', 8))
    a(f"s_mov_b32 {sr(S_PDONE)}, {OFF_CNT + CN_SPARE*256}")
    tl_fine(a, 7)
    kv0_loop(a)
    if CFG.get('tl') == 3:
        a(f"""
        v_lshlrev_b32 v4, 2, v0
        s_lshl_b32 s4, {sr(S_PID)}, 8
        s_lshl_b32 s4, s4, 2
        s_lshl_b32 s5, {sr(S_W)}, 8
        s_add_u32 s4, s4, s5
        s_add_u32 s4, s4, {OFF_DBG + 768*1024}
        v_mov_b32 v5, 0x80000000
        v_cmp_gt_u32 vcc, 64, v0
        s_nop 1
        v_cndmask_b32 v4, v5, v4, vcc
        buffer_store_dword v248, v4, {sr(S_WS,4)}, s4 offen
        """)
    wait_word(a, S_DBG, C_LN*4, 128)

def g_main(a):
    a("L_e1start:")
    lab = a.label("Lnd")
    a(f"""
    s_lshr_b32 s6, {sr(S_SCH)}, 8
    s_cmp_eq_u32 s6, {G_END}
    s_cbranch_scc1 L_p2
    s_cmp_eq_u32 s6, {G_DN}
    s_cbranch_scc0 {lab}
    s_and_b32 {sr(S_MT)}, {sr(S_SCH)}, 0xff
    """)
    wait_cnt(a, CN_GU, S_MT, 28)
    a(f"{lab}:")
    e1_decode(a, True)
    sched_pop(a)
    a(f"s_mov_b32 {sr(S_DONE)}, {OFF_CNT + CN_SPARE*256}")
    a("s_waitcnt lgkmcnt(0)")
    e1_prologue(a)
    a(f"s_mov_b32 {sr(S_PDONE)}, {OFF_CNT + CN_SPARE*256}")
    promote(a)
    e1_body(a, False, "N")
    e1_body(a, True, "S")
    a("L_e1ep:")
    a(f"""
    s_cmp_eq_u32 {sr(S_KIND)}, {K_V}
    s_cbranch_scc1 L_epV
    s_cmp_eq_u32 {sr(S_KIND)}, {K_GU}
    s_cbranch_scc1 L_epGU
    s_cmp_eq_u32 {sr(S_KIND)}, {K_DN}
    s_cbranch_scc1 L_epDN
    """)
    ep_chunks(a)
    a("s_branch L_e1done")
    a("L_epV:")
    ep_vt(a)
    a("s_branch L_e1done")
    a("L_epGU:")
    ep_gu(a)
    a("s_branch L_e1done")
    a("L_epDN:")
    ep_down1(a)
    a("L_e1done:")
    if CFG.get('tl'):
        a(f"s_lshr_b32 s5, {sr(S_COFF)}, 12")
        a(f"s_lshl_b32 s5, s5, 4")
        a(f"s_or_b32 s5, s5, {sr(S_KIND)}")
        a(f"s_mov_b32 s68, s5")
        tl_store_nowait(a, "s68")
    a(f"""
    s_cmp_eq_u32 {sr(S_NKIND)}, 0
    s_cbranch_scc1 L_e1drain
    s_mov_b32 {sr(S_PDONE)}, {sr(S_DONE)}
    """)
    promote(a)
    a("L_e1drain:")
    drain_signal(a)
    a("s_branch L_e1start")

def tl_store_nowait(a, tk):
    lab = a.label("Ltw")
    tl_stamp(a, 2)
    a(f"""
    s_and_b32 s4, {sr(S_PCNT)}, 63
    s_mov_b32 s5, m0
    s_mov_b32 m0, s4
    s_nop 0
    v_writelane_b32 v252, {tk}, m0
    v_writelane_b32 v253, s70, m0
    v_writelane_b32 v254, s72, m0
    v_writelane_b32 v255, s74, m0
    s_mov_b32 m0, s5
    s_add_u32 {sr(S_PCNT)}, {sr(S_PCNT)}, 1
    s_mov_b32 s70, s74
    """)

def tl_dump(a):
    if CFG.get('tl'):
        lab = a.label("Ltd")
        a(f"""
        s_cmp_lg_u32 {sr(S_W)}, 0
        s_cbranch_scc1 {lab}
        s_lshl_b32 s4, {sr(S_PID)}, 11
        s_add_u32 s4, s4, {OFF_DBG}
        v_lshlrev_b32 v4, 4, v0
        v_mov_b32 v5, 0x80000000
        v_cmp_lt_u32 vcc, 0, v0
        v_cmp_gt_u32 s[6:7], {sr(S_PCNT)}, v0
        s_and_b64 vcc, vcc, s[6:7]
        s_nop 1
        v_cndmask_b32 v4, v5, v4, vcc
        buffer_store_dword v252, v4, {sr(S_WS,4)}, s4 offen
        buffer_store_dword v253, v4, {sr(S_WS,4)}, s4 offen offset:4
        buffer_store_dword v254, v4, {sr(S_WS,4)}, s4 offen offset:8
        buffer_store_dword v255, v4, {sr(S_WS,4)}, s4 offen offset:12
        s_waitcnt vmcnt(0)
        {lab}:
        """)

def wait_multi(a, sleep=8):
    top = a.label("Lwm"); ok = a.label("Lwmo")
    a(f"""
    s_cmp_lg_u32 {sr(S_W)}, 0
    s_cbranch_scc1 {ok}
    {top}:
    buffer_load_dword {vr(V_PV)}, {vr(V_PA)}, {sr(S_WS,4)}, 0 offen sc1
    s_waitcnt vmcnt(0)
    v_cmp_ge_u32 vcc, {vr(V_PV)}, {vr(V_PT)}
    s_cmp_eq_u64 vcc, -1
    s_cbranch_scc1 {ok}
    s_sleep {sleep}
    s_sub_u32 {sr(S_GBUD)}, {sr(S_GBUD)}, 1
    s_cbranch_scc0 {top}
    s_branch L_abort
    {ok}:
    s_barrier
    """)

def phase2(a):
    mk = CFG.get('wo_masks') or [0x2492492492555555, 0x4924924924aaaaaa, 0x9249249249000000]
    a("L_p2:")
    a(f"""
    v_lshrrev_b32 v4, 4, v0
    v_lshlrev_b32 v4, 9, v4
    v_and_b32 v5, 15, v0
    v_lshlrev_b32 v5, 4, v5
    v_add_u32 {vr(V_OD)}, v4, v5
    """)
    tl_dump(a)
    if CFG.get('nop2'): a("s_branch L_exit")
    a(f"""
    s_cmp_ge_u32 {sr(S_T)}, 8
    s_cbranch_scc1 L_WO
    """)
    wait_word(a, S_DBG, C_RBAR*4, 128)
    a(f"s_lshr_b32 {sr(S_KIND)}, {sr(S_T)}, 1             ; segment")
    if CFG.get('odata'):
        assert CFG.get('oseg', 1)
        a(f"""
        s_add_u32 s4, {sr(S_KIND)}, 60
        s_lshl_b32 s4, s4, 18
        s_lshl_b32 s5, {sr(S_J)}, 1
        s_and_b32 s6, {sr(S_T)}, 1
        s_add_u32 s5, s5, s6
        s_lshl_b32 s5, s5, 2
        s_add_u32 s5, s5, {sr(S_W)}                ; head
        s_lshl_b32 s5, s5, 13
        s_add_u32 s4, s4, s5
        s_add_u32 s4, s4, {OFF_OX}
        """)
        for r in range(4): a(f"v_mov_b32 {vr(32+r)}, -1")
        for c in range(4):
            for qt in range(2):
                a(f"buffer_store_dwordx4 {vr(32,4)}, {vr(V_OD)}, {sr(S_WS,4)}, s4 offen offset:{qt*256} sc1")
            if c < 3: a("s_add_u32 s4, s4, 2048")
    a("L_AT:")
    a(f"""
    s_lshr_b32 {sr(S_MT)}, {sr(S_KIND)}, 3
    s_lshl_b32 s5, {sr(S_J)}, 1
    s_and_b32 s4, {sr(S_T)}, 1
    s_add_u32 s4, s4, s5
    s_lshl_b32 s4, s4, 3
    s_and_b32 s6, {sr(S_KIND)}, 7
    s_add_u32 {sr(S_NT)}, s4, s6
    s_lshl_b32 s5, {sr(S_KIND)}, 8
    s_add_u32 {sr(S_DONE)}, s5, {OFF_CNT + CN_AT*256}
    ; keys / values and queries of the tile ; the recurrence has passed the segment (step s+1 reports s+2, the last two segments are watched directly)
    s_lshl_b32 s4, {sr(S_MT)}, 8
    s_add_u32 s5, s4, {OFF_CNT + CN_KV*256}
    v_mov_b32 {vr(V_PA)}, s5
    s_add_u32 s5, s4, {OFF_CNT + CN_Q*256}
    v_writelane_b32 {vr(V_PA)}, s5, 1
    s_mov_b32 s5, {OFF_CNT + CN_PROG*256}
    v_writelane_b32 {vr(V_PA)}, s5, 2
    s_cmp_eq_u32 {sr(S_MT)}, 0
    s_cselect_b32 s5, 128, 32
    v_mov_b32 {vr(V_PT)}, s5
    s_mov_b32 s5, 16
    v_writelane_b32 {vr(V_PT)}, s5, 1
    s_cmp_ge_u32 {sr(S_KIND)}, {CFG.get('atd', (64, 2))[0]}
    s_cselect_b32 s5, {CFG.get('atd', (64, 2))[1]}, 2
    s_add_u32 s5, s5, {sr(S_KIND)}
    s_min_u32 s5, s5, 63
    v_writelane_b32 {vr(V_PT)}, s5, 2
    """)
    tl_stamp(a, 0)
    wait_multi(a)
    tl_stamp(a, 1)
    att_task(a)
    drain_signal(a)
    if CFG.get('tl'):
        a(f"s_lshl_b32 s68, {sr(S_KIND)}, 4")
        a("s_or_b32 s68, s68, 6")
        tl_store_nowait(a, "s68")
    a(f"""
    s_add_u32 {sr(S_KIND)}, {sr(S_KIND)}, 4
    s_cmp_lt_u32 {sr(S_KIND)}, 64
    s_cbranch_scc1 L_AT
    s_branch L_p2end
    L_WO:
    s_lshl_b32 s4, {sr(S_J)}, 3
    s_and_b32 s5, {sr(S_T)}, 7
    s_add_u32 {sr(S_CB)}, s4, s5
    s_mov_b32 {sr(S_MSK)}, {mk[0] & 0xffffffff:#x}
    s_mov_b32 {sr(S_MSK+1)}, {mk[0] >> 32:#x}
    s_cmp_ge_u32 {sr(S_T)}, 16
    s_cselect_b32 {sr(S_MSK)}, {mk[1] & 0xffffffff:#x}, {sr(S_MSK)}
    s_cselect_b32 {sr(S_MSK+1)}, {mk[1] >> 32:#x}, {sr(S_MSK+1)}
    s_cmp_ge_u32 {sr(S_T)}, 24
    s_cselect_b32 {sr(S_MSK)}, {mk[2] & 0xffffffff:#x}, {sr(S_MSK)}
    s_cselect_b32 {sr(S_MSK+1)}, {mk[2] >> 32:#x}, {sr(S_MSK+1)}
    s_cmp_eq_u64 {sr(S_MSK,2)}, 0
    s_cbranch_scc1 L_p2end
    """)
    tl_stamp(a, 0)
    e3_setup(a)
    if CFG.get('tl'):
        tl_stamp(a, 1)
        a("s_mov_b32 s68, 9")
        tl_store_nowait(a, "s68")
    e3_loop(a)
    a("L_p2end:")
    tl_dump(a)
    a("s_branch L_exit")
```

```python
from asmlib import *
from layout import *
import struct

def fbits(x):
    return struct.unpack("<I", struct.pack("<f", x))[0]

CFG = dict()
def LSC1(): return "" if CFG.get('nolsc1') else " sc1"
def SSC1(): return CFG.get('sflag', "" if CFG.get('nossc1') else " sc1")
def EPST(x): return "s_nop 0" if CFG.get('noepst') else x

S_W = 3
S_WS = 8
S_B = 12
S_AOFF, S_BOFF, S_BSTEP, S_M0A, S_M0B, S_CNT = 16, 17, 18, 19, 20, 21
S_GBUD, S_J, S_TK, S_T, S_MT, S_NT = 22, 23, 24, 25, 26, 27
S_COFF, S_DONE, S_M2 = 29, 40, 41
S_NCOFF, S_NDONE = 42, 43
S_A = 48
S_KIND, S_NKIND, S_PDONE, S_NCNT = 60, 61, 62, 63
S_SCH = 80
S_T0 = 30
S_OUT = 44
S_MASK = 52
S_DBG = 64
V_XA, V_WA, V_AOFF = 8, 10, 18
V_ROW0, V_SWZ = 19, 20
V_SIG, V_ONE, V_L4, V_OOB = 23, 24, 25, 26
V_EP = 30
V_FRAG = 32
V2_XD, V2_BD, V2_WA, V2_RW, V2_RR = 208, 212, 216, 220, 223
V2_XO, V2_L16 = 226, 227
V_AD, V_KMD, V_VD, V_NB = 228, 229, 230, 231
STAGE = 32768
LMB = 131072
LSC = LMB + 64

def XF16(p, i): return V_FRAG + 64*p + 4*i
def WF16(p, t): return V_FRAG + 64*p + 32 + 4*t
def ACC16(t, i): return (t*8 + i)*4
def frag_reads16(p, ring):
    hi = ring >> 1; base = (ring & 1)*STAGE
    xs = [f"ds_read_b128 {vr(XF16(p,i),4)}, {vr(V_XA + hi)} offset:{base + i*256}" for i in range(8)]
    ws = []
    for t in range(8):
        for sec in range(2):
            off = base + 16384 + (t >> 2)*8192 + (16*sec)*256
            ws.append(f"ds_read_b64_tr_b16 {vr(WF16(p,t) + 2*sec, 2)}, {vr(V_WA + 4*hi + (t & 3))} offset:{off}")
    return [ws[0], ws[1]] + xs + ws[2:]
def mfmas16(p, first, swap):
    out = []
    for t in range(8):
        for i in range(8):
            x, y = (XF16(p,i), WF16(p,t)) if swap else (WF16(p,t), XF16(p,i))
            out.append(f"v_mfma_f32_16x16x32_bf16 {ar(ACC16(t,i),4)}, {vr(x,4)}, {vr(y,4)}, {'0' if first else ar(ACC16(t,i),4)}")
    return out

def dma_ops(ring, vb):
    g = []
    base = ring*STAGE
    g.append([f"s_add_u32 m0, {sr(S_M0A)}, {base}", "s_nop 0",
              f"buffer_load_dwordx4 {vr(V_AOFF)}, {sr(S_A,4)}, {sr(S_AOFF)} offen{LSC1()} lds"])
    for j in range(1, 4):
        g.append([f"buffer_load_dwordx4 {vr(V_AOFF)}, {sr(S_A,4)}, {sr(S_AOFF)} offen offset:{j*1024}{LSC1()} lds"])
    g[-1].append(f"s_add_u32 {sr(S_AOFF)}, {sr(S_AOFF)}, 16384")
    g.append([f"s_add_u32 m0, {sr(S_M0B)}, {base}", "s_nop 0",
              f"buffer_load_dwordx4 {vr(vb)}, {sr(S_B,4)}, {sr(S_BOFF)} offen lds"])
    for j in range(1, 4):
        g.append([f"buffer_load_dwordx4 {vr(vb+j)}, {sr(S_B,4)}, {sr(S_BOFF)} offen offset:{j*1024} lds"])
    g[-1].append(f"s_add_u32 {sr(S_BOFF)}, {sr(S_BOFF)}, {sr(S_BSTEP)}")
    return g

def weave(main, slots):
    out = []
    for i, m in enumerate(main):
        out.append(m)
        if i in slots: out.extend(slots[i])
    return out

def place(slots, items, positions):
    for it, p in zip(items, positions):
        slots.setdefault(p, [])
        if isinstance(it, str): slots[p].append(it)
        else: slots[p].extend(it)

VB = 32 + 128 + 48
V_BW = 204

def stage16(a, ring, p, swap, first=False, dma=True, vm=16, next_reads=True):
    a("s_waitcnt lgkmcnt(0)" if vm is None else f"s_waitcnt vmcnt({vm}) lgkmcnt(0)")
    a("s_barrier")
    sl = {}
    if next_reads: place(sl, frag_reads16(p ^ 1, (ring+1) & 3), range(0, 48, 2))
    if dma: place(sl, dma_ops(ring, V_BW), range(3, 64, 8))
    for ln in weave(mfmas16(p, first, swap), sl): a(ln)

def signal_op(soff):
    return f"buffer_atomic_add {vr(V_ONE)}, {vr(V_SIG)}, {sr(S_WS,4)}, {soff} offen sc1"

NEP = 32
def e1_prologue(a):
    for ring in range(4):
        for g in dma_ops(ring, V_BW):
            for ln in g: a(ln)
    a("s_waitcnt vmcnt(24)")
    a("s_barrier")
    for ln in frag_reads16(0, 0): a(ln)
    pad_ops(a, NEP)

def pad_ops(a, n):
    for _ in range(n): a(f"buffer_store_dword {vr(V_ONE)}, {vr(V_OOB)}, {sr(S_WS,4)}, 0 offen")

def e1_body(a, swap, tag):
    a(f"L_f4{tag}:")
    tl_task_start(a)
    for r in range(4):
        a(f"s_waitcnt vmcnt({16 + NEP if r < 3 else 16}) lgkmcnt(0)")
        a("s_barrier")
        sl = {}
        place(sl, frag_reads16((r & 1) ^ 1, (r+1) & 3), range(0, 48, 2))
        place(sl, dma_ops(r, V_BW), range(3, 64, 8))
        if r == 3: place(sl, [signal_op(sr(S_PDONE))], [1])
        for ln in weave(mfmas16(r & 1, r == 0, swap), sl): a(ln)
    top = a.label("Lmid"); sw = a.label("Lsw"); back = a.label("Lswb")
    a(f"{top}:")
    a(f"s_cmp_eq_u32 {sr(S_CNT)}, 1")
    a(f"s_cbranch_scc1 {sw}")
    a(f"{back}:")
    for r in range(4): stage16(a, r, r & 1, swap)
    a(f"s_sub_u32 {sr(S_CNT)}, {sr(S_CNT)}, 1")
    a(f"s_cmp_lg_u32 {sr(S_CNT)}, 0")
    a(f"s_cbranch_scc1 {top}")
    a("s_branch L_e1ep")
    a(f"{sw}:")
    e1_next(a, back)

def e1_setup_regs(a):
    a(f"""
    v_and_b32 v1, 15, v0
    v_lshrrev_b32 v2, 4, v0         ; g
    v_lshlrev_b32 v4, 4, v1
    v_lshlrev_b32 v5, 12, v2
    v_add_u32 {vr(V_AD)}, v4, v5    ; g*4096 + i*16
    s_lshr_b32 s4, {sr(S_W)}, 1
    s_lshl_b32 s5, s4, 11
    v_add_u32 {vr(V_XA)}, s5, {vr(V_AD)}
    v_add_u32 {vr(V_XA+1)}, 0x10000, {vr(V_XA)}
    v_mov_b32 {vr(V_EP)}, {vr(V_XA)}
    v_bfe_u32 v3, v0, 2, 2          ; r
    v_lshlrev_b32 v4, 2, v2         ; 4g
    v_add_u32 v4, v4, v3            ; k
    v_and_b32 v6, 7, v4             ; k&7
    v_lshlrev_b32 v4, 8, v4         ; k*256
    v_and_b32 v5, 3, v0
    v_lshlrev_b32 v5, 3, v5         ; c*8
    v_add_u32 v4, v4, v5
    s_and_b32 s5, {sr(S_W)}, 1
    s_lshl_b32 s5, s5, 2            ; 4wn
    """)
    for tl in range(4):
        a(f"""
        s_add_u32 s6, s5, {tl}
        v_xor_b32 v5, s6, v6
        v_lshlrev_b32 v5, 5, v5
        v_add_u32 {vr(V_WA+tl)}, v4, v5
        v_add_u32 {vr(V_WA+4+tl)}, 0x10000, {vr(V_WA+tl)}
        """)
    a(f"""
    v_lshlrev_b32 v4, 4, v0
    s_lshl_b32 s5, {sr(S_W)}, 12
    v_add_u32 {vr(V_AOFF)}, s5, v4
    v_lshrrev_b32 v1, 4, v0
    v_and_b32 v2, 15, v0
    """)
    for j in range(2):
        a(f"""
        v_add_u32 v3, {4*j}, v1
        v_lshlrev_b32 v3, 1, v3
        v_xor_b32 v3, v2, v3
        v_lshlrev_b32 {vr(V_SWZ+j)}, 4, v3
        """)
    a(f"""
    s_lshr_b32 s5, {sr(S_W)}, 1
    s_lshl_b32 s5, s5, 4
    v_add_u32 {vr(V_ROW0)}, s5, v1
    s_lshl_b32 {sr(S_M0A)}, {sr(S_W)}, 12
    s_and_b32 s6, {sr(S_W)}, 1
    s_lshl_b32 s6, s6, 13
    s_lshr_b32 s7, {sr(S_W)}, 1
    s_lshl_b32 s7, s7, 12
    s_add_u32 s6, s6, s7
    s_add_u32 {sr(S_M0B)}, s6, 16384
    s_mov_b32 {sr(S_A)}, {sr(S_WS)}
    s_mov_b32 {sr(S_A+1)}, {sr(S_WS+1)}
    s_mov_b32 {sr(S_A+2)}, 0
    s_mov_b32 {sr(S_A+3)}, 0x20000
    """)

def e1_bvoff(a, s_ldb):
    a(f"""
    v_mul_u32_u24 v1, {sr(s_ldb)}, {vr(V_ROW0)}
    s_lshl_b32 s4, {sr(s_ldb)}, 2
    s_sub_u32 s4, s4, 1024
    v_add_u32 {vr(V_BW)}, v1, {vr(V_SWZ)}
    v_add3_u32 {vr(V_BW+1)}, v1, {vr(V_SWZ+1)}, s4
    s_lshl_b32 s5, s4, 1
    v_add3_u32 {vr(V_BW+2)}, v1, {vr(V_SWZ)}, s5
    s_add_u32 s5, s5, s4
    v_add3_u32 {vr(V_BW+3)}, v1, {vr(V_SWZ+1)}, s5
    s_lshl_b32 {sr(S_BSTEP)}, {sr(s_ldb)}, 5
    """)

def ep_chunks(a):
    a(f"""
    s_and_b32 s5, {sr(S_W)}, 1
    s_lshl_b32 s5, s5, 15
    s_add_u32 s7, {sr(S_COFF)}, s5
    s_nop 4
    """)
    tmp = 160; n = 0
    for p in range(4):
        a(f"s_add_u32 s6, s7, {(16*(p>>1) + 4*(p&1))*4096}")
        for i in range(8):
            b = tmp + (n % 3)*12; n += 1
            for tt in range(2):
                for r in range(4):
                    a(f"v_accvgpr_read_b32 {vr(b+4*tt+r)}, {ar(ACC16(2*p+tt,i)+r)}")
            for r in range(4):
                a(f"v_cvt_pk_bf16_f32 {vr(b+8+r)}, {vr(b+2*r)}, {vr(b+2*r+1)}")
            a(EPST(f"buffer_store_dwordx4 {vr(b+8,4)}, {vr(V_EP)}, {sr(S_WS,4)}, s6 offen offset:{i*256}{SSC1()}"))

def ep_vt(a):
    a(f"""
    s_lshr_b32 s5, {sr(S_W)}, 1
    s_lshl_b32 s5, s5, 20             ; wm*16*65536
    s_add_u32 s7, {sr(S_COFF)}, s5
    s_and_b32 s5, {sr(S_W)}, 1
    s_lshl_b32 s5, s5, 10             ; 64 wn * 16
    s_add_u32 s7, s7, s5
    s_nop 4
    """)
    tmp = 160; n = 0
    for P in range(4):
        a(f"s_add_u32 s6, s7, {4*P*65536}")
        for t in range(8):
            b = tmp + (n % 3)*12; n += 1
            for ii in range(2):
                for r in range(4):
                    a(f"v_accvgpr_read_b32 {vr(b+4*ii+r)}, {ar(ACC16(t,2*P+ii)+r)}")
            for r in range(4):
                a(f"v_cvt_pk_bf16_f32 {vr(b+8+r)}, {vr(b+2*r)}, {vr(b+2*r+1)}")
            a(EPST(f"buffer_store_dwordx4 {vr(b+8,4)}, {vr(V_VD)}, {sr(S_WS,4)}, s6 offen offset:{(t>>2)*2048 + (t&3)*256}{SSC1()}"))

def ep_gu(a):
    a(f"""
    s_and_b32 s5, {sr(S_W)}, 1
    s_lshl_b32 s5, s5, 15
    s_add_u32 s7, {sr(S_COFF)}, s5
    s_nop 4
    """)
    tmp = 160; n = 0
    for p in range(2):
        a(f"s_add_u32 s6, s7, {4*p*4096}")
        for i in range(8):
            b = tmp + (n % 2)*20; n += 1
            for tt in range(2):
                for r in range(4):
                    a(f"v_accvgpr_read_b32 {vr(b+4*tt+r)}, {ar(ACC16(2*p+tt,i)+r)}")
                    a(f"v_accvgpr_read_b32 {vr(b+8+4*tt+r)}, {ar(ACC16(4+2*p+tt,i)+r)}")
            for r in range(8):
                a(f"v_max_f32 {vr(b+r)}, 0, {vr(b+r)}")
            for r in range(0, 8, 2):
                a(f"v_pk_mul_f32 {vr(b+r,2)}, {vr(b+r,2)}, {vr(b+8+r,2)}")
            for r in range(4):
                a(f"v_cvt_pk_bf16_f32 {vr(b+16+r)}, {vr(b+2*r)}, {vr(b+2*r+1)}")
            a(f"buffer_store_dwordx4 {vr(b+16,4)}, {vr(V_EP)}, {sr(S_WS,4)}, s6 offen offset:{i*256}{SSC1()}")

    pad_ops(a, NEP - 16)

def ep_down1(a):
    c = fbits(-1.4426950408889634)
    a(f"""
    s_and_b32 s5, {sr(S_W)}, 1
    s_lshl_b32 s5, s5, 15
    s_add_u32 s7, {sr(S_COFF)}, s5
    s_mov_b32 s4, {c:#x}
    s_nop 4
    """)
    tmp = 160; n = 0
    for p in range(4):
        a(f"s_add_u32 s6, s7, {(16*(p>>1) + 4*(p&1))*4096}")
        for i in range(8):
            b = tmp + (n % 2)*20; n += 1
            for tt in range(2):
                for r in range(4):
                    a(f"v_accvgpr_read_b32 {vr(b+4*tt+r)}, {ar(ACC16(2*p+tt,i)+r)}")
            for r in range(8): a(f"v_mul_f32 {vr(b+8+r)}, s4, {vr(b+r)}")
            for r in range(8): a(f"v_exp_f32 {vr(b+8+r)}, {vr(b+8+r)}")
            for r in range(8): a(f"v_add_f32 {vr(b+8+r)}, 1.0, {vr(b+8+r)}")
            for r in range(8): a(f"v_rcp_f32 {vr(b+8+r)}, {vr(b+8+r)}")
            for r in range(8): a(f"v_mul_f32 {vr(b+r)}, {vr(b+r)}, {vr(b+8+r)}")
            for r in range(4): a(f"v_cvt_pk_bf16_f32 {vr(b+16+r)}, {vr(b+2*r)}, {vr(b+2*r+1)}")
            a(f"buffer_store_dwordx4 {vr(b+16,4)}, {vr(V_EP)}, {sr(S_WS,4)}, s6 offen offset:{i*256} sc1")

def load_srd(a, srd, ka, nbytes):
    a(f"""
    s_load_dwordx2 {sr(srd,2)}, s[0:1], {ka}
    s_mov_b32 {sr(srd+2)}, {nbytes}
    s_mov_b32 {sr(srd+3)}, 0x20000
    """)

def X2(r, i): return 32 + 32*r + 4*i
def W2(p, t): return 160 + 16*p + 4*t
def ACC2(t, i): return (i*4 + t)*4
def e2_tr(p, slot):
    return [f"ds_read_b64_tr_b16 {vr(W2(p,t) + 2*sec, 2)}, {vr(V2_WA + t)} offset:{slot*4096 + sec*2048}" for t in range(4) for sec in range(2)]
PITCH2 = 8192
def e2_wdma(slot, bd=V2_BD):
    g = [[f"s_add_u32 m0, {sr(S_M2)}, {slot*4096}", "s_nop 0",
          f"buffer_load_dwordx4 {vr(bd)}, {sr(S_B,4)}, {sr(S_BOFF)} offen lds"]]
    for j in range(1, 4):
        g.append([f"buffer_load_dwordx4 {vr(bd+j)}, {sr(S_B,4)}, {sr(S_BOFF)} offen offset:{j*1024} lds"])
    g[-1].append(f"s_add_u32 {sr(S_BOFF)}, {sr(S_BOFF)}, {32*PITCH2}")
    return g
def e2_xload(r, i):
    return f"buffer_load_dwordx4 {vr(X2(r,i),4)}, {vr(V2_XD + (i >> 1))}, {sr(S_WS,4)}, {sr(S_AOFF)} offen offset:{(i & 1)*256}{LSC1()}"
def e2_stage(a, r, swap, first=False, issue=True, vm=32, nxt=True):
    p = r & 1
    a(f"s_waitcnt vmcnt({vm}) lgkmcnt(0)")
    main = []
    for i in range(8):
        for t in range(4):
            x, y = (X2(r,i), W2(p,t)) if swap else (W2(p,t), X2(r,i))
            main.append(f"v_mfma_f32_16x16x32_bf16 {ar(ACC2(t,i),4)}, {vr(x,4)}, {vr(y,4)}, {'0' if first else ar(ACC2(t,i),4)}")
    sl = {}
    if issue: place(sl, e2_wdma(r), [0, 1, 2, 3])
    if nxt: place(sl, e2_tr(p ^ 1, (r+1) & 3), [4, 5, 6, 8, 9, 10, 12, 13])
    if issue:
        for i in range(8): place(sl, [e2_xload(r, i)], [4*i + 3])
        place(sl, [f"s_add_u32 {sr(S_AOFF)}, {sr(S_AOFF)}, 16384"], [31])
    for ln in weave(main, sl): a(ln)

def E2N(): return 8 if CFG.get('e2v', 2) == 2 else 4
def X2R(s, i, n=4):
    return vr(X2(s, i), n) if s < 4 else ar(128 + 32*(s-4) + 4*i, n)
def e2_main8b(a, swap):
    def xl(s, i):
        return f"buffer_load_dwordx4 {X2R(s,i)}, {vr(V2_XD + (i >> 1))}, {sr(S_WS,4)}, {sr(S_AOFF)} offen offset:{(i & 1)*256}{LSC1()}"
    for s in range(3):
        for i in range(8): a(xl(s, i))
        a(f"s_add_u32 {sr(S_AOFF)}, {sr(S_AOFF)}, 16384")
    se = CFG.get('sigearly')
    wm = 16 if CFG.get('wmid') else 0
    if wm:
        assert se and CFG.get('lnw') == 4 and CFG.get('lnfirst') == 2
        e2_wpro(a, 4)
    if not se:
        a("s_waitcnt vmcnt(56)")
        a("s_barrier")
        a(signal_op(sr(S_PDONE)))
    tl_fine2(a, 1)
    a(f"s_waitcnt vmcnt({16 + wm if se else 17})")
    tl_fine2(a, 2)
    for ln in e2_tr(0, 0): a(ln)
    for s in range(8):
        p = s & 1
        vm = 17 if s < 3 and not se else 16 + wm if s < 3 else 16 if s < 6 else 8 if s == 6 else 0
        a(f"s_waitcnt vmcnt({vm}) lgkmcnt(0)")
        main = []
        for i in range(8):
            for t in range(4):
                x, y = (X2R(s,i), vr(W2(p,t),4)) if swap else (vr(W2(p,t),4), X2R(s,i))
                main.append(f"v_mfma_f32_16x16x32_bf16 {ar(ACC2(t,i),4)}, {x}, {y}, {'0' if s == 0 else ar(ACC2(t,i),4)}")
        sl = {}
        if s < 7: place(sl, e2_tr(p ^ 1, s + 1), [4, 5, 6, 8, 9, 10, 12, 13])
        if s < 5:
            for i in range(8): place(sl, [xl(s + 3, i)], [4*i + 3])
            place(sl, [f"s_add_u32 {sr(S_AOFF)}, {sr(S_AOFF)}, 16384"], [31])
        for ln in weave(main, sl): a(ln)
        tl_fine2(a, 3 + s)

def SE_(): return 4 if CFG.get('wmid') else 5
def e2_main8c(a, swap):
    SE = SE_()
    def newer(st): return (SE - 1 - st)*4 + 1 + (8 - SE)*4 if st < SE else (7 - st)*4
    if CFG.get('wmid'): e2_wpro(a, SE)
    tl_fine2(a, 1)
    a(f"s_waitcnt vmcnt({newer(0)})")
    tl_fine2(a, 2)
    for ln in e2_tr(0, 0): a(ln)
    for s in range(8):
        p = s & 1
        a(f"s_waitcnt vmcnt({newer(s + 1) if s < 7 else 0}) lgkmcnt(0)")
        main = []
        for i in range(8):
            for t in range(4):
                x, y = (X2R(s,i), vr(W2(p,t),4)) if swap else (vr(W2(p,t),4), X2R(s,i))
                main.append(f"v_mfma_f32_16x16x32_bf16 {ar(ACC2(t,i),4)}, {x}, {y}, {'0' if s == 0 else ar(ACC2(t,i),4)}")
        sl = {}
        if s < 7: place(sl, e2_tr(p ^ 1, s + 1), [4, 5, 6, 8, 9, 10, 12, 13])
        for ln in weave(main, sl): a(ln)
        tl_fine2(a, 3 + s)

def e2_wpro(a, s0=0, s1=None):
    for s in range(s0, E2N() if s1 is None else s1):
        for g in e2_wdma(s):
            for ln in g: a(ln)

def e2_main8(a, swap):
    if E2N() == 8: return e2_main8b(a, swap)
    for s in range(4):
        for i in range(8): a(e2_xload(s, i))
        a(f"s_add_u32 {sr(S_AOFF)}, {sr(S_AOFF)}, 16384")
    if CFG.get('kvchain', 1):
        a("s_waitcnt vmcnt(48)")
        a("s_barrier")
        a(signal_op(sr(S_PDONE)))
    tl_fine2(a, 1)
    a("s_waitcnt vmcnt(44)")
    tl_fine2(a, 2)
    for ln in e2_tr(0, 0): a(ln)
    for r, vm in enumerate((24, 28, 32, 32)):
        e2_stage(a, r, swap, first=(r == 0), vm=vm)
        tl_fine2(a, 3 + r)
    e2_stage(a, 0, swap, issue=False, vm=32)
    tl_fine2(a, 7)
    e2_stage(a, 1, swap, issue=False, vm=20)
    tl_fine2(a, 8)
    e2_stage(a, 2, swap, issue=False, vm=8)
    tl_fine2(a, 9)
    e2_stage(a, 3, swap, issue=False, vm=0, nxt=False)
    tl_fine2(a, 10)

class _R2(int): pass
def XKEEP(): return CFG.get('xkeep') and E2N() == 8
def R2_(): return 160 if XKEEP() else 32
def e2_reduce(a):
    R2 = R2_()
    a("s_nop 7")
    for dd in range(1, 4):
        for ii in range(2):
            for t in range(4):
                a(f"ds_write_b128 {vr(V2_RW + dd-1)}, {ar(ACC2(t, 2*dd+ii), 4)} offset:{(ii*4+t)*1024}")
    for k in range(8):
        for r in range(4): a(f"v_accvgpr_read_b32 {vr(R2 + 4*k + r)}, {ar(ACC2(k & 3, k >> 2) + r)}")
    a("s_waitcnt lgkmcnt(0)")
    a("s_barrier")
    if XKEEP():
        PB = [192, 232]
        grp = [(dd, h) for dd in range(3) for h in range(2)]
        def rd(g):
            dd, h = grp[g]
            for k in range(4): a(f"ds_read_b128 {vr(PB[g & 1] + 4*k, 4)}, {vr(V2_RR + dd)} offset:{(4*h + k)*1024}")
        rd(0); rd(1)
        for g in range(6):
            dd, h = grp[g]
            a(f"s_waitcnt lgkmcnt({4 if g < 5 else 0})")
            for k in range(8):
                a(f"v_pk_add_f32 {vr(R2 + 16*h + 2*k, 2)}, {vr(R2 + 16*h + 2*k, 2)}, {vr(PB[g & 1] + 2*k, 2)}")
            if g + 2 < 6: rd(g + 2)
        return
    P = 64
    for dd in range(3):
        for k in range(8):
            a(f"ds_read_b128 {vr(P + 32*dd + 4*k, 4)}, {vr(V2_RR + dd)} offset:{k*1024}")
        a(f"s_waitcnt lgkmcnt({8 if dd > 0 else 15})") if dd > 0 else None
        if dd > 0:
            for k in range(16):
                a(f"v_pk_add_f32 {vr(R2 + 2*k, 2)}, {vr(R2 + 2*k, 2)}, {vr(P + 32*(dd-1) + 2*k, 2)}")
    a("s_waitcnt lgkmcnt(0)")
    for k in range(16):
        a(f"v_pk_add_f32 {vr(R2 + 2*k, 2)}, {vr(R2 + 2*k, 2)}, {vr(P + 64 + 2*k, 2)}")

def e2_setup_regs(a):
    a(f"""
    v_lshlrev_b32 {vr(V2_L16)}, 4, v0
    """)
    for dd in range(4):
        a(f"""
        s_add_u32 s4, {sr(S_W)}, {dd}
        s_and_b32 s4, s4, 3
        s_lshl_b32 s4, s4, 9
        v_add_u32 {vr(V2_XD+dd)}, s4, {vr(V_AD)}
        """)
    a(f"""
    v_lshrrev_b32 v1, 3, v0
    v_lshlrev_b32 v1, 13, v1
    v_bfe_u32 v2, v0, 1, 2
    v_lshrrev_b32 v3, 4, v0
    v_xor_b32 v2, v2, v3
    v_lshlrev_b32 v2, 5, v2
    v_add_u32 v1, v1, v2
    v_and_b32 v2, 1, v0
    v_lshlrev_b32 v2, 4, v2
    v_add_u32 {vr(V2_BD)}, v1, v2
    """)
    for j in range(1, 4): a(f"v_add_u32 {vr(V2_BD+j)}, {j*(8*PITCH2-1024)}, {vr(V2_BD)}")
    a(f"""
    v_lshrrev_b32 v1, 4, v0
    v_lshlrev_b32 v1, 2, v1
    v_bfe_u32 v2, v0, 2, 2
    v_add_u32 v1, v1, v2              ; k
    v_bfe_u32 v2, v1, 1, 2            ; (k>>1)&3
    v_lshlrev_b32 v1, 7, v1
    v_and_b32 v3, 3, v0
    v_lshlrev_b32 v3, 3, v3
    v_add_u32 v1, v1, v3
    s_lshl_b32 s4, {sr(S_W)}, {15 if E2N() == 8 else 14}
    v_add_u32 v1, s4, v1
    """)
    for tl in range(4):
        a(f"""
        v_xor_b32 v3, {tl}, v2
        v_lshlrev_b32 v3, 5, v3
        v_add_u32 {vr(V2_WA+tl)}, v1, v3
        """)
    if E2N() == 8:
        a(f"""
        s_lshl_b32 s4, {sr(S_W)}, 15
        v_add_u32 {vr(V2_RW)}, s4, {vr(V2_L16)}
        v_add_u32 {vr(V2_RW+1)}, 8192, {vr(V2_RW)}
        v_add_u32 {vr(V2_RW+2)}, 16384, {vr(V2_RW)}
        """)
        for dd in range(1, 4):
            a(f"""
            s_sub_u32 s4, {sr(S_W)}, {dd}
            s_and_b32 s4, s4, 3
            s_lshl_b32 s4, s4, 15
            s_add_u32 s4, s4, {(dd-1)*8192}
            v_add_u32 {vr(V2_RR+dd-1)}, s4, {vr(V2_L16)}
            """)
        return
    a(f"""
    s_lshl_b32 s4, {sr(S_W)}, 14
    v_add_u32 {vr(V2_RW)}, s4, {vr(V2_L16)}
    v_add_u32 {vr(V2_RW+1)}, 8192, {vr(V2_RW)}
    s_lshl_b32 s4, {sr(S_W)}, 13
    s_add_u32 s4, s4, 65536
    v_add_u32 {vr(V2_RW+2)}, s4, {vr(V2_L16)}
    """)
    for dd in range(1, 4):
        a(f"""
        s_sub_u32 s4, {sr(S_W)}, {dd}
        s_and_b32 s4, s4, 3
        """)
        if dd < 3:
            a(f"""
            s_lshl_b32 s4, s4, 14
            s_add_u32 s4, s4, {(dd-1)*8192}
            """)
        else:
            a(f"""
            s_lshl_b32 s4, s4, 13
            s_add_u32 s4, s4, 65536
            """)
        a(f"v_add_u32 {vr(V2_RR+dd-1)}, s4, {vr(V2_L16)}")

def ep_kv0(a, swap):
    Q = 192 if XKEEP() else 96
    R2 = R2_()
    if not swap:
        for ii in range(2):
            for pr in range(2):
                q = Q + 4*(ii*2+pr); b = R2 + (ii*4 + 2*pr)*4
                for d in range(4): a(f"v_cvt_pk_bf16_f32 {vr(q+d)}, {vr(b+2*d)}, {vr(b+2*d+1)}")
        a(f"s_add_u32 s5, {sr(S_COFF)}, 16384")
        for ii in range(2):
            for pr in range(2):
                so = sr(S_COFF) if pr == 0 else "s5"
                a(f"buffer_store_dwordx4 {vr(Q+4*(ii*2+pr),4)}, {vr(V_AD)}, {sr(S_WS,4)}, {so} offen offset:{ii*256} sc1")
    else:
        for t in range(4):
            q = Q + 4*t
            for ii in range(2):
                b = R2 + (ii*4 + t)*4
                a(f"v_cvt_pk_bf16_f32 {vr(q+2*ii)}, {vr(b)}, {vr(b+1)}")
                a(f"v_cvt_pk_bf16_f32 {vr(q+2*ii+1)}, {vr(b+2)}, {vr(b+3)}")
        for t in range(4):
            a(f"buffer_store_dwordx4 {vr(Q+4*t,4)}, {vr(V_VD)}, {sr(S_WS,4)}, {sr(S_COFF)} offen offset:{t*256} sc1")

def kv0_setup(a):
    l1 = a.label("Lk0"); l2 = a.label("Lk0"); l3 = a.label("Lk0")
    a(f"""
    s_lshl_b32 s4, {sr(S_J)}, 5
    s_add_u32 s5, s4, {sr(S_T)}
    s_mov_b32 {sr(S_MT)}, 0                       ; half
    s_mov_b32 {sr(S_DONE)}, {OFF_CNT + CN_KV0A*256}
    s_cmp_eq_u32 {sr(S_KIND)}, 0
    s_cbranch_scc1 {l1}
    s_add_u32 s5, s5, {sr(S_T)}
    s_add_u32 s5, s5, {sr(S_KIND)}
    s_sub_u32 s5, s5, 1
    s_mov_b32 {sr(S_MT)}, 1
    s_mov_b32 {sr(S_DONE)}, {OFF_CNT + CN_KV*256}
    {l1}:
    s_and_b32 {sr(S_NT)}, s5, 63
    s_lshr_b32 s4, {sr(S_J)}, 1
    s_lshl_b32 s4, s4, 3
    s_add_u32 s4, s4, {KA_WK}
    s_load_dwordx2 {sr(S_B,2)}, s[0:1], s4
    s_mov_b32 {sr(S_B+2)}, {8*MB}
    s_mov_b32 {sr(S_B+3)}, 0x20000
    s_lshl_b32 {sr(S_AOFF)}, {sr(S_W)}, 17
    s_lshl_b32 s4, {sr(S_MT)}, 11
    s_add_u32 {sr(S_AOFF)}, {sr(S_AOFF)}, s4
    s_add_u32 {sr(S_AOFF)}, {sr(S_AOFF)}, {OFF_XN}
    s_lshl_b32 {sr(S_BOFF)}, {sr(S_W)}, 21
    s_lshl_b32 s4, {sr(S_NT)}, 7
    s_add_u32 {sr(S_BOFF)}, {sr(S_BOFF)}, s4
    s_lshl_b32 {sr(S_M2)}, {sr(S_W)}, {15 if E2N() == 8 else 14}
    s_cmp_ge_u32 {sr(S_J)}, 2
    s_cbranch_scc1 {l2}
    s_lshl_b32 s4, {sr(S_NT)}, 15
    s_lshl_b32 s5, {sr(S_MT)}, 11
    s_add_u32 s4, s4, s5
    s_lshl_b32 s5, {sr(S_W)}, 9
    s_add_u32 s4, s4, s5
    s_add_u32 {sr(S_COFF)}, s4, {OFF_KX}
    s_branch {l3}
    {l2}:
    s_lshl_b32 s4, {sr(S_MT)}, 2
    s_add_u32 s4, s4, {sr(S_W)}
    s_lshl_b32 s4, s4, 18
    s_lshl_b32 s5, {sr(S_NT)}, 10
    s_add_u32 s4, s4, s5
    s_add_u32 {sr(S_COFF)}, s4, {OFF_VT}
    {l3}:
    s_waitcnt lgkmcnt(0)
    """)

def ln0_probe(a):
    if CFG.get('ln0a', 1):
        a(f"v_mov_b32 v6, {C_LN0*4}")
        a(f"buffer_load_dword v7, v6, {sr(S_DBG,4)}, 0 offen sc1")
        if CFG.get('e1early'):
            a(f"v_mov_b32 v4, {C_LN*4}")
            a(f"buffer_load_dword v5, v4, {sr(S_DBG,4)}, 0 offen sc1")

def ln0_check(a):
    if CFG.get('ln0a', 1):
        top = a.label("Ll0"); ok = a.label("Ll0o")
        a(f"""
        {top}:
        s_waitcnt vmcnt(0)
        v_cmp_le_u32 vcc, 16, v7
        s_cbranch_vccnz {ok}
        s_sub_u32 {sr(S_GBUD)}, {sr(S_GBUD)}, 1
        s_cbranch_scc1 L_abort
        s_sleep 2
        buffer_load_dword v7, v6, {sr(S_DBG,4)}, 0 offen sc1
        s_branch {top}
        {ok}:
        """)

S_LNOK = 88
def kv0_loop(a):
    a("L_kv0:")
    tl_stamp(a, 1)
    tl_fine2(a, 0)
    if XKEEP():
        assert CFG.get('sigearly')
        a(f"s_cmp_eq_u32 {sr(S_KIND)}, 2")
        a("s_cbranch_scc1 L_kv0c")
    a(f"s_cmp_ge_u32 {sr(S_J)}, 2")
    a("s_cbranch_scc1 L_kv0V")
    e2_main8(a, False)
    a("L_kv0Kr:")
    ln0_probe(a)
    e2_reduce(a)
    tl_fine2(a, 11)
    ln0_check(a)
    ep_kv0(a, False)
    a("s_branch L_kv0done")
    if XKEEP():
        a("L_kv0c:")
        a(f"s_cmp_ge_u32 {sr(S_J)}, 2")
        a("s_cbranch_scc1 L_kv0cV")
        e2_main8c(a, False)
        a("s_branch L_kv0Kr")
        a("L_kv0cV:")
        e2_main8c(a, True)
        a("s_branch L_kv0Vr")
    a("L_kv0V:")
    e2_main8(a, True)
    a("L_kv0Vr:")
    ln0_probe(a)
    e2_reduce(a)
    tl_fine2(a, 11)
    ln0_check(a)
    ep_kv0(a, True)
    a("L_kv0done:")
    tl_fine2(a, 12)
    if CFG.get('kvchain', 1):
        if CFG.get('tl'):
            a(f"s_lshl_b32 s68, {sr(S_KIND)}, 4")
            a("s_or_b32 s68, s68, 8")
            tl_store_nowait(a, "s68")
        a(f"""
        s_add_u32 {sr(S_KIND)}, {sr(S_KIND)}, 1
        s_cmp_ge_u32 {sr(S_T)}, 16
        s_cbranch_scc1 L_kv0last
        s_cmp_ge_u32 {sr(S_KIND)}, 3
        s_cbranch_scc1 L_kv0last
        s_mov_b32 {sr(S_PDONE)}, {sr(S_DONE)}
        s_barrier
        """)
        kv0_setup(a)
        if CFG.get('sigearly'):
            SE = SE_()
            e2_wpro(a, 0, SE)
            a(f"s_waitcnt vmcnt({4*SE})")
            a("s_barrier")
            a(signal_op(sr(S_PDONE)))
            if not CFG.get('wmid'): e2_wpro(a, SE)
        else:
            e2_wpro(a)
        a("s_branch L_kv0")
        a("L_kv0last:")
        if CFG.get('e1early'):
            l0 = a.label("Lk0w"); l1 = a.label("Lk0s")
            if CFG['e1early'] == 2:
                a(f"s_cmp_ge_u32 {sr(S_T)}, 24")
                a(f"s_cbranch_scc1 {l1}")
            if CFG['e1early'] == 3:
                a(f"s_cmp_lt_u32 {sr(S_T)}, 16")
                a(f"s_cbranch_scc1 {l1}")
                a(f"s_cmp_ge_u32 {sr(S_T)}, 24")
                a(f"s_cbranch_scc1 {l1}")
            a(f"""
            v_mov_b32 v4, {LMB + 16}
            s_cmp_lg_u32 {sr(S_W)}, 0
            s_cbranch_scc1 {l0}
            ds_write_b32 v4, v5
            {l0}:
            s_waitcnt lgkmcnt(0)
            s_barrier
            ds_read_b32 v5, v4
            s_waitcnt lgkmcnt(0)
            v_readfirstlane_b32 {sr(S_LNOK)}, v5
            s_cmp_ge_u32 {sr(S_LNOK)}, {CFG.get('e1thr', 128)}
            s_cbranch_scc1 L_e1fast
            {l1}:
            """)
        drain_signal(a)
        a("L_kv0end:")
        return
    drain_signal(a)
    if CFG.get('tl'):
        a(f"s_lshl_b32 s68, {sr(S_KIND)}, 4")
        a("s_or_b32 s68, s68, 8")
        tl_store_nowait(a, "s68")
    a(f"""
    s_add_u32 {sr(S_KIND)}, {sr(S_KIND)}, 1
    s_cmp_ge_u32 {sr(S_T)}, 16
    s_cbranch_scc1 L_kv0end
    s_cmp_ge_u32 {sr(S_KIND)}, 3
    s_cbranch_scc1 L_kv0end
    """)
    kv0_setup(a)
    e2_wpro(a)
    a("s_branch L_kv0")
    a("L_kv0end:")

V3_TR, V3_WD, V3_XO, V3_RW, V3_RR, V_PA, V_PT, V_PV = 208, 210, 211, 212, 213, 214, 215, 216
V3_EX = 204
X3 = lambda p, ii: 32 + (p*2 + ii)*4
W3 = lambda p, t: (p*4 + t)*4
ACC3, XG3, OWN3, PART3, T3 = 160, 192, 196, 200, 218
S_CB, S_SEG, S_NSEG, S_XO, S_GO, S_NAOFF, S_RDY = 30, 31, 32, 33, 34, 35, 36
S_PSEG, S_EXI, S_EXO = 37, 39, 29
S_MSK = 80
CN_PAIR = 128
EXSEG = 32*4096

def e3_setup(a):
    load_srd(a, S_B, KA_WO, 8*MB)
    a(f"""
    v_lshrrev_b32 v1, 2, v0
    v_lshlrev_b32 v1, 11, v1
    v_and_b32 v2, 3, v0
    v_lshlrev_b32 v2, 4, v2
    v_add_u32 {vr(V3_WD)}, v1, v2                 ; (l>>2)*2048 + (l&3)*16
    v_lshrrev_b32 v1, 4, v0
    v_lshlrev_b32 v1, 2, v1
    v_bfe_u32 v2, v0, 2, 2
    v_add_u32 v1, v1, v2                          ; k = 4g + r
    v_lshlrev_b32 v1, 6, v1
    v_and_b32 v2, 3, v0
    v_lshlrev_b32 v2, 3, v2
    v_add_u32 v1, v1, v2
    s_lshl_b32 s4, {sr(S_W)}, 14
    v_add_u32 {vr(V3_TR)}, s4, v1
    v_add_u32 {vr(V3_TR+1)}, 0x10000, {vr(V3_TR)}
    v_and_b32 v1, 15, v0
    v_lshlrev_b32 v1, 11, v1
    v_lshrrev_b32 v2, 4, v0
    v_lshlrev_b32 v2, 3, v2
    v_add_u32 {vr(V3_XO)}, v1, v2                 ; i*2048 + g*8
    v_lshlrev_b32 v1, 4, v0
    s_lshl_b32 s4, {sr(S_W)}, 13
    v_add_u32 {vr(V3_RW)}, s4, v1
    s_lshl_b32 s4, {sr(S_W)}, 10
    v_add_u32 {vr(V3_RR)}, s4, v1
    v_mov_b32 {vr(V3_EX)}, {vr(V3_RR)}
    s_and_b32 s5, {sr(S_CB)}, 1
    s_lshl_b32 s5, s5, 2
    s_add_u32 s5, s5, {sr(S_W)}
    s_lshl_b32 {sr(S_T0+8)}, s5, 20
    s_lshl_b32 {sr(S_M2)}, {sr(S_W)}, 14
    v_mov_b32 {vr(ACC3)}, -1
    v_mov_b32 {vr(ACC3+1)}, -1
    v_mov_b32 {vr(ACC3+2)}, -1
    v_mov_b32 {vr(ACC3+3)}, -1
    s_mov_b64 s[6:7], {sr(S_MSK,2)}
    L_e3arm:
    s_ff1_i32_b64 s4, s[6:7]
    s_bitset0_b64 s[6:7], s4
    s_lshl_b32 s4, s4, 17
    s_lshl_b32 s5, {sr(S_CB)}, 12
    s_add_u32 s4, s4, s5
    s_add_u32 s4, s4, {OFF_EX}
    buffer_store_dwordx4 {vr(ACC3,4)}, {vr(V3_EX)}, {sr(S_WS,4)}, s4 offen
    s_cmp_lg_u64 s[6:7], 0
    s_cbranch_scc1 L_e3arm
    s_waitcnt lgkmcnt(0)
    """)
    def batch(b):
        a(f"""
        s_xor_b32 s4, {sr(S_CB)}, {b >> 1}
        s_lshl_b32 s4, s4, 6
        s_add_u32 {sr(S_BOFF)}, {sr(S_T0+8)}, s4
        s_add_u32 {sr(S_BOFF)}, {sr(S_BOFF)}, {(b & 1)*256*2048}
        """)
        for i in range(16):
            a(f"""
            s_add_u32 m0, {sr(S_M2)}, {(b & 1)*65536 + i*1024}
            s_nop 0
            buffer_load_dwordx4 {vr(V3_WD)}, {sr(S_B,4)}, {sr(S_BOFF)} offen lds
            s_add_u32 {sr(S_BOFF)}, {sr(S_BOFF)}, {16*2048}
            """)
    def reads(b):
        n = 0
        for p in range(8):
            for t in range(2):
                for sec in range(2):
                    a(f"ds_read_b64_tr_b16 {ar(W3(8*(b & 1)+p, 2*(b >> 1)+t) + 2*sec, 2)}, {vr(V3_TR + (b & 1))} offset:{p*2048 + sec*1024 + t*32}")
                    n += 1
                    if n % 8 == 0: a("s_waitcnt lgkmcnt(4)")
        a("s_waitcnt lgkmcnt(0)")
    batch(0); batch(1)
    for b in range(4):
        a(f"s_waitcnt vmcnt({16 if b < 3 else 0})")
        reads(b)
        if b < 2: batch(b + 2)
    a("s_barrier")
    a(f"""
    s_lshr_b32 s4, {sr(S_T)}, 1
    s_lshl_b32 s5, {sr(S_J)}, 4
    s_add_u32 s4, s4, s5
    s_lshl_b32 s4, s4, 8
    s_add_u32 {sr(S_DONE)}, s4, {OFF_CNT + CN_PAIR*256}
    """)
    a(signal_op(sr(S_DONE)))
    load_srd(a, S_B, KA_X, 4*MB)
    load_srd(a, S_OUT, KA_OUT, 4*MB)
    a(f"""
    s_mov_b32 {sr(S_A)}, {sr(S_WS)}
    s_mov_b32 {sr(S_A+1)}, {sr(S_WS+1)}
    s_mov_b32 {sr(S_A+3)}, 0x20000
    s_waitcnt lgkmcnt(0)
    """)
    wait_word(a, S_WS, sr(S_DONE), 2, 2)

V_OD = 205
def OSTEP(): return 2048 if CFG.get('oseg', 1) else 16384
def V_OA(): return V_OD if CFG.get('oseg', 1) else V_AD
def e3_xbase(a, dst, seg):
    if CFG.get('oseg', 1):
        a(f"""
        s_lshl_b32 s4, {sr(seg)}, 18
        s_and_b32 s5, {sr(S_CB)}, 1
        s_lshl_b32 s5, s5, 2
        s_add_u32 s5, s5, {sr(S_W)}
        s_lshl_b32 s5, s5, 15
        s_add_u32 s4, s4, s5
        s_add_u32 {sr(dst)}, s4, {OFF_OX}
        """)
        return
    a(f"""
    s_lshr_b32 s4, {sr(seg)}, 3
    s_lshl_b32 s4, s4, 21
    s_and_b32 s5, {sr(seg)}, 7
    s_lshl_b32 s5, s5, 9
    s_add_u32 s4, s4, s5
    s_and_b32 s5, {sr(S_CB)}, 1
    s_lshl_b32 s5, s5, 2
    s_add_u32 s5, s5, {sr(S_W)}
    s_lshl_b32 s5, s5, 18
    s_add_u32 s4, s4, s5
    s_add_u32 {sr(dst)}, s4, {OFF_OX}
    """)

def e3_polladdr(a, seg):
    a(f"""
    s_lshl_b32 s4, {sr(seg)}, 8
    s_add_u32 s4, s4, {OFF_CNT + CN_AT*256}
    v_mov_b32 {vr(V_PA)}, s4
    s_lshr_b32 s5, {sr(seg)}, 3
    s_lshl_b32 s5, s5, 8
    s_add_u32 s5, s5, {OFF_CNT + CN_DN*256}
    v_writelane_b32 {vr(V_PA)}, s5, 1
    """)

def e3_ld(p, ii, srd, soff):
    return f"buffer_load_dwordx4 {vr(X3(p,ii),4)}, {vr(V_OA())}, {sr(srd,4)}, {sr(soff)} offen offset:{ii*256}{CFG.get('e3mod', ' sc1')}"

def e3_finaddr(a, seg):
    a(f"""
    s_lshl_b32 s4, {sr(seg)}, 16
    s_lshr_b32 s5, {sr(S_W)}, 1
    s_lshl_b32 s6, s5, 15
    s_add_u32 s4, s4, s6
    s_lshl_b32 s6, {sr(S_CB)}, 6
    s_add_u32 s4, s4, s6
    s_and_b32 s7, {sr(S_W)}, 1
    s_lshl_b32 s6, s7, 5
    s_add_u32 {sr(S_XO)}, s4, s6
    s_lshr_b32 s4, {sr(seg)}, 3
    s_lshl_b32 s4, s4, 19
    s_lshl_b32 s6, {sr(S_CB)}, 14
    s_add_u32 s4, s4, s6
    s_and_b32 s6, {sr(seg)}, 7
    s_lshl_b32 s6, s6, 9
    s_add_u32 s4, s4, s6
    s_lshl_b32 s6, s5, 8
    s_add_u32 s4, s4, s6
    s_lshl_b32 s6, s7, 3
    s_add_u32 s4, s4, s6
    s_add_u32 {sr(S_GO)}, s4, {OFF_GS}
    s_lshl_b32 s4, {sr(seg)}, 17
    s_xor_b32 s5, {sr(S_CB)}, 1
    s_lshl_b32 s5, s5, 12
    s_add_u32 s4, s4, s5
    s_add_u32 {sr(S_EXI)}, s4, {OFF_EX}
    """)

def e3_xg(a):
    a(f"""
    buffer_load_dwordx2 {vr(XG3,2)}, {vr(V3_XO)}, {sr(S_B,4)}, {sr(S_XO)} offen
    buffer_load_dwordx2 {vr(XG3+2,2)}, {vr(V_AD)}, {sr(S_WS,4)}, {sr(S_GO)} offen sc1
    """)

def e3_part():
    return f"buffer_load_dwordx4 {vr(PART3,4)}, {vr(V3_EX)}, {sr(S_WS,4)}, {sr(S_EXI)} offen sc1"

def e3_finish(a, vm):
    top = a.label("Le3f"); retry = a.label("Le3r")
    T = T3
    a(f"""
    s_waitcnt vmcnt({vm})
    {top}:
    v_max3_u32 {vr(T)}, {vr(PART3)}, {vr(PART3+1)}, {vr(PART3+2)}
    v_max_u32 {vr(T)}, {vr(T)}, {vr(PART3+3)}
    v_cmp_eq_u32 vcc, -1, {vr(T)}
    s_cbranch_vccnz {retry}
    v_pk_add_f32 {vr(PART3,2)}, {vr(PART3,2)}, {vr(OWN3,2)}
    v_pk_add_f32 {vr(PART3+2,2)}, {vr(PART3+2,2)}, {vr(OWN3+2,2)}
    v_lshlrev_b32 {vr(T)}, 16, {vr(XG3)}
    v_and_b32 {vr(T+1)}, 0xffff0000, {vr(XG3)}
    v_lshlrev_b32 {vr(T+2)}, 16, {vr(XG3+1)}
    v_and_b32 {vr(T+3)}, 0xffff0000, {vr(XG3+1)}
    v_lshlrev_b32 {vr(T+4)}, 16, {vr(XG3+2)}
    v_and_b32 {vr(T+5)}, 0xffff0000, {vr(XG3+2)}
    v_lshlrev_b32 {vr(T+6)}, 16, {vr(XG3+3)}
    v_and_b32 {vr(T+7)}, 0xffff0000, {vr(XG3+3)}
    v_fma_f32 {vr(T)}, {vr(PART3)}, {vr(T+4)}, {vr(T)}
    v_fma_f32 {vr(T+1)}, {vr(PART3+1)}, {vr(T+5)}, {vr(T+1)}
    v_fma_f32 {vr(T+2)}, {vr(PART3+2)}, {vr(T+6)}, {vr(T+2)}
    v_fma_f32 {vr(T+3)}, {vr(PART3+3)}, {vr(T+7)}, {vr(T+3)}
    v_cvt_pk_bf16_f32 {vr(T+8)}, {vr(T)}, {vr(T+1)}
    v_cvt_pk_bf16_f32 {vr(T+9)}, {vr(T+2)}, {vr(T+3)}
    buffer_store_dwordx2 {vr(T+8,2)}, {vr(V3_XO)}, {sr(S_OUT,4)}, {sr(S_XO)} offen{CFG.get('outmod', '')}
    """)
    a.cold3.append(f"""{retry}:
    s_sub_u32 {sr(S_GBUD)}, {sr(S_GBUD)}, 1
    s_cbranch_scc1 L_abort
    {e3_part()}
    s_waitcnt vmcnt(0)
    s_branch {top}""")

def e3_data(a):
    XD = lambda p, ii: 32 + (p*2 + ii)*4
    nof = a.label("Le3dn"); top = a.label("Le3dp"); ok = a.label("Le3do"); st = a.label("Le3ds"); sok = a.label("Le3dk"); full = a.label("Le3df")
    a("L_e3data:")
    a(f"""
    s_cmp_lt_i32 {sr(S_PSEG)}, 0
    s_cbranch_scc1 {nof}
    """)
    e3_finaddr(a, S_PSEG)
    e3_xg(a)
    a(e3_part())
    e3_finish(a, 0)
    a(f"""
    s_mov_b32 {sr(S_PSEG)}, -1
    {nof}:
    s_sub_u32 s4, {sr(S_SEG)}, 4
    s_lshl_b32 s4, s4, 8
    s_add_u32 s4, s4, {OFF_CNT + CN_AT*256}
    v_mov_b32 {vr(V_PA)}, s4
    s_lshr_b32 s5, {sr(S_SEG)}, 3
    s_lshl_b32 s5, s5, 8
    s_add_u32 s5, s5, {OFF_CNT + CN_DN*256}
    v_writelane_b32 {vr(V_PA)}, s5, 1
    {top}:
    buffer_load_dword {vr(V_PV)}, {vr(V_PA)}, {sr(S_WS,4)}, 0 offen sc1
    s_waitcnt vmcnt(0)
    v_cmp_ge_u32 vcc, {vr(V_PV)}, {vr(V_PT)}
    s_cmp_eq_u64 vcc, -1
    s_cbranch_scc1 {ok}
    s_sleep {CFG.get('e3sleep', 4)}
    s_sub_u32 {sr(S_GBUD)}, {sr(S_GBUD)}, 1
    s_cbranch_scc0 {top}
    s_branch L_abort
    {ok}:
    """)
    e3_xbase(a, S_AOFF, S_SEG)
    a(f"""
    s_lshl_b32 s4, {sr(S_SEG)}, 17
    s_lshl_b32 s5, {sr(S_CB)}, 12
    s_add_u32 s4, s4, s5
    s_add_u32 {sr(S_EXO)}, s4, {OFF_EX}
    s_ff1_i32_b64 {sr(S_NSEG)}, {sr(S_MSK,2)}
    s_mov_b32 {sr(S_RDY)}, 0
    v_lshrrev_b32 {vr(T3)}, 4, v0
    v_lshlrev_b32 {vr(T3)}, 13, {vr(T3)}
    v_and_b32 {vr(T3+1)}, 15, v0
    v_lshlrev_b32 {vr(T3+1)}, 4, {vr(T3+1)}
    v_add_u32 {vr(T3)}, {vr(T3)}, {vr(T3+1)}
    v_add_u32 {vr(T3)}, {3*2048 + 256 + 3*512}, {vr(T3)}
    {st}:
    buffer_load_dword {vr(T3+1)}, {vr(T3)}, {sr(S_WS,4)}, {sr(S_AOFF)} offen sc1
    s_waitcnt vmcnt(0)
    v_cmp_eq_u32 vcc, -1, {vr(T3+1)}
    s_cbranch_vccz {full}
    s_sleep {CFG.get('odsleep', 2)}
    s_sub_u32 {sr(S_GBUD)}, {sr(S_GBUD)}, 1
    s_cbranch_scc0 {st}
    s_branch L_abort
    {full}:
    s_mov_b32 {sr(S_NAOFF)}, {sr(S_AOFF)}
    """)
    tl_stamp(a, 1)
    for p in range(16):
        for ii in range(2):
            a(f"buffer_load_dwordx4 {vr(XD(p,ii),4)}, {vr(V_OA())}, {sr(S_WS,4)}, {sr(S_NAOFF)} offen offset:{ii*256} sc1")
        if p < 15: a(f"s_add_u32 {sr(S_NAOFF)}, {sr(S_NAOFF)}, {OSTEP()}")
    a(f"v_mov_b32 {vr(T3+1)}, 0")
    for p in range(16):
        a(f"s_waitcnt vmcnt({30 - 2*p})")
        n = 0
        for t in range(4):
            for ii in range(2):
                acc = ACC3 + ((t >> 1)*4 + ii*2 + (t & 1))*4
                a(f"v_mfma_f32_16x16x32_bf16 {vr(acc,4)}, {ar(W3(p,t),4)}, {vr(XD(p,ii),4)}, {'0' if p == 0 else vr(acc,4)}")
                if n < 4: a(f"v_max3_u32 {vr(T3+1)}, {vr(T3+1)}, {vr(XD(p,0)+2*n)}, {vr(XD(p,0)+2*n+1)}")
                n += 1
    a(f"""
    v_cmp_eq_u32 vcc, -1, {vr(T3+1)}
    s_cbranch_vccz L_e3red
    s_sub_u32 {sr(S_GBUD)}, {sr(S_GBUD)}, 1
    s_cbranch_scc0 {full}
    s_branch L_abort
    """)

def e3_loop(a):
    a.cold3 = []
    a(f"""
    v_mov_b32 {vr(V_PT)}, 8
    s_mov_b32 s4, 4
    v_writelane_b32 {vr(V_PT)}, s4, 1
    s_ff1_i32_b64 {sr(S_SEG)}, {sr(S_MSK,2)}
    s_bitset0_b64 {sr(S_MSK,2)}, {sr(S_SEG)}
    s_mov_b32 {sr(S_PSEG)}, -1
    L_e3cold:
    """)
    tl_stamp(a, 0)
    if CFG.get('odata'):
        a(f"s_cmp_ge_u32 {sr(S_SEG)}, {CFG['odata']}")
        a("s_cbranch_scc1 L_e3data")
    e3_polladdr(a, S_SEG)
    top = a.label("Le3p"); ok = a.label("Le3o")
    a(f"""
    {top}:
    buffer_load_dword {vr(V_PV)}, {vr(V_PA)}, {sr(S_WS,4)}, 0 offen sc1
    s_waitcnt vmcnt(0)
    v_cmp_ge_u32 vcc, {vr(V_PV)}, {vr(V_PT)}
    s_cmp_eq_u64 vcc, -1
    s_cbranch_scc1 {ok}
    s_sleep {CFG.get('e3sleep', 4)}
    s_sub_u32 {sr(S_GBUD)}, {sr(S_GBUD)}, 1
    s_cbranch_scc0 {top}
    s_branch L_abort
    {ok}:
    """)
    e3_xbase(a, S_AOFF, S_SEG)
    for p in range(8):
        a(e3_ld(p, 0, S_WS, S_AOFF)); a(e3_ld(p, 1, S_WS, S_AOFF))
        a(f"s_add_u32 {sr(S_AOFF)}, {sr(S_AOFF)}, {OSTEP()}")
    pad_ops(a, 2)
    a("L_e3top:")
    tl_stamp(a, 1)
    a(f"""
    s_cmp_lt_i32 {sr(S_PSEG)}, 0
    s_cselect_b32 {sr(S_T0+8)}, {sr(S_SEG)}, {sr(S_PSEG)}
    """)
    e3_finaddr(a, S_T0+8)
    a(f"""
    s_lshl_b32 s4, {sr(S_SEG)}, 17
    s_lshl_b32 s5, {sr(S_CB)}, 12
    s_add_u32 s4, s4, s5
    s_add_u32 {sr(S_EXO)}, s4, {OFF_EX}
    s_ff1_i32_b64 {sr(S_NSEG)}, {sr(S_MSK,2)}
    s_max_i32 s7, {sr(S_NSEG)}, 0
    s_mov_b32 {sr(S_T0+8)}, s7
    """)
    e3_polladdr(a, S_T0+8)
    e3_xg(a)
    a(f"buffer_load_dword {vr(V_PV)}, {vr(V_PA)}, {sr(S_WS,4)}, 0 offen sc1")
    e3_xbase(a, S_NAOFF, S_T0+8)
    for p in range(16):
        a(f"s_waitcnt vmcnt({19 if p < 8 else 14 if p == 8 else 15})")
        if p == 8:
            a(f"""
            v_cmp_ge_u32 vcc, {vr(V_PV)}, {vr(V_PT)}
            s_cmp_eq_u64 vcc, -1
            s_cselect_b32 {sr(S_RDY)}, 1, 0
            s_cmp_lt_i32 {sr(S_NSEG)}, 0
            s_cselect_b32 {sr(S_RDY)}, 0, {sr(S_RDY)}
            s_cmp_eq_u32 {sr(S_RDY)}, 1
            s_cselect_b32 {sr(S_A+2)}, {WS_BYTES}, 0
            {e3_part()}
            """)
        for t in range(4):
            for ii in range(2):
                acc = ACC3 + ((t >> 1)*4 + ii*2 + (t & 1))*4
                a(f"v_mfma_f32_16x16x32_bf16 {vr(acc,4)}, {ar(W3(p,t),4)}, {vr(X3(p,ii),4)}, {'0' if p == 0 else vr(acc,4)}")
        if p < 8:
            a(e3_ld(p + 8, 0, S_WS, S_AOFF)); a(e3_ld(p + 8, 1, S_WS, S_AOFF))
            a(f"s_add_u32 {sr(S_AOFF)}, {sr(S_AOFF)}, {OSTEP()}")
        else:
            a(e3_ld(p - 8, 0, S_A, S_NAOFF)); a(e3_ld(p - 8, 1, S_A, S_NAOFF))
            a(f"s_add_u32 {sr(S_NAOFF)}, {sr(S_NAOFF)}, {OSTEP()}")
    a("L_e3red:")
    a("s_nop 7")
    for q in range(8): a(f"ds_write_b128 {vr(V3_RW)}, {vr(ACC3+4*q,4)} offset:{q*1024}")
    a("s_waitcnt lgkmcnt(0)")
    a("s_barrier")
    for hb in (1, 0):
        for src in range(4): a(f"ds_read_b128 {vr(ACC3+16*hb+4*src,4)}, {vr(V3_RR)} offset:{src*8192 + hb*4096}")
    a(f"""
    v_xor_b32 {vr(V3_RW)}, 32768, {vr(V3_RW)}
    v_xor_b32 {vr(V3_RR)}, 32768, {vr(V3_RR)}
    """)
    def sum4(b, d):
        a(f"""
        v_pk_add_f32 {vr(b,2)}, {vr(b,2)}, {vr(b+4,2)}
        v_pk_add_f32 {vr(b+2,2)}, {vr(b+2,2)}, {vr(b+6,2)}
        v_pk_add_f32 {vr(b+8,2)}, {vr(b+8,2)}, {vr(b+12,2)}
        v_pk_add_f32 {vr(b+10,2)}, {vr(b+10,2)}, {vr(b+14,2)}
        v_pk_add_f32 {vr(d,2)}, {vr(b,2)}, {vr(b+8,2)}
        v_pk_add_f32 {vr(d+2,2)}, {vr(b+2,2)}, {vr(b+10,2)}
        """)
    a("s_waitcnt lgkmcnt(4)")
    sum4(ACC3+16, ACC3+16)
    a(f"buffer_store_dwordx4 {vr(ACC3+16,4)}, {vr(V3_EX)}, {sr(S_WS,4)}, {sr(S_EXO)} offen")
    nofin = a.label("Le3n"); fin = a.label("Le3d")
    a(f"""
    s_cmp_lt_i32 {sr(S_PSEG)}, 0
    s_cbranch_scc1 {nofin}
    """)
    e3_finish(a, 17)
    a(f"{fin}:")
    a.cold3.append(f"""{nofin}:
    buffer_store_dword {vr(V_ONE)}, {vr(V_OOB)}, {sr(S_WS,4)}, 0 offen
    s_branch {fin}""")
    a("s_waitcnt lgkmcnt(0)")
    sum4(ACC3, OWN3)
    if CFG.get('tl'):
        a(f"s_lshl_b32 s68, {sr(S_SEG)}, 4")
        a("s_or_b32 s68, s68, 7")
        tl_store_nowait(a, "s68")
    a(f"""
    s_mov_b32 {sr(S_PSEG)}, {sr(S_SEG)}
    s_cmp_lt_i32 {sr(S_NSEG)}, 0
    s_cbranch_scc1 L_e3tail
    s_mov_b32 {sr(S_SEG)}, {sr(S_NSEG)}
    s_bitset0_b64 {sr(S_MSK,2)}, {sr(S_SEG)}
    s_cmp_eq_u32 {sr(S_RDY)}, 0
    s_cbranch_scc1 L_e3cold
    s_mov_b32 {sr(S_AOFF)}, {sr(S_NAOFF)}
    """)
    tl_stamp(a, 0)
    a("""
    s_branch L_e3top
    L_e3tail:
    """)
    e3_finaddr(a, S_PSEG)
    e3_xg(a)
    a(e3_part())
    e3_finish(a, 0)
    a("""
    s_waitcnt vmcnt(0)
    s_branch L_e3end
    """)
    if CFG.get('odata'): e3_data(a)
    for c in a.cold3: a(c)
    a("L_e3end:")

AQ, AK, AKM, AV, AVM = 32, 64, 96, 112, 144
A_ONE = 156
ASC = 160
APX, APA, APB = 180, 188, 196
def att_setup_regs(a):
    a(f"""
    v_and_b32 v1, 15, v0
    v_lshrrev_b32 v2, 4, v0
    v_lshlrev_b32 v4, 16, v2
    v_lshlrev_b32 v5, 4, v1
    v_add_u32 {vr(V_VD)}, v4, v5                  ; g*65536 + n*16
    v_bfe_u32 v4, v1, 2, 1
    v_lshlrev_b32 v4, 2, v4
    v_lshrrev_b32 v5, 3, v1
    v_lshlrev_b32 v5, 1, v5
    v_add_u32 v4, v4, v5
    v_and_b32 v5, 1, v1
    v_add_u32 v4, v4, v5
    v_lshlrev_b32 v4, 4, v4
    v_lshlrev_b32 v5, 7, v2
    v_add_u32 {vr(V_KMD)}, v4, v5
    v_mov_b32 {vr(V_NB)}, {fbits(-3.0e38):#x}
    v_lshlrev_b32 v4, 2, v2
    """)
    for r in range(4):
        a(f"""
        v_add_u32 v5, {r}, v4
        v_cmp_le_u32 {sr(S_MASK+2*r,2)}, v5, v1
        """)

def att_km_loads(so):
    l = [f"buffer_load_dwordx4 {vr(AKM+4*c,4)}, {vr(V_KMD)}, {sr(S_WS,4)}, {so} offen offset:{c*1024} sc1" for c in range(4)]
    l += [f"buffer_load_dword {vr(AVM+2*c+t)}, {vr(V_L4)}, {sr(S_WS,4)}, {so} offen offset:{c*1024+512+t*256} sc1" for c in range(4) for t in range(2)]
    return l

def xreduce(a, M, T, op):
    a(f"""
    v_mov_b32 {vr(T)}, {vr(M)}
    s_nop 1
    v_permlane32_swap_b32 {vr(T)}, {vr(M)}
    {op} {vr(M)}, {vr(M)}, {vr(T)}
    v_mov_b32 {vr(T)}, {vr(M)}
    s_nop 1
    v_permlane16_swap_b32 {vr(T)}, {vr(M)}
    {op} {vr(M)}, {vr(M)}, {vr(T)}
    """)

def att_task(a):
    sSM, sH, sQ, sK, sV, sKM, sO = [S_T0 + k for k in range(7)]
    a(f"""
    s_and_b32 {sr(sSM)}, {sr(S_NT)}, 7
    s_lshr_b32 {sr(sH)}, {sr(S_NT)}, 3
    s_lshl_b32 {sr(sH)}, {sr(sH)}, 2
    s_add_u32 {sr(sH)}, {sr(sH)}, {sr(S_W)}
    s_lshl_b32 s4, {sr(S_MT)}, 21
    s_lshl_b32 s5, {sr(sH)}, 16
    s_add_u32 s4, s4, s5
    s_lshl_b32 s5, {sr(sSM)}, 9
    s_add_u32 s4, s4, s5
    s_add_u32 {sr(sQ)}, s4, {OFF_QX}
    s_add_u32 {sr(sK)}, s4, {OFF_KX}
    s_add_u32 {sr(sO)}, s4, {OFF_OX}
    s_lshl_b32 s4, {sr(S_MT)}, 3
    s_add_u32 s4, s4, {sr(sSM)}                ; segment
    {f'''s_lshl_b32 s5, s4, 18
    s_lshl_b32 s6, {sr(sH)}, 13
    s_add_u32 s5, s5, s6
    s_add_u32 {sr(sO)}, s5, {OFF_OX}''' if CFG.get('oseg', 1) else ''}
    s_lshl_b32 s5, s4, 18
    s_lshl_b32 s6, {sr(sH)}, 11
    s_add_u32 s5, s5, s6
    s_add_u32 {sr(sV)}, s5, {OFF_VT}
    s_lshl_b32 s5, s4, 17
    s_lshl_b32 s6, {sr(sH)}, 12
    s_add_u32 s5, s5, s6
    s_add_u32 {sr(sKM)}, s5, {OFF_KM}
    """)
    for c in range(4):
        for t in range(2):
            a(f"buffer_load_dwordx4 {vr(AK+16*t+4*c,4)}, {vr(V_AD)}, {sr(S_WS,4)}, {sr(sK)} offen offset:{t*256} sc1")
            a(f"buffer_load_dwordx4 {vr(AQ+16*t+4*c,4)}, {vr(V_AD)}, {sr(S_WS,4)}, {sr(sQ)} offen offset:{t*256} sc1")
        if c < 3:
            a(f"s_add_u32 {sr(sK)}, {sr(sK)}, 16384")
            a(f"s_add_u32 {sr(sQ)}, {sr(sQ)}, 16384")
    for dt in range(8):
        a(f"buffer_load_dwordx4 {vr(AV+4*dt,4)}, {vr(V_VD)}, {sr(S_WS,4)}, {sr(sV)} offen offset:{dt*256} sc1")
    km = att_km_loads(sr(sKM))
    for ln in km: a(ln)
    a(f"v_mov_b32 {vr(AVM+8)}, 0")
    a(f"v_mov_b32 {vr(AVM+9)}, 0")
    for r in range(4): a(f"v_mov_b32 {vr(A_ONE+r)}, 0x3f803f80")
    for k in range(APA, APB + 8): a(f"v_mov_b32 {vr(k)}, 0")
    top = a.label("Latp"); ok = a.label("Lato")
    a(f"{top}:")
    a("s_waitcnt vmcnt(0)")
    t = 1
    regs = [AKM + k for k in range(16)] + [AVM + k for k in range(8)]
    a(f"v_max3_u32 {vr(t)}, {vr(regs[0])}, {vr(regs[1])}, {vr(regs[2])}")
    rr = regs[3:]
    while len(rr) >= 2:
        a(f"v_max3_u32 {vr(t)}, {vr(t)}, {vr(rr[0])}, {vr(rr[1])}"); rr = rr[2:]
    if rr: a(f"v_max_u32 {vr(t)}, {vr(t)}, {vr(rr[0])}")
    a(f"""
    v_cmp_eq_u32 vcc, -1, {vr(t)}
    s_cbranch_vccz {ok}
    s_sleep {CFG.get('atsleep', 16)}
    s_sub_u32 {sr(S_GBUD)}, {sr(S_GBUD)}, 1
    s_cbranch_scc1 L_abort
    """)
    for ln in km: a(ln)
    a(f"s_branch {top}")
    a(f"{ok}:")
    Dm = [ASC, ASC + 8]; D0 = [ASC + 4, ASC + 12]; D1 = ASC + 16
    def sc(d, kreg, qt, c):
        a(f"v_mfma_f32_16x16x32_bf16 {vr(d,4)}, {vr(kreg,4)}, {vr(AQ+16*qt+4*c,4)}, {'0' if c == 0 else vr(d,4)}")
    for c in range(4):
        sc(Dm[0], AKM+4*c, 0, c); sc(D0[0], AK+4*c, 0, c)
        sc(Dm[1], AKM+4*c, 1, c); sc(D0[1], AK+4*c, 1, c); sc(D1, AK+16+4*c, 1, c)
    a("s_nop 7")
    csc = fbits(128**-0.5 * 1.4426950408889634)
    a(f"s_mov_b32 s4, {csc:#x}")
    M, T = 2, 3
    for qt in range(2):
        dm = Dm[qt]; d0 = D0[qt]
        masked = d0 if qt == 0 else D1
        for r in range(4):
            a(f"v_cndmask_b32 {vr(masked+r)}, {vr(V_NB)}, {vr(masked+r)}, {sr(S_MASK+2*r,2)}")
        a(f"v_max3_f32 {vr(M)}, {vr(dm)}, {vr(dm+1)}, {vr(d0)}")
        a(f"v_max3_f32 {vr(M)}, {vr(M)}, {vr(d0+1)}, {vr(d0+2)}")
        a(f"v_max_f32 {vr(M)}, {vr(M)}, {vr(d0+3)}")
        if qt == 1:
            a(f"v_max3_f32 {vr(M)}, {vr(M)}, {vr(D1)}, {vr(D1+1)}")
            a(f"v_max3_f32 {vr(M)}, {vr(M)}, {vr(D1+2)}, {vr(D1+3)}")
        xreduce(a, M, T, "v_max_f32")
        a(f"v_mul_f32 {vr(M)}, s4, {vr(M)}")
        vals = [dm, dm+1] + [d0+r for r in range(4)] + ([D1+r for r in range(4)] if qt == 1 else [])
        for v in vals: a(f"v_fma_f32 {vr(v)}, {vr(v)}, s4, -{vr(M)}")
        for v in vals: a(f"v_exp_f32 {vr(v)}, {vr(v)}")
        px = APX + 4*qt
        a(f"v_cvt_pk_bf16_f32 {vr(APA+4*qt)}, {vr(dm)}, {vr(dm+1)}")
        a(f"v_cvt_pk_bf16_f32 {vr(px)}, {vr(d0)}, {vr(d0+1)}")
        a(f"v_cvt_pk_bf16_f32 {vr(px+1)}, {vr(d0+2)}, {vr(d0+3)}")
        if qt == 1:
            a(f"v_cvt_pk_bf16_f32 {vr(px+2)}, {vr(D1)}, {vr(D1+1)}")
            a(f"v_cvt_pk_bf16_f32 {vr(px+3)}, {vr(D1+2)}, {vr(D1+3)}")
        else:
            a(f"v_mov_b32 {vr(px+2)}, 0")
            a(f"v_mov_b32 {vr(px+3)}, 0")
        a(f"v_mov_b32 {vr(APB+4*qt+1)}, {vr(APA+4*qt)}")
    a("s_nop 1")
    for qt in range(2):
        a(f"v_mfma_f32_16x16x32_bf16 {ar(64+4*qt,4)}, {vr(A_ONE,4)}, {vr(APX+4*qt,4)}, 0")
        for dt in range(8):
            a(f"v_mfma_f32_16x16x32_bf16 {ar(32*qt+4*dt,4)}, {vr(AV+4*dt,4)}, {vr(APX+4*qt,4)}, 0")
    for qt in range(2):
        a(f"v_mfma_f32_16x16x32_bf16 {ar(64+4*qt,4)}, {vr(A_ONE,4)}, {vr(APA+4*qt,4)}, {ar(64+4*qt,4)}")
        for dt in range(8):
            pm = (APA if dt % 2 == 0 else APB) + 4*qt
            a(f"v_mfma_f32_16x16x32_bf16 {ar(32*qt+4*dt,4)}, {vr(AVM+(dt & ~1),4)}, {vr(pm,4)}, {ar(32*qt+4*dt,4)}")
    a("s_nop 7")
    for qt in range(2):
        L = 2 + qt
        a(f"v_accvgpr_read_b32 {vr(L)}, {ar(64+4*qt)}")
        a("s_nop 0")
        a(f"v_rcp_f32 {vr(L)}, {vr(L)}")
    n = 0
    for qt in range(2):
        L = 2 + qt
        for c in range(4):
            b = 32 + 12*(n % 4); n += 1
            for k in range(8): a(f"v_accvgpr_read_b32 {vr(b+k)}, {ar(32*qt+8*c+k)}")
            for k in range(8): a(f"v_mul_f32 {vr(b+k)}, {vr(b+k)}, {vr(L)}")
            for k in range(4): a(f"v_cvt_pk_bf16_f32 {vr(b+8+k)}, {vr(b+2*k)}, {vr(b+2*k+1)}")
            a(f"s_add_u32 s5, {sr(sO)}, {c*OSTEP()}")
            a(f"buffer_store_dwordx4 {vr(b+8,4)}, {vr(V_OA())}, {sr(S_WS,4)}, s5 offen offset:{qt*256} sc1")

def ln_stats(a):
    a(f"""
    v_cvt_pk_bf16_f32 v5, v5, v5
    v_cvt_pk_bf16_f32 v2, v2, v2
    v_lshlrev_b32 v5, 16, v5
    v_lshlrev_b32 v2, 16, v2
    v_add_f32 v2, {fbits(1e-5):#x}, v2
    v_cvt_pk_bf16_f32 v2, v2, v2
    v_lshlrev_b32 v2, 16, v2
    v_sqrt_f32 v2, v2
    s_nop 0
    v_cvt_pk_bf16_f32 v2, v2, v2
    v_lshlrev_b32 v2, 16, v2
    v_rcp_f32 v2, v2
    """)

def ln_mini(a, s_row):
    MS = LSC + 1024
    a(f"""
    v_lshrrev_b32 v78, 3, v76
    v_lshlrev_b32 v78, 2, v78
    v_and_b32 v79, 3, v76
    v_add_u32 v78, v78, v79
    v_lshlrev_b32 v78, 12, v78
    v_bfe_u32 v79, v76, 2, 1
    v_lshlrev_b32 v79, 3, v79
    v_add_u32 v80, v78, v79            ; chunk (4 (k >> 5) + ((k >> 2) & 3)) * 4096 + ((k >> 4) & 1) * 8
    s_lshl_b32 s5, {sr(S_W)}, 2
    s_add_u32 s5, s5, {MS}
    v_mov_b32 v78, s5
    v_mov_b32 v81, {MS}
    s_waitcnt vmcnt(16)
    v_lshlrev_b32 v66, 16, v64
    v_and_b32 v67, 0xffff0000, v64
    v_lshlrev_b32 v68, 16, v65
    v_and_b32 v69, 0xffff0000, v65
    """)
    def total(b, off):
        a(f"""
        v_add_f32 v2, {vr(b)}, {vr(b+1)}
        v_add_f32 v3, {vr(b+2)}, {vr(b+3)}
        v_add_f32 v2, v2, v3
        """)
        for r in (8, 4, 2, 1):
            a("s_nop 1")
            a(f"v_add_f32_dpp v2, v2, v2 row_ror:{r} row_mask:0xf bank_mask:0xf")
        xreduce(a, 2, 3, "v_add_f32")
        a(f"""
        ds_write_b32 v78, v2 offset:{off}
        s_waitcnt lgkmcnt(0)
        s_barrier
        ds_read_b128 v[72:75], v81 offset:{off}
        s_waitcnt lgkmcnt(0)
        v_add_f32 v72, v72, v73
        v_add_f32 v74, v74, v75
        v_add_f32 v2, v72, v74
        v_mul_f32 v2, {fbits(1/1024):#x}, v2
        """)
    total(66, 0)
    a("v_mov_b32 v5, v2")
    for k in range(4): a(f"v_sub_f32 {vr(82+k)}, {vr(66+k)}, v5")
    for k in range(4): a(f"v_mul_f32 {vr(82+k)}, {vr(82+k)}, {vr(82+k)}")
    total(82, 16)
    ln_stats(a)
    for k in range(4): a(f"v_sub_f32 {vr(66+k)}, {vr(66+k)}, v5")
    a("""
    v_cvt_pk_bf16_f32 v64, v66, v67
    v_cvt_pk_bf16_f32 v65, v68, v69
    v_lshlrev_b32 v66, 16, v64
    v_and_b32 v67, 0xffff0000, v64
    v_lshlrev_b32 v68, 16, v65
    v_and_b32 v69, 0xffff0000, v65
    """)
    for k in range(4): a(f"v_mul_f32 {vr(66+k)}, {vr(66+k)}, v2")
    a(f"""
    v_cvt_pk_bf16_f32 v64, v66, v67
    v_cvt_pk_bf16_f32 v65, v68, v69
    s_lshl_b32 s5, {sr(s_row)}, 4
    s_add_u32 s5, s5, {OFF_XN}
    buffer_store_dwordx2 v[64:65], v80, {sr(S_WS,4)}, s5 offen sc1
    """)

def ln_task(a, s_rank, s_row=None):
    load_srd(a, S_OUT, KA_X, 4*MB)
    F = 64
    a(f"""
    v_and_b32 v1, 15, v0
    v_lshrrev_b32 v2, 4, v0
    v_lshlrev_b32 v4, 11, v1
    v_lshlrev_b32 v5, 3, v2
    v_add_u32 v4, v4, v5
    s_lshl_b32 s4, {sr(s_rank)}, 15
    s_lshl_b32 s5, {sr(S_W)}, 9
    s_add_u32 s4, s4, s5
    s_waitcnt lgkmcnt(0)
    """)
    mini = CFG.get('lnmini')
    if mini:
        a(f"""
        s_lshl_b32 s5, {sr(S_W)}, 6
        v_add_u32 v76, s5, v0              ; thread
        v_lshlrev_b32 v77, 3, v76
        s_lshl_b32 s6, {sr(s_row)}, 11
        buffer_load_dwordx2 v[64:65], v77, {sr(S_OUT,4)}, s6 offen
        """)
    for p in range(8):
        a(f"buffer_load_dwordx2 {vr(32+4*p,2)}, v4, {sr(S_OUT,4)}, s4 offen offset:{p*64}")
        a(f"buffer_load_dwordx2 {vr(32+4*p+2,2)}, v4, {sr(S_OUT,4)}, s4 offen offset:{p*64+32}")
    a(f"""
    s_lshl_b32 s5, {sr(S_W)}, 6
    v_lshlrev_b32 v5, 2, v1
    v_add_u32 v6, s5, v5
    v_add_u32 v6, {LSC}, v6
    v_add_u32 v7, {LSC}, v5
    """)
    tl_fine(a, 2)
    nw = CFG.get('lnw', 4) if CFG.get('lnfirst') == 2 else 0
    if mini: ln_mini(a, s_row)
    e2_wpro(a, 0, nw)
    skip = a.label("Lnm")
    if mini:
        a(f"""
        s_waitcnt vmcnt({4*nw})
        s_barrier
        buffer_atomic_add {vr(V_ONE)}, {vr(V_SIG)}, {sr(S_DBG,4)}, 0 offen offset:{C_LN0A*4} sc1
        s_cmp_lt_u32 {sr(s_rank)}, 8
        s_cbranch_scc1 {skip}
        """)
    nv = CFG.get('lnw2', 0) if CFG.get('lnfirst') == 2 else 0
    groups = []
    if nv:
        for j in range(4): a(f"v_mov_b32 {vr(232+j)}, {vr(V2_BD+j)}")
        for st in range(nw, nw + nv): groups += e2_wdma(st, 232)
    if not mini: a(f"s_waitcnt vmcnt({4*nw})")
    tl_fine(a, 3)
    a0 = a; cnt = [0]; every = CFG.get('lnwe', 24)
    def a(txt):
        for ln in txt.split("\n"):
            a0(ln)
            if ln.strip().startswith("v_") and "permlane" not in ln:
                cnt[0] += 1
                if groups and cnt[0] % every == 0:
                    for g in groups.pop(0): a0(g)
    for d in range(32):
        a(f"v_lshlrev_b32 {vr(F+2*d)}, 16, {vr(32+d)}")
        a(f"v_and_b32 {vr(F+2*d+1)}, 0xffff0000, {vr(32+d)}")
    def total(src, region):
        for k in range(16): a(f"v_pk_add_f32 {vr(128+2*k,2)}, {vr(src+4*k,2)}, {vr(src+4*k+2,2)}")
        n = 16
        while n > 1:
            n //= 2
            for k in range(n): a(f"v_pk_add_f32 {vr(128+2*k,2)}, {vr(128+2*k,2)}, {vr(128+2*(k+n),2)}")
        a("v_add_f32 v2, v128, v129")
        xreduce(a, 2, 3, "v_add_f32")
        a(f"""
        ds_write_b32 v6, v2 offset:{region}
        s_waitcnt lgkmcnt(0)
        s_barrier
        ds_read_b32 v128, v7 offset:{region}
        ds_read_b32 v129, v7 offset:{region+64}
        ds_read_b32 v130, v7 offset:{region+128}
        ds_read_b32 v131, v7 offset:{region+192}
        s_waitcnt lgkmcnt(0)
        v_add_f32 v128, v128, v129
        v_add_f32 v130, v130, v131
        v_add_f32 v2, v128, v130
        v_mul_f32 v2, {fbits(1/1024):#x}, v2
        """)
    total(F, 0)
    a("v_mov_b32 v5, v2")
    D = 160
    for k in range(64): a(f"v_sub_f32 {vr(D+k)}, {vr(F+k)}, v5")
    for k in range(0, 64, 2): a(f"v_pk_mul_f32 {vr(D+k,2)}, {vr(D+k,2)}, {vr(D+k,2)}")
    total(D, 256)
    ln_stats(a)
    for k in range(64): a(f"v_sub_f32 {vr(F+k)}, {vr(F+k)}, v5")
    for d in range(32): a(f"v_cvt_pk_bf16_f32 {vr(32+d)}, {vr(F+2*d)}, {vr(F+2*d+1)}")
    for d in range(32):
        a(f"v_lshlrev_b32 {vr(F+2*d)}, 16, {vr(32+d)}")
        a(f"v_and_b32 {vr(F+2*d+1)}, 0xffff0000, {vr(32+d)}")
    for k in range(64): a(f"v_mul_f32 {vr(F+k)}, {vr(F+k)}, v2")
    for d in range(32): a(f"v_cvt_pk_bf16_f32 {vr(32+d)}, {vr(F+2*d)}, {vr(F+2*d+1)}")
    for g0 in groups:
        for g in g0: a0(g)
    a(f"""
    s_lshr_b32 s4, {sr(s_rank)}, 4
    s_lshl_b32 s4, s4, 19
    s_and_b32 s5, {sr(s_rank)}, 15
    s_lshl_b32 s5, s5, 8
    s_add_u32 s4, s4, s5
    s_lshl_b32 s5, {sr(S_W)}, 17
    s_add_u32 s4, s4, s5
    s_add_u32 s4, s4, {OFF_XN}
    """)
    for p in range(8):
        a(f"buffer_store_dwordx4 {vr(32+4*p,4)}, {vr(V_AD)}, {sr(S_WS,4)}, s4 offen sc1")
        if p < 7: a("s_add_u32 s4, s4, 16384")
    if mini:
        a0(f"""
        {skip}:
        v_mov_b32 v76, {C_LN0A*4}
        buffer_load_dword v79, v76, {sr(S_DBG,4)}, 0 offen sc1
        """)

S_PID, S_PCNT = 92, 93
def tl_stamp(a, i):
    if CFG.get('tl'):
        a(f"s_memrealtime s[{70+2*i}:{71+2*i}]")
        a("s_waitcnt lgkmcnt(0)")
def tl_fine(a, k):
    if CFG.get('tl') == 3:
        a("s_memrealtime s[76:77]")
        a("s_waitcnt lgkmcnt(0)")
        a(f"v_writelane_b32 v248, s76, {k}")
def tl_fine2(a, k):
    if CFG.get('tl') == 3:
        a("s_memrealtime s[76:77]")
        a(f"s_lshl_b32 s78, {sr(S_KIND)}, 4")
        a(f"s_add_u32 s78, s78, {8 + k}")
        a("s_mov_b32 s79, m0")
        a("s_mov_b32 m0, s78")
        a("s_waitcnt lgkmcnt(0)")
        a("v_writelane_b32 v248, s76, m0")
        a("s_mov_b32 m0, s79")
def tl_task_start(a):
    if CFG.get('tl'):
        tl_stamp(a, 1)
def tl_store(a, tk):
    if CFG.get('tl'):
        lab = a.label("Ltl")
        tl_stamp(a, 2)
        if not isinstance(tk, str):
            a(f"s_mov_b32 s68, {tk}"); tk = "s68"
        a(f"""
        s_cmp_lg_u32 {sr(S_W)}, 0
        s_cbranch_scc1 {lab}
        v_mov_b32 v4, 0
        v_writelane_b32 v4, {tk}, 0
        v_writelane_b32 v4, s70, 1
        v_writelane_b32 v4, s72, 2
        v_writelane_b32 v4, s74, 3
        s_lshl_b32 s4, {sr(S_PID)}, 11
        s_lshl_b32 s5, {sr(S_PCNT)}, 4
        s_add_u32 s4, s4, s5
        s_add_u32 s4, s4, {OFF_DBG}
        v_mov_b32 v5, 0x80000000
        v_cmp_gt_u32 vcc, 4, v0
        s_nop 1
        v_cndmask_b32 v5, v5, {vr(V_L4)}, vcc
        buffer_store_dword v4, v5, {sr(S_WS,4)}, s4 offen
        s_waitcnt vmcnt(0)
        {lab}:
        s_add_u32 {sr(S_PCNT)}, {sr(S_PCNT)}, 1
        s_min_u32 {sr(S_PCNT)}, {sr(S_PCNT)}, 127
        s_mov_b32 s70, s74
        """)

def wait_word(a, srd, s_off, target, sleep=8):
    top = a.label("Lww"); ok = a.label("Lwwo")
    a(f"""
    s_cmp_lg_u32 {sr(S_W)}, 0
    s_cbranch_scc1 {ok}
    v_mov_b32 v1, {s_off}
    {top}:
    buffer_load_dword v2, v1, {sr(srd,4)}, 0 offen sc1
    s_waitcnt vmcnt(0)
    v_cmp_le_u32 vcc, {target}, v2
    s_cbranch_vccnz {ok}
    s_sleep {sleep}
    s_sub_u32 {sr(S_GBUD)}, {sr(S_GBUD)}, 1
    s_cbranch_scc0 {top}
    s_branch L_abort
    {ok}:
    s_barrier
    """)

def wait_cnt(a, base, s_idx, target, scale=1, sleep=8):
    if s_idx is None:
        wait_word(a, S_WS, OFF_CNT + base*256, target, sleep)
    else:
        a(f"s_mul_i32 s4, {sr(s_idx)}, {256*scale}")
        a(f"s_add_u32 s4, s4, {OFF_CNT + base*256}")
        wait_word(a, S_WS, "s4", target, sleep)

def drain_signal(a):
    a("s_waitcnt vmcnt(0) lgkmcnt(0)")
    a("s_barrier")
    a(signal_op(sr(S_DONE)))

G_END, G_KV, G_GU, G_Q, G_DN = 0, 1, 2, 3, 4
K_K, K_V, K_Q, K_GU, K_DN = 1, 2, 3, 4, 5
SCHED = [
    [(0, G_GU, 8), (8, G_KV, 8), (16, G_KV, -8), (24, G_GU, -24)],
    [(0, G_GU, 32), (8, G_GU, 32), (16, G_GU, 0), (24, G_GU, 0)],
    [(0, G_Q, 0), (8, G_KV, 24), (16, G_KV, 8), (24, G_DN, -24), (28, G_Q, 0)],
    [(0, G_Q, 8), (8, G_Q, 8), (16, G_GU, 32), (24, G_Q, 2), (26, G_END, 0), (28, G_DN, -24), (30, G_Q, -6)],
    [(0, G_END, 0), (8, G_KV, 40), (16, G_KV, 24), (24, G_END, 0), (30, G_DN, -24)],
    [(0, G_END, 0), (16, G_KV, 40), (24, G_END, 0)],
    [(0, G_END, 0)],
]
def sched_setup(a):
    sched = CFG.get('sched', SCHED)
    for k in range(8):
        rows = sched[k] if k < len(sched) else [(0, G_END, 0)]
        d = S_SCH + k
        for n, (t0, g, off) in enumerate(rows):
            val = f"s_add_u32 s4, {sr(S_T)}, {(g << 8) + off}" if g != G_END else "s_mov_b32 s4, 0"
            a(val)
            if n == 0: a(f"s_mov_b32 {sr(d)}, s4")
            else:
                a(f"s_cmp_ge_u32 {sr(S_T)}, {t0}")
                a(f"s_cselect_b32 {sr(d)}, s4, {sr(d)}")

def sched_pop(a):
    for k in range(7): a(f"s_mov_b32 {sr(S_SCH+k)}, {sr(S_SCH+k+1)}")
    a(f"s_mov_b32 {sr(S_SCH+7)}, 0")

def e1_decode(a, dn):
    lq = a.label("Ldq"); lg = a.label("Ldg"); lv = a.label("Ldv"); lb = a.label("Ldb"); le = a.label("Lde"); ld = a.label("Ldd")
    a(f"""
    s_lshr_b32 s6, {sr(S_SCH)}, 8             ; group
    s_and_b32 s7, {sr(S_SCH)}, 0xff           ; index
    s_mov_b32 {sr(S_A+2)}, {WS_BYTES}
    s_mov_b32 {sr(S_NCNT)}, 7
    s_cmp_eq_u32 s6, {G_GU}
    s_cbranch_scc1 {lg}
    """)
    if dn:
        a(f"""
        s_cmp_eq_u32 s6, {G_DN}
        s_cbranch_scc1 {ld}
        """)
    a(f"""
    s_cmp_eq_u32 s6, {G_Q}
    s_cbranch_scc1 {lq}
    s_lshr_b32 {sr(S_T0)}, s7, 3
    s_and_b32 {sr(S_T0+1)}, s7, 3
    s_lshl_b32 s4, {sr(S_J)}, 2
    s_add_u32 {sr(S_T0+1)}, {sr(S_T0+1)}, s4      ; nt
    s_add_u32 s4, {sr(S_T0)}, {CN_KV}
    s_lshl_b32 s4, s4, 8
    s_add_u32 {sr(S_NDONE)}, s4, {OFF_CNT}
    s_bitcmp1_b32 s7, 2
    s_cbranch_scc1 {lv}
    s_load_dwordx2 {sr(S_B,2)}, s[0:1], {KA_WK}
    s_mov_b32 {sr(S_NKIND)}, {K_K}
    s_lshl_b32 s4, {sr(S_T0)}, 21
    s_lshl_b32 s5, {sr(S_T0+1)}, 17
    s_add_u32 s4, s4, s5
    s_add_u32 {sr(S_NCOFF)}, s4, {OFF_KX}
    s_branch {lb}
    {lv}:
    s_load_dwordx2 {sr(S_B,2)}, s[0:1], {KA_WV}
    s_mov_b32 {sr(S_NKIND)}, {K_V}
    s_lshl_b32 s4, {sr(S_T0)}, 21
    s_lshl_b32 s5, {sr(S_T0+1)}, 12
    s_add_u32 s4, s4, s5
    s_add_u32 {sr(S_NCOFF)}, s4, {OFF_VT}
    s_branch {lb}
    {lq}:
    s_lshr_b32 {sr(S_T0)}, s7, 2
    s_and_b32 {sr(S_T0+1)}, s7, 3
    s_lshl_b32 s4, {sr(S_J)}, 2
    s_add_u32 {sr(S_T0+1)}, {sr(S_T0+1)}, s4
    s_add_u32 s4, {sr(S_T0)}, {CN_Q}
    s_lshl_b32 s4, s4, 8
    s_add_u32 {sr(S_NDONE)}, s4, {OFF_CNT}
    s_load_dwordx2 {sr(S_B,2)}, s[0:1], {KA_WQ}
    s_mov_b32 {sr(S_NKIND)}, {K_Q}
    s_lshl_b32 s4, {sr(S_T0)}, 21
    s_lshl_b32 s5, {sr(S_T0+1)}, 17
    s_add_u32 s4, s4, s5
    s_add_u32 {sr(S_NCOFF)}, s4, {OFF_QX}
    {lb}:
    s_mov_b32 {sr(S_B+2)}, {8*MB}
    s_mov_b32 {sr(S_T0+2)}, 8192
    s_lshl_b32 {sr(S_BOFF)}, {sr(S_T0+1)}, 9
    s_and_b32 s4, {sr(S_W)}, 1
    s_lshl_b32 s4, s4, 8
    s_add_u32 {sr(S_BOFF)}, {sr(S_BOFF)}, s4
    s_lshl_b32 {sr(S_AOFF)}, {sr(S_T0)}, 19
    s_add_u32 {sr(S_AOFF)}, {sr(S_AOFF)}, {OFF_XN}
    s_branch {le}
    """)
    if dn:
        a(f"""
        {ld}:
        s_load_dwordx2 {sr(S_B,2)}, s[0:1], {KA_WD}
        s_mov_b32 {sr(S_B+2)}, {3584*2048}
        s_mov_b32 {sr(S_NKIND)}, {K_DN}
        s_mov_b32 {sr(S_NCNT)}, 27
        s_add_u32 s4, s7, {CN_DN}
        s_lshl_b32 s4, s4, 8
        s_add_u32 {sr(S_NDONE)}, s4, {OFF_CNT}
        s_mov_b32 {sr(S_T0+2)}, 2048
        s_lshl_b32 {sr(S_BOFF)}, {sr(S_J)}, 9
        s_and_b32 s4, {sr(S_W)}, 1
        s_lshl_b32 s4, s4, 8
        s_add_u32 {sr(S_BOFF)}, {sr(S_BOFF)}, s4
        s_mul_i32 {sr(S_AOFF)}, s7, {448*4096}
        s_add_u32 {sr(S_AOFF)}, {sr(S_AOFF)}, {OFF_H}
        s_lshl_b32 s4, s7, 19
        s_lshl_b32 s5, {sr(S_J)}, 17
        s_add_u32 s4, s4, s5
        s_add_u32 {sr(S_NCOFF)}, s4, {OFF_GS}
        s_branch {le}
        """)
    a(f"""
    {lg}:
    s_mul_i32 s5, s7, 9363
    s_lshr_b32 {sr(S_T0)}, s5, 16
    s_mul_i32 s5, {sr(S_T0)}, 7
    s_sub_u32 s4, s7, s5
    s_mul_i32 {sr(S_T0+1)}, {sr(S_J)}, 7
    s_add_u32 {sr(S_T0+1)}, {sr(S_T0+1)}, s4   ; nt
    s_add_u32 s4, {sr(S_T0)}, {CN_GU}
    s_lshl_b32 s4, s4, 8
    s_add_u32 {sr(S_NDONE)}, s4, {OFF_CNT}
    s_and_b32 s4, {sr(S_W)}, 1
    s_lshl_b32 s4, s4, 3
    s_add_u32 s4, s4, {KA_WG}
    s_load_dwordx2 {sr(S_B,2)}, s[0:1], s4
    s_mov_b32 {sr(S_B+2)}, {1024*7168}
    s_mov_b32 {sr(S_NKIND)}, {K_GU}
    s_mov_b32 {sr(S_T0+2)}, 7168
    s_lshl_b32 {sr(S_BOFF)}, {sr(S_T0+1)}, 8
    s_mul_i32 s4, {sr(S_T0)}, {448*4096}
    s_lshl_b32 s5, {sr(S_T0+1)}, 16
    s_add_u32 s4, s4, s5
    s_add_u32 {sr(S_NCOFF)}, s4, {OFF_H}
    s_lshl_b32 {sr(S_AOFF)}, {sr(S_T0)}, 19
    s_add_u32 {sr(S_AOFF)}, {sr(S_AOFF)}, {OFF_XN}
    {le}:
    s_mov_b32 {sr(S_B+3)}, 0x20000
    """)
    e1_bvoff(a, S_T0+2)

def e1_next(a, back):
    nul = a.label("Lnul")
    a(f"""
    s_lshr_b32 s6, {sr(S_SCH)}, 8
    s_cmp_eq_u32 s6, {G_END}
    s_cbranch_scc1 {nul}
    s_cmp_eq_u32 s6, {G_DN}
    s_cbranch_scc1 {nul}
    """)
    e1_decode(a, False)
    sched_pop(a)
    a(f"s_branch {back}")
    a(f"""
    {nul}:
    s_mov_b32 {sr(S_NKIND)}, 0
    s_mov_b32 {sr(S_A+2)}, 0
    s_mov_b32 {sr(S_B+2)}, 0
    s_branch {back}
    """)

def promote(a):
    a(f"""
    s_mov_b32 {sr(S_COFF)}, {sr(S_NCOFF)}
    s_mov_b32 {sr(S_DONE)}, {sr(S_NDONE)}
    s_mov_b32 {sr(S_KIND)}, {sr(S_NKIND)}
    s_mov_b32 {sr(S_CNT)}, {sr(S_NCNT)}
    s_cmp_eq_u32 {sr(S_KIND)}, {K_V}
    s_cbranch_scc1 L_f4S
    s_branch L_f4N
    """)

def g_setup(a):
    a(f"""
    v_lshlrev_b32 {vr(V_L4)}, 2, v0
    v_mov_b32 {vr(V_ONE)}, 1
    v_mov_b32 {vr(V_OOB)}, 0x80000000
    s_cmp_eq_u32 {sr(S_W)}, 0
    s_cselect_b32 s5, 0, 0x80000000
    v_mov_b32 v1, s5
    v_mov_b32 v2, 0x80000000
    v_cmp_eq_u32 vcc, 0, v0
    s_nop 1
    v_cndmask_b32 {vr(V_SIG)}, v2, v1, vcc
    s_mov_b32 {sr(S_GBUD)}, {CFG.get('budget', 400000)}
    """)
    e1_setup_regs(a)
    att_setup_regs(a)

def g_start(a, s_rank):
    lab = a.label("Lini"); l2 = a.label("Lln0")
    e2_setup_regs(a)
    a(f"s_mov_b32 {sr(S_KIND)}, 0")
    tl_fine(a, 0)
    kv0_setup(a)
    tl_fine(a, 1)
    if not CFG.get('lnfirst'): e2_wpro(a)
    a(f"""
    s_cmp_lg_u32 {sr(s_rank)}, 0
    s_cbranch_scc1 {lab}
    v_lshlrev_b32 v1, 8, v0
    v_mov_b32 v2, 0
    s_mov_b32 s4, {OFF_CNT}
    buffer_store_dword v2, v1, {sr(S_WS,4)}, s4 offen sc1
    s_add_u32 s4, s4, {64*256}
    buffer_store_dword v2, v1, {sr(S_WS,4)}, s4 offen sc1
    s_add_u32 s4, s4, {64*256}
    buffer_store_dword v2, v1, {sr(S_WS,4)}, s4 offen sc1
    {lab}:
    s_lshl_b32 {sr(S_PDONE)}, {sr(S_T)}, 2
    s_add_u32 {sr(S_PDONE)}, {sr(S_PDONE)}, {sr(S_J)}
    """)
    ln_task(a, S_PDONE, s_rank)
    tl_fine(a, 4)
    e2_setup_regs(a)
    if CFG.get('lnfirst') == 1: e2_wpro(a)
    sched_setup(a)
    a(f"s_waitcnt vmcnt({4*E2N() if CFG.get('lnfirst') == 1 else 0}) lgkmcnt(0)")
    tl_fine(a, 5)
    a("s_barrier")
    tl_fine(a, 6)
    a(f"buffer_atomic_add {vr(V_ONE)}, {vr(V_SIG)}, {sr(S_DBG,4)}, 0 offen offset:{C_LN*4} sc1")
    a(f"""
    s_cmp_ge_u32 {sr(S_PDONE)}, 16
    s_cbranch_scc1 {l2}
    buffer_atomic_add {vr(V_ONE)}, {vr(V_SIG)}, {sr(S_DBG,4)}, 0 offen offset:{C_LN0*4} sc1
    s_cmp_ge_u32 {sr(S_PDONE)}, {0 if CFG.get('lnmini') else 8}
    s_cbranch_scc1 {l2}
    buffer_atomic_add {vr(V_ONE)}, {vr(V_SIG)}, {sr(S_DBG,4)}, 0 offen offset:{C_LN0A*4} sc1
    {l2}:
    """)
    if CFG.get('lnmini'):
        top = a.label("Lmn"); ok = a.label("Lmo")
        if CFG.get('tl'):
            a("s_mov_b32 s72, s70")
            tl_store(a, 0xffff)
        a(f"""
        {top}:
        v_cmp_le_u32 vcc, 128, v79
        s_cbranch_vccnz {ok}
        s_sub_u32 {sr(S_GBUD)}, {sr(S_GBUD)}, 1
        s_cbranch_scc1 L_abort
        s_sleep {CFG.get('ln0sleep', 2)}
        buffer_load_dword v79, v76, {sr(S_DBG,4)}, 0 offen sc1
        s_waitcnt vmcnt(0)
        s_branch {top}
        {ok}:
        """)
        e2_wpro(a, CFG.get('lnw', 4))
    if CFG.get('lnfirst') == 2 and not CFG.get('lnmini') and not CFG.get('wmid'): e2_wpro(a, CFG.get('lnw', 4) + CFG.get('lnw2', 0))
    if CFG.get('tl') and not CFG.get('lnmini'):
        a("s_mov_b32 s72, s70")
        tl_store(a, 0xffff)
    if CFG.get('lnmini'): pass
    elif CFG.get('ln0a', 1): wait_word(a, S_DBG, C_LN0A*4, 8, CFG.get('ln0sleep', 2))
    else: wait_word(a, S_DBG, C_LN0*4, 16, CFG.get('ln0sleep', 8))
    a(f"s_mov_b32 {sr(S_PDONE)}, {OFF_CNT + CN_SPARE*256}")
    tl_fine(a, 7)
    kv0_loop(a)
    if CFG.get('tl') == 3:
        a(f"""
        v_lshlrev_b32 v4, 2, v0
        s_lshl_b32 s4, {sr(S_PID)}, 8
        s_lshl_b32 s4, s4, 2
        s_lshl_b32 s5, {sr(S_W)}, 8
        s_add_u32 s4, s4, s5
        s_add_u32 s4, s4, {OFF_DBG + 768*1024}
        v_mov_b32 v5, 0x80000000
        v_cmp_gt_u32 vcc, 64, v0
        s_nop 1
        v_cndmask_b32 v4, v5, v4, vcc
        buffer_store_dword v248, v4, {sr(S_WS,4)}, s4 offen
        """)
    wait_word(a, S_DBG, C_LN*4, 128)

def e1_fast(a):
    a("L_e1fast:")
    a(f"s_mov_b32 {sr(S_PDONE)}, {sr(S_DONE)}")
    e1_decode(a, True)
    sched_pop(a)
    a(f"s_mov_b32 {sr(S_DONE)}, {OFF_CNT + CN_SPARE*256}")
    a("s_waitcnt lgkmcnt(0)")
    for ring in range(4):
        for g in dma_ops(ring, V_BW):
            for ln in g: a(ln)
    a("s_waitcnt vmcnt(32)")
    a("s_barrier")
    a(signal_op(sr(S_PDONE)))
    a("s_waitcnt vmcnt(25)")
    a("s_barrier")
    for ln in frag_reads16(0, 0): a(ln)
    pad_ops(a, NEP - 1)
    a(f"s_mov_b32 {sr(S_PDONE)}, {OFF_CNT + CN_SPARE*256}")
    promote(a)

def g_main(a):
    if CFG.get('e1early'):
        a("s_branch L_e1start")
        e1_fast(a)
    a("L_e1start:")
    lab = a.label("Lnd")
    a(f"""
    s_lshr_b32 s6, {sr(S_SCH)}, 8
    s_cmp_eq_u32 s6, {G_END}
    s_cbranch_scc1 L_p2
    s_cmp_eq_u32 s6, {G_DN}
    s_cbranch_scc0 {lab}
    s_and_b32 {sr(S_MT)}, {sr(S_SCH)}, 0xff
    """)
    wait_cnt(a, CN_GU, S_MT, 28)
    a(f"{lab}:")
    e1_decode(a, True)
    sched_pop(a)
    a(f"s_mov_b32 {sr(S_DONE)}, {OFF_CNT + CN_SPARE*256}")
    a("s_waitcnt lgkmcnt(0)")
    e1_prologue(a)
    a(f"s_mov_b32 {sr(S_PDONE)}, {OFF_CNT + CN_SPARE*256}")
    promote(a)
    e1_body(a, False, "N")
    e1_body(a, True, "S")
    a("L_e1ep:")
    a(f"""
    s_cmp_eq_u32 {sr(S_KIND)}, {K_V}
    s_cbranch_scc1 L_epV
    s_cmp_eq_u32 {sr(S_KIND)}, {K_GU}
    s_cbranch_scc1 L_epGU
    s_cmp_eq_u32 {sr(S_KIND)}, {K_DN}
    s_cbranch_scc1 L_epDN
    """)
    ep_chunks(a)
    a("s_branch L_e1done")
    a("L_epV:")
    ep_vt(a)
    a("s_branch L_e1done")
    a("L_epGU:")
    ep_gu(a)
    a("s_branch L_e1done")
    a("L_epDN:")
    ep_down1(a)
    a("L_e1done:")
    if CFG.get('tl'):
        a(f"s_lshr_b32 s5, {sr(S_COFF)}, 12")
        a(f"s_lshl_b32 s5, s5, 4")
        a(f"s_or_b32 s5, s5, {sr(S_KIND)}")
        a(f"s_mov_b32 s68, s5")
        tl_store_nowait(a, "s68")
    a(f"""
    s_cmp_eq_u32 {sr(S_NKIND)}, 0
    s_cbranch_scc1 L_e1drain
    s_mov_b32 {sr(S_PDONE)}, {sr(S_DONE)}
    """)
    promote(a)
    a("L_e1drain:")
    drain_signal(a)
    a("s_branch L_e1start")

def tl_store_nowait(a, tk):
    lab = a.label("Ltw")
    tl_stamp(a, 2)
    a(f"""
    s_and_b32 s4, {sr(S_PCNT)}, 63
    s_mov_b32 s5, m0
    s_mov_b32 m0, s4
    s_nop 0
    v_writelane_b32 v252, {tk}, m0
    v_writelane_b32 v253, s70, m0
    v_writelane_b32 v254, s72, m0
    v_writelane_b32 v255, s74, m0
    s_mov_b32 m0, s5
    s_add_u32 {sr(S_PCNT)}, {sr(S_PCNT)}, 1
    s_mov_b32 s70, s74
    """)

def tl_dump(a):
    if CFG.get('tl'):
        lab = a.label("Ltd")
        a(f"""
        s_cmp_lg_u32 {sr(S_W)}, 0
        s_cbranch_scc1 {lab}
        s_lshl_b32 s4, {sr(S_PID)}, 11
        s_add_u32 s4, s4, {OFF_DBG}
        v_lshlrev_b32 v4, 4, v0
        v_mov_b32 v5, 0x80000000
        v_cmp_lt_u32 vcc, 0, v0
        v_cmp_gt_u32 s[6:7], {sr(S_PCNT)}, v0
        s_and_b64 vcc, vcc, s[6:7]
        s_nop 1
        v_cndmask_b32 v4, v5, v4, vcc
        buffer_store_dword v252, v4, {sr(S_WS,4)}, s4 offen
        buffer_store_dword v253, v4, {sr(S_WS,4)}, s4 offen offset:4
        buffer_store_dword v254, v4, {sr(S_WS,4)}, s4 offen offset:8
        buffer_store_dword v255, v4, {sr(S_WS,4)}, s4 offen offset:12
        s_waitcnt vmcnt(0)
        {lab}:
        """)

def wait_multi(a, sleep=8):
    top = a.label("Lwm"); ok = a.label("Lwmo")
    a(f"""
    s_cmp_lg_u32 {sr(S_W)}, 0
    s_cbranch_scc1 {ok}
    {top}:
    buffer_load_dword {vr(V_PV)}, {vr(V_PA)}, {sr(S_WS,4)}, 0 offen sc1
    s_waitcnt vmcnt(0)
    v_cmp_ge_u32 vcc, {vr(V_PV)}, {vr(V_PT)}
    s_cmp_eq_u64 vcc, -1
    s_cbranch_scc1 {ok}
    s_sleep {sleep}
    s_sub_u32 {sr(S_GBUD)}, {sr(S_GBUD)}, 1
    s_cbranch_scc0 {top}
    s_branch L_abort
    {ok}:
    s_barrier
    """)

def phase2(a):
    mk = CFG.get('wo_masks') or [0x2492492492555555, 0x4924924924aaaaaa, 0x9249249249000000]
    a("L_p2:")
    a(f"""
    v_lshrrev_b32 v4, 4, v0
    v_lshlrev_b32 v4, 9, v4
    v_and_b32 v5, 15, v0
    v_lshlrev_b32 v5, 4, v5
    v_add_u32 {vr(V_OD)}, v4, v5
    """)
    tl_dump(a)
    if CFG.get('nop2'): a("s_branch L_exit")
    a(f"""
    s_cmp_ge_u32 {sr(S_T)}, 8
    s_cbranch_scc1 L_WO
    """)
    wait_word(a, S_DBG, C_RBAR*4, 128)
    a(f"s_lshr_b32 {sr(S_KIND)}, {sr(S_T)}, 1             ; segment")
    if CFG.get('odata'):
        assert CFG.get('oseg', 1)
        a(f"""
        s_add_u32 s4, {sr(S_KIND)}, 60
        s_lshl_b32 s4, s4, 18
        s_lshl_b32 s5, {sr(S_J)}, 1
        s_and_b32 s6, {sr(S_T)}, 1
        s_add_u32 s5, s5, s6
        s_lshl_b32 s5, s5, 2
        s_add_u32 s5, s5, {sr(S_W)}                ; head
        s_lshl_b32 s5, s5, 13
        s_add_u32 s4, s4, s5
        s_add_u32 s4, s4, {OFF_OX}
        """)
        for r in range(4): a(f"v_mov_b32 {vr(32+r)}, -1")
        for c in range(4):
            for qt in range(2):
                a(f"buffer_store_dwordx4 {vr(32,4)}, {vr(V_OD)}, {sr(S_WS,4)}, s4 offen offset:{qt*256} sc1")
            if c < 3: a("s_add_u32 s4, s4, 2048")
    a("L_AT:")
    a(f"""
    s_lshr_b32 {sr(S_MT)}, {sr(S_KIND)}, 3
    s_lshl_b32 s5, {sr(S_J)}, 1
    s_and_b32 s4, {sr(S_T)}, 1
    s_add_u32 s4, s4, s5
    s_lshl_b32 s4, s4, 3
    s_and_b32 s6, {sr(S_KIND)}, 7
    s_add_u32 {sr(S_NT)}, s4, s6
    s_lshl_b32 s5, {sr(S_KIND)}, 8
    s_add_u32 {sr(S_DONE)}, s5, {OFF_CNT + CN_AT*256}
    ; keys / values and queries of the tile ; the recurrence has passed the segment (step s+1 reports s+2, the last two segments are watched directly)
    s_lshl_b32 s4, {sr(S_MT)}, 8
    s_add_u32 s5, s4, {OFF_CNT + CN_KV*256}
    v_mov_b32 {vr(V_PA)}, s5
    s_add_u32 s5, s4, {OFF_CNT + CN_Q*256}
    v_writelane_b32 {vr(V_PA)}, s5, 1
    s_mov_b32 s5, {OFF_CNT + CN_PROG*256}
    v_writelane_b32 {vr(V_PA)}, s5, 2
    s_cmp_eq_u32 {sr(S_MT)}, 0
    s_cselect_b32 s5, 128, 32
    v_mov_b32 {vr(V_PT)}, s5
    s_mov_b32 s5, 16
    v_writelane_b32 {vr(V_PT)}, s5, 1
    s_cmp_ge_u32 {sr(S_KIND)}, {CFG.get('atd', (64, 2))[0]}
    s_cselect_b32 s5, {CFG.get('atd', (64, 2))[1]}, 2
    s_add_u32 s5, s5, {sr(S_KIND)}
    s_min_u32 s5, s5, 63
    v_writelane_b32 {vr(V_PT)}, s5, 2
    """)
    tl_stamp(a, 0)
    wait_multi(a)
    tl_stamp(a, 1)
    att_task(a)
    drain_signal(a)
    if CFG.get('tl'):
        a(f"s_lshl_b32 s68, {sr(S_KIND)}, 4")
        a("s_or_b32 s68, s68, 6")
        tl_store_nowait(a, "s68")
    a(f"""
    s_add_u32 {sr(S_KIND)}, {sr(S_KIND)}, 4
    s_cmp_lt_u32 {sr(S_KIND)}, 64
    s_cbranch_scc1 L_AT
    s_branch L_p2end
    L_WO:
    s_lshl_b32 s4, {sr(S_J)}, 3
    s_and_b32 s5, {sr(S_T)}, 7
    s_add_u32 {sr(S_CB)}, s4, s5
    s_mov_b32 {sr(S_MSK)}, {mk[0] & 0xffffffff:#x}
    s_mov_b32 {sr(S_MSK+1)}, {mk[0] >> 32:#x}
    s_cmp_ge_u32 {sr(S_T)}, 16
    s_cselect_b32 {sr(S_MSK)}, {mk[1] & 0xffffffff:#x}, {sr(S_MSK)}
    s_cselect_b32 {sr(S_MSK+1)}, {mk[1] >> 32:#x}, {sr(S_MSK+1)}
    s_cmp_ge_u32 {sr(S_T)}, 24
    s_cselect_b32 {sr(S_MSK)}, {mk[2] & 0xffffffff:#x}, {sr(S_MSK)}
    s_cselect_b32 {sr(S_MSK+1)}, {mk[2] >> 32:#x}, {sr(S_MSK+1)}
    s_cmp_eq_u64 {sr(S_MSK,2)}, 0
    s_cbranch_scc1 L_p2end
    """)
    tl_stamp(a, 0)
    e3_setup(a)
    if CFG.get('tl'):
        tl_stamp(a, 1)
        a("s_mov_b32 s68, 9")
        tl_store_nowait(a, "s68")
    e3_loop(a)
    a("L_p2end:")
    tl_dump(a)
    a("s_branch L_exit")
```
